```python
import torch

def _softmax(x, axis=-1):
    return torch.softmax(x, dim=axis)

def _gelu(x):
    return torch.nn.functional.gelu(x, approximate='tanh')

def _silu(x):
    return torch.nn.functional.silu(x)

def _sigmoid(x):
    return torch.sigmoid(x)

def _layernorm(x, axis=-1, eps=1e-05):
    m = x.mean(dim=axis, keepdim=True)
    v = x.var(dim=axis, keepdim=True, unbiased=False)
    return (x - m) / torch.sqrt(v + eps)

def _scatter_add(tgt, idx, src, axis=0):
    return tgt.clone().index_add_(axis, idx, src)

def _segment_sum(src, seg, n):
    out = torch.zeros((n,) + src.shape[1:], dtype=src.dtype)
    return out.index_add_(0, seg, src)

def _pad(x, pw):
    flat = tuple((v for pair in reversed(pw) for v in pair))
    return torch.nn.functional.pad(x, flat)
kernel_name = 'parallel_sum__memory_aug_recurrent_mem_tr__glu_gated_geglu__prompt'

def setup_inputs():

    _w = lambda a: (lambda t: t.to(torch.bfloat16) if t.is_floating_point() else t)(torch.as_tensor(a))

    def _A_setup():
        B, S, Dm = (1, 2048, 640)
        H, Dh = (32, 192)
        M, seg = (8, 32)
        seg = min(seg, S)
        S = S // seg * seg
        return {'x': _w((lambda *s: torch.randn(*s, dtype=torch.bfloat16) * 0.05)(B, S, Dm)), 'mem0': _w((lambda *s: torch.randn(*s, dtype=torch.bfloat16) * 0.2)(B, M, Dm)), 'Wq': _w((lambda *s: torch.randn(*s, dtype=torch.bfloat16) * 1.6)(Dm, H, Dh) * Dm ** (-0.5)), 'Wk': _w((lambda *s: torch.randn(*s, dtype=torch.bfloat16) * 1.6)(Dm, H, Dh) * Dm ** (-0.5)), 'Wv': _w((lambda *s: torch.randn(*s, dtype=torch.bfloat16) * 0.2)(Dm, H, Dh) * Dm ** (-0.5)), 'Wo': _w((lambda *s: torch.randn(*s, dtype=torch.bfloat16) * 0.2)(H, Dh, Dm) * (H * Dh) ** (-0.5)), 'seg_len': seg}
    _A_in = _A_setup()

    def _B_setup():
        B, S, Dm, Df = (1, 2048, 640, 1536)
        return {'x': _w((lambda *s: torch.randn(*s, dtype=torch.bfloat16) * 0.05)(B, S, Dm)), 'w_gate': _w((lambda *s: torch.randn(*s, dtype=torch.bfloat16) * 0.4)(Dm, Df) * Dm ** (-0.5)), 'w_up': _w((lambda *s: torch.randn(*s, dtype=torch.bfloat16) * 0.4)(Dm, Df) * Dm ** (-0.5)), 'w_down': _w((lambda *s: torch.randn(*s, dtype=torch.bfloat16) * 0.4)(Df, Dm) * Df ** (-0.5))}
    _B_in = _B_setup()
    return {'A_x': _A_in['x'], 'A_mem0': _A_in['mem0'], 'A_Wq': _A_in['Wq'], 'A_Wk': _A_in['Wk'], 'A_Wv': _A_in['Wv'], 'A_Wo': _A_in['Wo'], 'A_seg_len': _A_in['seg_len'], 'B_x': _B_in['x'], 'B_w_gate': _B_in['w_gate'], 'B_w_up': _B_in['w_up'], 'B_w_down': _B_in['w_down']}

def reference(A_x, A_mem0, A_Wq, A_Wk, A_Wv, A_Wo, A_seg_len, B_x, B_w_gate, B_w_up, B_w_down):

    def _A_ref(x, mem0, Wq, Wk, Wv, Wo, seg_len):
        B, S, Dm = x.shape
        H, Dh = (Wq.shape[1], Wq.shape[2])
        M = mem0.shape[1]
        scale = Dh ** (-0.5)
        n_seg = S // seg_len
        L = M + seg_len
        idx = torch.arange(L)
        mask = (idx[:, None] < M) | (idx[:, None] >= idx[None, :])
        mem = mem0
        outs = []
        for s in range(n_seg):
            xs = x[:, s * seg_len:(s + 1) * seg_len, :].clone()
            h = torch.concatenate([mem, xs], axis=1)
            q = torch.einsum('btd,dhe->bhte', h, Wq)
            k = torch.einsum('btd,dhe->bhte', h, Wk)
            v = torch.einsum('btd,dhe->bhte', h, Wv)
            scores = torch.einsum('bhqe,bhke->bhqk', q, k) * scale
            scores = torch.where(mask[None, None], scores, -1000000000.0)
            p = _softmax(scores, axis=-1)
            o = torch.einsum('bhqk,bhke->bhqe', p, v)
            o = torch.einsum('bhte,hed->btd', o, Wo)
            mem = o[:, :M, :].clone()
            outs.append(o[:, M:, :])
        return torch.concatenate(outs, axis=1)

    def _B_ref(x, w_gate, w_up, w_down):
        g = torch.einsum('bsd,df->bsf', x, w_gate)
        u = torch.einsum('bsd,df->bsf', x, w_up)
        h = _gelu(g) * u
        return torch.einsum('bsf,fd->bsd', h, w_down)
    x = A_x
    xn = _layernorm(x, axis=-1)
    return x + _A_ref(xn, A_mem0, A_Wq, A_Wk, A_Wv, A_Wo, A_seg_len) + _B_ref(xn, B_w_gate, B_w_up, B_w_down)
```

```python
class Asm:
    def __init__(self):
        self.lines = []
        self.nlabel = 0
    def __call__(self, s):
        for l in s.strip('\n').split('\n'):
            l = l.strip()
            if l:
                self.lines.append(('' if l.endswith(':') else '    ') + l)
    def label(self, base='L'):
        self.nlabel += 1
        return f'{base}_{self.nlabel}'
    def text(self):
        return '\n'.join(self.lines) + '\n'

def vr(b, n=1):
    if b < 256:
        assert b + n <= 256, (b, n)
        return f'v{b}' if n == 1 else f'v[{b}:{b+n-1}]'
    b -= 256
    assert b + n <= 256
    return f'a{b}' if n == 1 else f'a[{b}:{b+n-1}]'

def kd(name, vgpr=512, sgpr=102, accum=256):
    return f'''.section .rodata,"a"
.p2align 6
.amdhsa_kernel {name}
  .amdhsa_next_free_vgpr {vgpr}
  .amdhsa_next_free_sgpr {sgpr}
  .amdhsa_accum_offset {accum}
  .amdhsa_group_segment_fixed_size 0
  .amdhsa_kernarg_size 112
  .amdhsa_user_sgpr_count 2
  .amdhsa_user_sgpr_kernarg_segment_ptr 1
  .amdhsa_system_sgpr_workgroup_id_x 1
  .amdhsa_float_denorm_mode_32 3
  .amdhsa_float_denorm_mode_16_64 3
.end_amdhsa_kernel
'''
```

```python
from gen import *

def head_slab_setup(G, vb, vtr, sbase):
    a = G.a
    a(f'''
s_lshr_b32 s56, {sW}, 1
s_lshl_b32 s56, s56, 1
s_add_u32 s56, s56, {sW}
s_lshl_b32 s56, s56, 6
s_lshl_b32 s57, {sW}, 5
s_add_u32 s57, s57, 64
s_mul_i32 s58, {sIDX}, 384
s_add_u32 s56, s56, s58
s_add_u32 s57, s57, s58
''')
    for u in range(192): assert (u * 171) >> 10 == u // 6
    for i in range(3):
        a(f'''v_add_u32 v4, {64 * i}, v1
v_mul_u32_u24 v5, 171, v4
v_lshrrev_b32 v5, 10, v5
v_mul_u32_u24 v6, 6, v5
v_sub_u32 v4, v4, v6
v_mul_u32_u24 v5, 12288, v5
v_lshl_add_u32 v5, v4, 4, v5
v_mov_b32 v6, s57
v_mov_b32 v7, s56
v_cmp_gt_u32 vcc, 4, v4
s_nop 1
v_cndmask_b32 v6, v6, v7, vcc
v_add_u32 v{vb + i}, v5, v6''')
    a(f'''v_lshrrev_b32 v4, 2, v3
v_lshl_add_u32 v4, v2, 3, v4
v_mul_u32_u24 v4, 96, v4
v_and_b32 v5, 3, v3
v_lshl_add_u32 v4, v5, 3, v4
v_add_u32 v{vtr}, {sbase}, v4''')

def head_slab_load(G, srd, vb, vtr, sbase, ring, dest, vres, tmp):
    a = G.a
    a('s_mov_b32 s72, 0')
    def issue(b):
        for i in range(3): G.dma(f'v{vb+i}', srd, 's72', sbase, (b % ring) * 3072 + i * 1024)
        a(f's_add_u32 s72, s72, {32 * 12288}')
    def consume(b):
        pend = []
        for tl in range(3):
            kind, d = dest(b >> 1, tl)
            r = d + 4 * (b & 1) if kind == 'r' else tmp + 4 * len(pend)
            if kind == 'l': pend.append((r, d + (b & 1) * 1024))
            for hf in range(2):
                a(f'ds_read_b64_tr_b16 {vr(r + 2 * hf, 2)}, v{vtr} offset:{(b % ring) * 3072 + hf * 384 + tl * 32}')
        if pend:
            a('s_waitcnt lgkmcnt(0)')
            for r, o in pend: a(f'ds_write_b128 v{vres}, {vr(r, 4)} offset:{o}')
    G.stream_load(20, 3, ring, issue, consume)

def mpoll_setup(G, vg4, vg2, vl4, vl2, ssel, ldsbase):
    a = G.a
    a(f'''
s_lshl_b32 s56, {sW}, 11
v_lshl_add_u32 v{vl4}, v1, 4, s56
v_add_u32 v{vg4}, {ssel}, v{vl4}
v_add_u32 v{vl4}, {ldsbase}, v{vl4}
s_lshl_b32 s56, {sW}, 9
v_lshl_add_u32 v{vl2}, v1, 3, s56
s_add_u32 s56, {ssel}, 16384
v_add_u32 v{vg2}, s56, v{vl2}
v_add_u32 v{vl2}, {ldsbase + 8192}, v{vl2}
''')

def poll(G, load, use, n, nreg, A, B, vt, pipe=True, sleep=0):
    a = G.a; l = a.label('L_poll')
    a(f's_mov_b32 {sSPIN}, {SPIN}')
    if not pipe:
        a(f'{l}:')
        load(A)
        a(f's_sub_u32 {sSPIN}, {sSPIN}, 1\ns_cbranch_scc1 L_fail\ns_waitcnt vmcnt(0)')
        use(A)
        G.check(A if isinstance(A, list) else range(A, A + nreg), vt)
        if sleep: a(f's_cbranch_vccz {l}_d\ns_sleep {sleep}\ns_branch {l}\n{l}_d:')
        else: a(f's_cbranch_vccnz {l}')
    else:
        load(A)
        a(f'{l}:')
        load(B)
        a(f's_waitcnt vmcnt({n})')
        use(A); G.check(range(A, A + nreg), vt)
        a(f's_cbranch_vccz {l}_d')
        load(A)
        a(f's_sub_u32 {sSPIN}, {sSPIN}, 1\ns_cbranch_scc1 L_fail\ns_waitcnt vmcnt({n})')
        use(B); G.check(range(B, B + nreg), vt)
        a(f's_cbranch_vccnz {l}')
        a(f'{l}_d:')

def idx_setup(G, v):
    G.a(f'v_mov_b32 v4, 0x4444\nv_mov_b32 v5, 0xeeee\nv_cmp_gt_u32 vcc, 8, v3\ns_nop 1\nv_cndmask_b32 v{v}, v5, v4, vcc')

SMF = 'v_smfmac_f32_16x16x64_bf16'
MF32 = 'v_mfma_f32_16x16x32_bf16'
MF16 = 'v_mfma_f32_16x16x16_bf16'

class Proj:
    def __init__(self, G, AB, SBUF, vA, vres, vidx, nbuf=3):
        self.G, self.AB, self.SBUF, self.vA, self.vres, self.vidx, self.nbuf = G, AB, SBUF, vA, vres, vidx, nbuf

def roleS(G):
    a = G.a
    a('L_roleS:')
    if G.disabled('S'): return
    RES = 0
    MST = 81920
    TT  = 92160
    PMT = 104448
    PMM = 108544
    STG = 81920
    vZ, vIDX, vG4, vG2, vL4, vL2, vA, vRES, vTW, vTR, vPW, vL16, vMW, vMR, vES, vLS, vFL, vKH, vD0, vD1, vT = 8, 9, 10, 11, 12, 13, 14, 15, 16, 17, 18, 19, 20, 21, 22, 23, 24, 25, 26, 27, 7
    AB = 28
    AQ = 40
    AK = 52
    QH = 64
    KH = 70
    KT = 76
    SB = 88
    TM = 112
    POLA, POLB = 52, 62
    W0 = 128
    X = 112
    lds_set = [(0, 2, 2), (0, 4, 2), (0, 5, 2), (0, 7, 2), (0, 8, 2), (0, 9, 2), (1, 1, 2), (1, 3, 2), (1, 4, 2), (1, 6, 2), (1, 7, 2), (1, 9, 2)]
    RESW = len(lds_set) * 2048
    assert 4 * RESW <= 98304
    RES, MST, TT, PMT, PMM, STG = 0, 98304, 108544, 120832, 124928, 98304
    loc = {}; nr = 0
    for mtx in range(2):
        for t in range(10):
            for tl in range(3):
                if (mtx, t, tl) in lds_set: loc[mtx, t, tl] = ('l', lds_set.index((mtx, t, tl)) * 2048)
                else: loc[mtx, t, tl] = ('r', W0 + 8 * nr); nr += 1
    assert W0 + 8 * nr <= 512
    a(f'''
s_mov_b32 {sIDX}, {sROLE}
s_lshl_b32 s66, {sIDX}, 2
s_add_u32 s66, s66, {sW}
s_lshl_b32 s66, s66, 2
s_add_u32 s66, s66, {FL + 4 * F_S}
v_mov_b32 v{vZ}, 0
v_lshlrev_b32 v{vL16}, 4, v1
''')
    G.set_flag('s66', 0, 'v4', f'v{vZ}')
    a(f'''
s_and_b32 s56, {sIDX}, 15
s_lshl_b32 s64, s56, 9
s_lshr_b32 s56, {sIDX}, 4
s_lshl_b32 s56, s56, 14
s_add_u32 s64, s64, s56
s_add_u32 s64, s64, {PG_E}
s_add_u32 s64, s64, {sSELE}
s_lshl_b32 s65, {sIDX}, 8
s_add_u32 s65, s65, {PG_L}
s_add_u32 s65, s65, {sSELL}
v_mov_b32 v4, -1
v_mov_b32 v5, -1
v_lshlrev_b32 v6, 3, v1
v_lshlrev_b32 v7, 2, v1
s_add_u32 s56, s64, 32768
s_add_u32 s57, s65, 16384
buffer_store_dwordx2 v[4:5], v6, {WS}, s64 offen sc1
buffer_store_dwordx2 v[4:5], v6, {WS}, s56 offen sc1
buffer_store_dword v4, v7, {WS}, s65 offen sc1
buffer_store_dword v4, v7, {WS}, s57 offen sc1
''')
    G.arrive()
    G.srd(12, P_WQ, 640 * 12288); G.srd(16, P_WK, 640 * 12288)
    a(f's_mul_i32 s70, {sW}, 15360\ns_add_u32 s70, s70, {STG}\ns_mul_i32 s71, {sW}, {RESW}\nv_add_u32 v{vRES}, s71, v{vL16}')
    head_slab_setup(G, 28, 31, 's70')
    head_slab_load(G, SA, 28, 31, 's70', 5, lambda t, tl: loc[0, t, tl], vRES, 40)
    head_slab_load(G, SB_ := SB and 's[16:19]', 28, 31, 's70', 5, lambda t, tl: loc[1, t, tl], vRES, 40)
    G.await_all()
    a('s_barrier')
    idx_setup(G, vIDX)
    mpoll_setup(G, vG4, vG2, vL4, vL2, sSELM, MST)
    a(f'''
v_add_u32 v{vA}, {MST}, v{vL16}
s_mul_i32 s56, {sW}, 3072
s_add_u32 s56, s56, {TT}
v_lshlrev_b32 v4, 5, v3
v_lshl_add_u32 v4, v2, 3, v4
v_add_u32 v{vTW}, s56, v4
v_lshrrev_b32 v4, 2, v3
v_lshl_add_u32 v4, v2, 2, v4
v_lshlrev_b32 v4, 5, v4
v_and_b32 v5, 3, v3
v_lshl_add_u32 v4, v5, 3, v4
v_add_u32 v{vTR}, s56, v4
v_and_b32 v4, 7, v3
v_lshrrev_b32 v5, 3, v3
v_lshlrev_b32 v6, 3, v4
v_lshl_add_u32 v6, v2, 1, v6
v_add_u32 v6, v6, v5
s_lshl_b32 s56, {sW}, 10
s_add_u32 s56, s56, {PMT}
v_lshl_add_u32 v{vPW}, v6, 4, s56
v_lshlrev_b32 v6, 3, v4
v_lshl_add_u32 v6, v5, 2, v6
v_and_b32 v7, 1, v2
v_lshl_add_u32 v6, v7, 1, v6
v_lshrrev_b32 v7, 1, v2
v_add_u32 v6, v6, v7
s_lshl_b32 s56, {sW}, 3
s_add_u32 s56, s56, {PMM}
v_lshl_add_u32 v{vMW}, v6, 5, s56
v_lshlrev_b32 v{vMR}, 5, v1
v_add_u32 v{vMR}, {PMM}, v{vMR}
''')
    a(f'''
v_lshrrev_b32 v4, 3, v1
v_bfe_u32 v5, v1, 1, 2
v_and_b32 v6, 1, v1
v_lshlrev_b32 v7, 7, v5
v_lshl_add_u32 v7, v4, 4, v7
v_lshl_add_u32 v{vES}, v6, 3, v7
v_lshl_add_u32 v7, v6, 3, v4
v_lshlrev_b32 v7, 4, v7
v_bfe_u32 v5, v1, 1, 1
v_lshl_add_u32 v7, v5, 3, v7
v_bfe_u32 v{vD0}, v1, 2, 1
v_lshl_add_u32 v{vLS}, v{vD0}, 2, v7
v_lshlrev_b32 v5, 2, v5
v_lshl_add_u32 v5, v6, 1, v5
v_cmp_eq_u32 s[76:77], 1, v{vD0}
v_cmp_eq_u32 vcc, v4, v5
s_nop 1
v_cndmask_b32 v{vD0}, 0, 1.0, vcc
v_add_u32 v5, 1, v5
v_cmp_eq_u32 vcc, v4, v5
s_nop 1
v_cndmask_b32 v{vD1}, 0, 1.0, vcc
''')
    a(f'''
v_min_u32 v4, 2, v1
s_mul_i32 s56, {sIDX}, 3
s_add_u32 s56, s56, {F_XW + 96 + FL // 4}
v_add_lshl_u32 v{vFL}, v4, s56, 2
s_lshr_b32 s56, {sW}, 1
s_lshl_b32 s57, s56, 1
s_add_u32 s57, s57, {sW}
s_add_u32 s56, s56, 2
s_and_b32 s58, {sW}, 1
s_lshl_b32 s58, s58, 3
v_add_u32 v{vKH}, s58, v{vL16}
s_mul_i32 s58, {sIDX}, 12288
s_add_u32 s58, s58, {QT + QKV_SZ}
s_lshl_b32 s67, s57, 11
s_add_u32 s67, s67, s58
s_lshl_b32 s68, s56, 11
s_add_u32 s68, s68, s58
s_mul_i32 s58, {sIDX}, 6144
s_add_u32 s58, s58, {KM}
s_lshl_b32 s69, s57, 10
s_add_u32 s69, s69, s58
s_lshl_b32 s70, s56, 10
s_add_u32 s70, s70, s58
s_mov_b32 s71, {PG_M}
s_mov_b32 s78, {f2u(C_SCALE):#x}
s_mov_b32 {sSEG}, 0
s_mov_b32 s73, 1
''')
    def ktload():
        a(f'''buffer_load_dwordx4 v[{KT}:{KT+3}], v{vL16}, {WS}, s67 offen sc1
buffer_load_dwordx4 v[{KT+4}:{KT+7}], v{vL16}, {WS}, s67 offen offset:1024 sc1
buffer_load_dwordx2 v[{KT+8}:{KT+9}], v{vKH}, {WS}, s68 offen sc1
buffer_load_dwordx2 v[{KT+10}:{KT+11}], v{vKH}, {WS}, s68 offen offset:1024 sc1
s_add_u32 s67, s67, 393216
s_add_u32 s68, s68, 393216''')
    G.wait_flags(f'v{vFL}', 'v4', 's73')
    ktload()
    nl = len(lds_set)
    def wread(i):
        b = SB + (i % 3) * 8
        a(f'ds_read_b128 {vr(b, 4)}, v{vRES} offset:{i * 2048}\nds_read_b128 {vr(b + 4, 4)}, v{vRES} offset:{i * 2048 + 1024}')
    a('L_s_loop:')
    G.tick(0)
    for i in range(3): wread(i)
    for i in range(12): a(f'v_mov_b32 v{AQ + i}, 0')
    def mload(b):
        a(f'''buffer_load_dwordx4 v[{b}:{b+3}], v{vG4}, {WS}, s71 offen sc1
buffer_load_dwordx4 v[{b+4}:{b+7}], v{vG4}, {WS}, s71 offen offset:1024 sc1
buffer_load_dwordx2 v[{b+8}:{b+9}], v{vG2}, {WS}, s71 offen sc1''')
    def mwrite(b):
        a(f'''ds_write_b128 v{vL4}, v[{b}:{b+3}]
ds_write_b128 v{vL4}, v[{b+4}:{b+7}] offset:1024
ds_write_b64 v{vL2}, v[{b+8}:{b+9}]''')
    poll(G, mload, mwrite, 3, 10, POLA, POLB, f'v{vT}')
    a('s_waitcnt lgkmcnt(0)\ns_barrier')
    G.tick(1)
    nxt = [3]
    def ppass(mtx, ACC):
        def ard(t): a(f'ds_read_b128 {vr(AB + (t % 3) * 4, 4)}, v{vA} offset:{t * 1024}')
        ard(0); ard(1)
        for t in range(10):
            if t + 2 < 10:
                ard(t + 2); a('s_waitcnt lgkmcnt(2)')
            else:
                a(f's_waitcnt lgkmcnt({1 if t == 8 else 0})')
            used = None
            for tl in range(3):
                kind, d = loc[mtx, t, tl]
                if kind == 'l':
                    i = d // 2048; d = SB + (i % 3) * 8; used = i
                a(f'{SMF} {vr(ACC + 4 * tl, 4)}, {vr(AB + (t % 3) * 4, 4)}, {vr(d, 8)}, v{vIDX}')
            if used is not None and used + 3 < nl:
                wread(used + 3)
                a('s_waitcnt lgkmcnt(0)') if False else None
    def transpose(ACC, DST, toff):
        for tl in range(3):
            s = ACC + 4 * tl
            a(f'v_cvt_pk_bf16_f32 v{X + 2*tl}, v{s}, v{s+1}\nv_cvt_pk_bf16_f32 v{X + 2*tl + 1}, v{s+2}, v{s+3}')
            a(f'ds_write_b64 v{vTW}, v[{X + 2*tl}:{X + 2*tl + 1}] offset:{toff + 512 * tl}')
        for tl in range(3):
            a(f'ds_read_b64_tr_b16 v[{DST + 2*tl}:{DST + 2*tl + 1}], v{vTR} offset:{toff + 512 * tl}')
        a('s_waitcnt lgkmcnt(0)')
    ppass(0, AQ)
    G.tick(6)
    a('s_waitcnt vmcnt(0)')
    G.tick(7)
    for i in range(12): a(f'v_mov_b32 v{AK + i}, 0')
    transpose(AQ, QH, 0)
    for mt in range(2):
        d = vr(AQ + 4 * mt, 4)
        a(f'{MF32} {d}, v[{KT + 4*mt}:{KT + 4*mt + 3}], v[{QH}:{QH+3}], 0')
    a('s_nop 5')
    for mt in range(2):
        d = vr(AQ + 4 * mt, 4)
        a(f'{MF16} {d}, v[{KT + 8 + 2*mt}:{KT + 9 + 2*mt}], v[{QH+4}:{QH+5}], {d}')
    a('s_nop 7')
    for r in range(4):
        a(f'v_add_f32_dpp v{X + r}, v{AQ + r}, v{AQ + r} row_ror:8 row_mask:0xf bank_mask:0x3')
        a(f'v_add_f32_dpp v{X + r}, v{AQ + 4 + r}, v{AQ + 4 + r} row_ror:8 row_mask:0xf bank_mask:0xc')
    a(f'ds_write_b128 v{vPW}, v[{X}:{X+3}]\ns_waitcnt lgkmcnt(0)\ns_barrier')
    G.tick(2)
    a(f's_cmp_eq_u32 {sW}, 0\ns_cbranch_scc0 L_s_noearly')
    for w in range(4): a(f'ds_read_b128 v[{X + 4*w}:{X + 4*w + 3}], v{vA} offset:{PMT - MST + 1024 * w}')
    a('s_waitcnt lgkmcnt(0)')
    for r in range(4):
        a(f'v_add_f32 v{X+r}, v{X+r}, v{X+4+r}\nv_add_f32 v{X+8+r}, v{X+8+r}, v{X+12+r}\nv_add_f32 v{X+r}, v{X+r}, v{X+8+r}')
    def red(op, v, n):
        for m in ['quad_perm:[1,0,3,2]', 'quad_perm:[2,3,0,1]', 'row_half_mirror'][:n]:
            a(f's_nop 1\n{op}_dpp {v}, {v}, {v} {m} row_mask:0xf bank_mask:0xf')
    a(f'v_max3_f32 v5, v{X}, v{X+1}, v{X+2}\nv_max_f32 v5, v5, v{X+3}')
    red('v_max_f32', 'v5', 3)
    a(f'v_mul_f32 v5, s78, v5')
    for r in range(4): a(f'v_fma_f32 v{X+r}, v{X+r}, s78, -v5')
    for r in range(4): a(f'v_exp_f32 v{X+r}, v{X+r}')
    a(f's_nop 0\nv_cvt_pk_bf16_f32 v{X+4}, v{X}, v{X+1}\nv_cvt_pk_bf16_f32 v{X+5}, v{X+2}, v{X+3}')
    a(f'v_min_u32 v{X+4}, -2, v{X+4}\nv_min_u32 v{X+5}, -2, v{X+5}')
    a(f'buffer_store_dwordx2 v[{X+4}:{X+5}], v{vES}, {WS}, s64 offen sc1')
    a(f'v_add_f32 v6, v{X}, v{X+1}\nv_add_f32 v4, v{X+2}, v{X+3}\nv_add_f32 v6, v6, v4')
    red('v_add_f32', 'v6', 3)
    a('L_s_noearly:')
    G.tick(3)
    ppass(1, AK)
    a('s_nop 7')
    transpose(AK, KH, 1536)
    d = vr(AQ + 8, 4)
    a(f'{MF32} {d}, v[{KH}:{KH+3}], v[{QH}:{QH+3}], 0\ns_nop 5\n{MF16} {d}, v[{KH+4}:{KH+5}], v[{QH+4}:{QH+5}], {d}\ns_nop 7')
    S0 = AQ + 8
    a(f'''v_permlane32_swap_b32 v{S0}, v{S0+2}
v_permlane32_swap_b32 v{S0+1}, v{S0+3}
v_add_f32 v{S0}, v{S0}, v{S0+2}
v_add_f32 v{S0+1}, v{S0+1}, v{S0+3}
s_nop 0
v_add_f32_dpp v{X}, v{S0}, v{S0} row_ror:8 row_mask:0xf bank_mask:0xf
v_add_f32_dpp v{X+1}, v{S0+1}, v{S0+1} row_ror:8 row_mask:0xf bank_mask:0xf
ds_write_b64 v{vMW}, v[{X}:{X+1}]
s_waitcnt lgkmcnt(0)
s_barrier
''')
    G.tick(4)
    a(f'''s_cmp_eq_u32 {sW}, 0
s_cbranch_scc0 L_s_nolate
ds_read_b128 v[{X}:{X+3}], v{vMR}
ds_read_b128 v[{X+4}:{X+7}], v{vMR} offset:16
s_waitcnt lgkmcnt(0)
v_add_f32 v{X}, v{X}, v{X+2}
v_add_f32 v{X+1}, v{X+1}, v{X+3}
v_add_f32 v{X+4}, v{X+4}, v{X+6}
v_add_f32 v{X+5}, v{X+5}, v{X+7}
v_add_f32 v{X}, v{X}, v{X+4}
v_add_f32 v{X+1}, v{X+1}, v{X+5}
v_mul_f32 v{X}, s78, v{X}
v_mul_f32 v{X+1}, s78, v{X+1}
v_max3_f32 v{X+2}, v{X}, v{X+1}, v5
''')
    red('v_max_f32', f'v{X+2}', 2)
    a(f'''v_sub_f32 v{X}, v{X}, v{X+2}
v_sub_f32 v{X+1}, v{X+1}, v{X+2}
v_sub_f32 v{X+3}, v5, v{X+2}
v_exp_f32 v{X}, v{X}
v_exp_f32 v{X+1}, v{X+1}
v_exp_f32 v{X+3}, v{X+3}
v_add_f32 v{X+4}, v{X}, v{X+1}
''')
    red('v_add_f32', f'v{X+4}', 2)
    a(f'''v_fmac_f32 v{X+4}, v6, v{X+3}
v_rcp_f32 v{X+4}, v{X+4}
v_mul_f32 v{X+5}, v{vD0}, v{X+3}
v_mul_f32 v{X+6}, v{vD1}, v{X+3}
v_cndmask_b32 v{X}, v{X}, v{X+5}, s[76:77]
v_cndmask_b32 v{X+1}, v{X+1}, v{X+6}, s[76:77]
v_mul_f32 v{X}, v{X}, v{X+4}
v_mul_f32 v{X+1}, v{X+1}, v{X+4}
v_cvt_pk_bf16_f32 v{X}, v{X}, v{X+1}
v_min_u32 v{X}, -2, v{X}
buffer_store_dword v{X}, v{vLS}, {WS}, s65 offen sc1
v_mov_b32 v{X+2}, -1
v_mov_b32 v{X+3}, -1
s_add_u32 s56, s64, 65536
s_add_u32 s57, s65, 32768
s_cmp_lt_u32 {sSEG}, 62
s_cbranch_scc0 L_s_nolate
buffer_store_dwordx2 v[{X+2}:{X+3}], v{vES}, {WS}, s56 offen sc1
buffer_store_dword v{X+2}, v{vLS}, {WS}, s57 offen sc1
L_s_nolate:
''')
    G.tick(5)
    a(f'''buffer_store_dwordx4 v[{KH}:{KH+3}], v{vL16}, {WS}, s69 offen sc1
buffer_store_dwordx2 v[{KH+4}:{KH+5}], v{vKH}, {WS}, s70 offen sc1
s_add_u32 s69, s69, 196608
s_add_u32 s70, s70, 196608
s_add_u32 s64, s64, 32768
s_add_u32 s65, s65, 16384
s_add_u32 s71, s71, 32768
s_add_u32 s73, {sSEG}, 2
s_min_u32 s73, s73, {NSEG}
''')
    G.flush(8, vt=(4, 7))
    G.stamp(sSEG, vt=(4, 7))
    a(f's_add_u32 {sSEG}, {sSEG}, 1')
    G.wait_flags(f'v{vFL}', 'v4', 's73')
    G.set_flag('s66', sSEG, 'v4', f'v{vZ}')
    ktload()
    a(f's_cmp_lt_u32 {sSEG}, {NSEG}\ns_cbranch_scc1 L_s_loop')
    G.stamp(3)
    a('s_branch L_end')

def roleV(G):
    a = G.a
    a('L_roleV:')
    if G.disabled('V'): return
    vZ, vIDX, vG4, vG2, vL4, vL2, vA, vRES, vTW, vTW3, vTR, vL16, vZS, vT = 8, 9, 10, 11, 12, 13, 14, 15, 16, 17, 18, 19, 20, 7
    AB = 24
    AC = 36
    X = 52
    SB = 56
    W0 = 80
    lds_set = [(1, 2), (3, 2), (4, 2), (6, 2), (7, 2), (9, 2)]
    RESW = len(lds_set) * 2048
    RES, MST, TT, STG = 0, 49152, 59392, 49152
    loc = {}; nr = 0
    wo = {}
    for t3 in range(3):
        for c in range(10): wo[t3, c] = W0 + 8 * nr; nr += 1
    for t in range(10):
        for tl in range(3):
            if (t, tl) in lds_set: loc[t, tl] = ('l', lds_set.index((t, tl)) * 2048)
            else: loc[t, tl] = ('r', W0 + 8 * nr); nr += 1
    assert W0 + 8 * nr <= 512
    a(f'''
s_sub_u32 {sIDX}, {sROLE}, {R_V}
v_mov_b32 v{vZ}, 0
v_lshlrev_b32 v{vL16}, 4, v1
v_and_b32 v4, 31, v1
v_lshlrev_b32 v4, 3, v4
v_lshrrev_b32 v5, 5, v1
v_lshl_add_u32 v{vZS}, v5, 13, v4
s_mul_i32 s64, {sW}, 81920
s_lshl_b32 s56, {sIDX}, 8
s_add_u32 s64, s64, s56
s_add_u32 s64, s64, {ZB}
v_mov_b32 v4, -1
v_mov_b32 v5, -1
''')
    def arm(extra):
        for p in range(5):
            a(f's_add_u32 s56, s64, {extra + p * 16384}\nbuffer_store_dwordx2 v[4:5], v{vZS}, {WS}, s56 offen sc1')
    arm(0); arm(327680)
    G.arrive()
    G.srd(12, P_WO, 32 * 245760); G.srd(16, P_WV, 640 * 12288)
    a(f's_mul_i32 s57, {sW}, 320\ns_mul_i32 s72, {sIDX}, 245760\ns_mul_i32 s70, {sW}, 40960')
    G.slab_voff(24, 5, 20, 1280, 205, 12, 's57')
    a('''v_and_b32 v4, 1, v2
v_lshlrev_b32 v4, 5, v4
v_lshrrev_b32 v5, 3, v3
v_lshl_add_u32 v4, v5, 4, v4
v_lshrrev_b32 v5, 1, v2
v_lshl_add_u32 v4, v5, 2, v4
v_bfe_u32 v5, v3, 2, 1
v_add_u32 v4, v4, v5
v_mul_u32_u24 v4, 320, v4
v_and_b32 v5, 3, v3
v_lshl_add_u32 v4, v5, 3, v4
v_add_u32 v29, s70, v4''')
    def issue(b):
        for hh in range(4):
            for i in range(5): G.dma(f'v{24+i}', SA, 's72', 's70', (b % 2) * 20480 + hh * 5120 + i * 1024)
            a('s_add_u32 s72, s72, 20480')
    def consume(b):
        for c in range(10):
            for q2 in range(4):
                a(f'ds_read_b64_tr_b16 {vr(wo[b, c] + 2 * q2, 2)}, v29 offset:{(b % 2) * 20480 + (8 * (q2 >> 1) + 2 * (q2 & 1)) * 320 + c * 32}')
    G.stream_load(3, 20, 2, issue, consume)
    a('s_barrier')
    a(f's_mul_i32 s70, {sW}, 27648\ns_add_u32 s70, s70, {STG}\ns_mul_i32 s71, {sW}, {RESW}\nv_add_u32 v{vRES}, s71, v{vL16}')
    head_slab_setup(G, 24, 27, 's70')
    head_slab_load(G, 's[16:19]', 24, 27, 's70', 9, lambda t, tl: loc[t, tl], vRES, 36)
    G.await_all()
    a('s_barrier')
    idx_setup(G, vIDX)
    mpoll_setup(G, vG4, vG2, vL4, vL2, sSELV, MST)
    a(f'''
v_add_u32 v{vA}, {MST}, v{vL16}
v_lshlrev_b32 v4, 5, v3
v_lshl_add_u32 v4, v2, 3, v4
s_lshr_b32 s56, {sW}, 1
s_lshl_b32 s57, s56, 1
s_add_u32 s57, s57, {sW}
s_lshl_b32 s57, s57, 9
s_add_u32 s57, s57, {TT}
v_add_u32 v{vTW}, s57, v4
s_add_u32 s56, s56, 2
s_lshl_b32 s56, s56, 9
s_add_u32 s56, s56, {TT}
v_add_u32 v{vTW3}, s56, v4
v_lshrrev_b32 v4, 2, v3
v_lshl_add_u32 v4, v2, 2, v4
v_lshlrev_b32 v4, 5, v4
v_and_b32 v5, 3, v3
v_lshl_add_u32 v4, v5, 3, v4
v_add_u32 v{vTR}, {TT}, v4
s_and_b32 s56, {sW}, 1
s_cmp_eq_u32 s56, 0
s_cselect_b32 s76, -1, 0
s_cselect_b32 s77, 0, -1
s_mov_b32 s71, {PG_MV}
s_mov_b32 {sSEG}, 0
''')
    nl = len(lds_set)
    def wread(i):
        b = SB + (i % 3) * 8
        a(f'ds_read_b128 {vr(b, 4)}, v{vRES} offset:{i * 2048}\nds_read_b128 {vr(b + 4, 4)}, v{vRES} offset:{i * 2048 + 1024}')
    a('L_v_loop:')
    G.tick(0)
    for i in range(3): wread(i)
    def mload(b):
        a(f'''buffer_load_dwordx4 v[{b}:{b+3}], v{vG4}, {WS}, s71 offen sc1
buffer_load_dwordx4 v[{b+4}:{b+7}], v{vG4}, {WS}, s71 offen offset:1024 sc1
buffer_load_dwordx2 v[{b+8}:{b+9}], v{vG2}, {WS}, s71 offen sc1''')
    def mwrite(b):
        a(f'''ds_write_b128 v{vL4}, v[{b}:{b+3}]
ds_write_b128 v{vL4}, v[{b+4}:{b+7}] offset:1024
ds_write_b64 v{vL2}, v[{b+8}:{b+9}]''')
    poll(G, mload, mwrite, 3, 10, AC, None, f'v{vT}', pipe=False)
    a('s_waitcnt lgkmcnt(0)')
    for i in range(12): a(f'v_mov_b32 v{AC + i}, 0')
    a('s_barrier')
    G.tick(1)
    def ard(t): a(f'ds_read_b128 {vr(AB + (t % 3) * 4, 4)}, v{vA} offset:{t * 1024}')
    ard(0); ard(1)
    for t in range(10):
        if t + 2 < 10:
            ard(t + 2); a('s_waitcnt lgkmcnt(2)')
        else:
            a(f's_waitcnt lgkmcnt({1 if t == 8 else 0})')
        used = None
        for tl in range(3):
            kind, d = loc[t, tl]
            if kind == 'l':
                i = d // 2048; d = SB + (i % 3) * 8; used = i
            a(f'{SMF} {vr(AC + 4 * tl, 4)}, {vr(AB + (t % 3) * 4, 4)}, {vr(d, 8)}, v{vIDX}')
        if used is not None and used + 3 < nl: wread(used + 3)
    a('s_nop 7')
    for r in range(4): a(f'v_mov_b32 v{AC + 12 + r}, v{AC + 8 + r}')
    for r in range(4): a(f'v_permlane32_swap_b32 v{AC + r}, v{AC + 4 + r}')
    for r in range(4): a(f'v_permlane32_swap_b32 v{AC + 8 + r}, v{AC + 12 + r}')
    for r in range(4): a(f'v_add_f32 v{AC + r}, v{AC + r}, v{AC + 4 + r}\nv_add_f32 v{AC + 8 + r}, v{AC + 8 + r}, v{AC + 12 + r}')
    a(f'''v_cvt_pk_bf16_f32 v{X}, v{AC}, v{AC+1}
v_cvt_pk_bf16_f32 v{X+1}, v{AC+2}, v{AC+3}
v_cvt_pk_bf16_f32 v{X+2}, v{AC+8}, v{AC+9}
v_cvt_pk_bf16_f32 v{X+3}, v{AC+10}, v{AC+11}
ds_write_b64 v{vTW}, v[{X}:{X+1}]
s_mov_b64 exec, s[76:77]
ds_write_b64 v{vTW3}, v[{X+2}:{X+3}]
s_mov_b64 exec, -1
''')
    for i in range(16): a(f'v_mov_b32 v{AC + i}, 0')
    a('s_waitcnt lgkmcnt(0)\ns_barrier')
    G.tick(2)
    for p in range(6): a(f'ds_read_b64_tr_b16 v[{AB + 2*p}:{AB + 2*p + 1}], v{vTR} offset:{512 * p}')
    a('s_waitcnt lgkmcnt(0)')
    def zfin(p):
        A = AC + (p & 1) * 8; d = X + (p & 1) * 2
        for r in range(4): a(f'v_permlane32_swap_b32 v{A + r}, v{A + 4 + r}')
        for r in range(4): a(f'v_add_f32 v{A + r}, v{A + r}, v{A + 4 + r}')
        a(f'v_cvt_pk_bf16_f32 v{d}, v{A}, v{A+1}\nv_cvt_pk_bf16_f32 v{d+1}, v{A+2}, v{A+3}\nv_min_u32 v{d}, -2, v{d}\nv_min_u32 v{d+1}, -2, v{d+1}')
        a(f's_add_u32 s56, s64, {p * 16384}\nbuffer_store_dwordx2 v[{d}:{d+1}], v{vZS}, {WS}, s56 offen sc1')
        if p + 2 < 5:
            for i in range(8): a(f'v_mov_b32 v{A + i}, 0')
            a('s_nop 1')
    for p in range(6):
        if p < 5:
            A = AC + (p & 1) * 8
            for t3 in range(3):
                for q in range(2):
                    a(f'{SMF} {vr(A + 4 * q, 4)}, {vr(AB + 4 * t3, 4)}, {vr(wo[t3, 2 * p + q], 8)}, v{vIDX}')
            a('s_nop 1')
        else:
            a('s_nop 7')
        if p > 0: zfin(p - 1)
    G.tick(3)
    a('v_mov_b32 v4, -1\nv_mov_b32 v5, -1')
    arm(2 * 327680)
    G.flush(4)
    G.stamp(sSEG)
    a(f'''s_add_u32 s64, s64, 327680
s_add_u32 s71, s71, 32768
s_add_u32 {sSEG}, {sSEG}, 1
s_cmp_lt_u32 {sSEG}, {NSEG}
s_cbranch_scc1 L_v_loop''')
    G.stamp(3)
    a('s_branch L_end')

def roleC(G):
    a = G.a
    a('L_roleC:')
    if G.disabled('C'): return
    vIDX, vL16, vL8, vL4, vE, vFL, vRW, vRR, vT = 9, 10, 11, 12, 13, 14, 15, 16, 7
    EB = 20
    VOB = 36
    BZ = 68
    D1 = 84
    LA, LB = 116, 124
    AC = 132
    X = 136
    a(f'''
s_sub_u32 {sIDX}, {sROLE}, {R_C}
v_lshlrev_b32 v{vL16}, 4, v1
v_lshlrev_b32 v{vL8}, 3, v1
v_lshlrev_b32 v{vL4}, 2, v1
s_lshl_b32 s64, {sIDX}, 8
s_cmp_lt_u32 {sIDX}, 32
s_cselect_b32 s56, 0, 8192
s_add_u32 s64, s64, s56
s_add_u32 s56, {sSELV}, {PG_MV}
s_add_u32 s57, {sSELM}, {PG_M}
s_cmp_eq_u32 {sW}, 0
s_cselect_b32 s56, s57, s56
s_add_u32 s64, s64, s56
''')
    G.srd(12, P_MEM, 10240)
    a(f'''
s_cmp_lt_u32 {sW}, 2
s_cbranch_scc0 L_c_noinit
v_bfe_u32 v4, v1, 2, 3
v_mul_u32_u24 v4, 1280, v4
v_and_b32 v5, 3, v1
v_lshl_add_u32 v4, v5, 3, v4
v_lshrrev_b32 v5, 5, v1
v_lshl_add_u32 v4, v5, 2, v4
s_lshl_b32 s56, {sIDX}, 5
buffer_load_dword v5, v4, {SA}, s56 offen
v_mov_b32 v6, -1
s_add_u32 s56, s64, 32768
s_add_u32 s57, s64, 65536
buffer_store_dword v6, v{vL4}, {WS}, s56 offen sc1
buffer_store_dword v6, v{vL4}, {WS}, s57 offen sc1
s_waitcnt vmcnt(2)
v_min_u32 v5, -2, v5
buffer_store_dword v5, v{vL4}, {WS}, s64 offen sc1
L_c_noinit:
''')
    G.arrive()
    G.await_all()
    idx_setup(G, vIDX)
    a(f'''
v_lshrrev_b32 v4, 3, v3
v_lshlrev_b32 v4, 9, v4
v_lshl_add_u32 v4, v2, 7, v4
v_and_b32 v5, 7, v3
v_lshl_add_u32 v{vE}, v5, 4, v4
s_lshr_b32 s56, {sW}, 1
s_lshl_b32 s56, s56, 14
s_and_b32 s57, {sW}, 1
s_lshl_b32 s57, s57, 12
s_add_u32 s65, s56, s57
s_add_u32 s65, s65, {PG_E}
s_add_u32 s65, s65, {sSELE}
s_lshl_b32 s56, {sW}, 11
s_add_u32 s66, s56, {PG_L}
s_add_u32 s66, s66, {sSELL}
s_lshl_b32 s67, {sIDX}, 13
s_add_u32 s67, s67, s56
s_add_u32 s67, s67, {ZB}
s_lshl_b32 s68, {sIDX}, 15
s_lshl_b32 s56, {sW}, 13
s_add_u32 s68, s68, s56
s_add_u32 s68, s68, {VO}
s_mul_i32 s56, {sIDX}, 205
s_lshr_b32 s56, s56, 11
s_lshl_b32 s56, s56, 5
s_lshl_b32 s57, {sW}, 3
s_add_u32 s56, s56, s57
s_add_u32 s56, s56, {F_OT + FL // 4}
v_and_b32 v4, 7, v1
v_add_lshl_u32 v{vFL}, v4, s56, 2
v_and_b32 v4, 1, v2
v_lshlrev_b32 v4, 2, v4
v_lshrrev_b32 v5, 1, v2
v_lshl_add_u32 v4, v5, 1, v4
v_lshl_add_u32 v4, v4, 4, v3
s_lshl_b32 s56, {sW}, 2
v_lshl_add_u32 v{vRW}, v4, 4, s56
v_bfe_u32 v4, v1, 2, 3
v_lshlrev_b32 v4, 4, v4
v_and_b32 v5, 3, v1
v_lshl_add_u32 v4, v5, 2, v4
v_lshrrev_b32 v5, 5, v1
v_lshl_add_u32 v4, v5, 1, v4
v_lshlrev_b32 v{vRR}, 4, v4
s_mov_b32 {sSEG}, 0
s_mov_b32 s73, 1
''')
    for c in range(40): assert (c * 205) >> 11 == c // 10
    def voload():
        a('s_add_u32 s56, s68, 4096')
        for i in range(8):
            a(f'buffer_load_dwordx4 v[{VOB + 4*i}:{VOB + 4*i + 3}], v{vL16}, {WS}, {"s68" if i < 4 else "s56"} offen offset:{(i & 3) * 1024} sc1')
        a('s_add_u32 s68, s68, 1310720')
    G.wait_flags(f'v{vFL}', 'v4', 's73')
    voload()
    a('L_c_loop:')
    G.tick(0)
    def eload(b):
        for p in range(4): a(f'buffer_load_dwordx4 v[{b + 4*p}:{b + 4*p + 3}], v{vE}, {WS}, s65 offen offset:{1024 * p} sc1')
    poll(G, eload, lambda b: None, 4, 16, EB, None, f'v{vT}', pipe=False)
    G.tick(1)
    zregs = [BZ + 4 * p + i for p in range(4) for i in range(2)]
    def zload(_):
        for p in range(4): a(f'buffer_load_dwordx2 v[{BZ + 4*p}:{BZ + 4*p + 1}], v{vL8}, {WS}, s67 offen offset:{512 * p} sc1')
    zload(0)
    for p in range(4):
        for q in range(2):
            a(f'{MF32} {vr(D1 + (2*p + q) * 4, 4)}, v[{EB + 4*p}:{EB + 4*p + 3}], v[{VOB + (2*p+q)*4}:{VOB + (2*p+q)*4 + 3}], 0')
    a('s_nop 7')
    for q in range(2):
        a('s_mov_b32 exec_hi, 0' if q == 0 else 's_mov_b32 exec_lo, 0\ns_mov_b32 exec_hi, -1')
        for p in range(4):
            s = D1 + (2 * p + q) * 4
            a(f'v_cvt_pk_bf16_f32 v{BZ + 4*p + 2}, v{s}, v{s+1}\nv_cvt_pk_bf16_f32 v{BZ + 4*p + 3}, v{s+2}, v{s+3}')
    a('s_mov_b64 exec, -1\ns_waitcnt vmcnt(0)')
    G.check(zregs, f'v{vT}')
    a('s_cbranch_vccz L_c_zok')
    poll(G, zload, lambda b: None, 4, 8, zregs, None, f'v{vT}', pipe=False)
    a('L_c_zok:')
    G.tick(2)
    def lload(b):
        a(f'buffer_load_dwordx4 v[{b}:{b+3}], v{vL16}, {WS}, s66 offen sc1\nbuffer_load_dwordx4 v[{b+4}:{b+7}], v{vL16}, {WS}, s66 offen offset:1024 sc1')
    for i in range(4): a(f'v_mov_b32 v{AC + i}, 0')
    a('s_mov_b32 s74, 0')
    poll(G, lload, lambda b: a(f's_mov_b32 s74, {0 if b == LA else 1}'), 2, 8, LA, LB, f'v{vT}')
    G.tick(3)
    a('s_cmp_eq_u32 s74, 0\ns_cbranch_scc0 L_c_useB')
    for b, nm in ((LA, 'A'), (LB, 'B')):
        if nm == 'B': a('L_c_useB:')
        a(f'{SMF} v[{AC}:{AC+3}], v[{b}:{b+3}], v[{BZ}:{BZ+7}], v{vIDX}\n{SMF} v[{AC}:{AC+3}], v[{b+4}:{b+7}], v[{BZ+8}:{BZ+15}], v{vIDX}')
        if nm == 'A': a('s_branch L_c_red')
    a(f'''L_c_red:
s_nop 7
v_permlane32_swap_b32 v{AC}, v{AC+2}
v_permlane32_swap_b32 v{AC+1}, v{AC+3}
v_add_f32 v{AC}, v{AC}, v{AC+2}
v_add_f32 v{AC+1}, v{AC+1}, v{AC+3}
ds_write2st64_b32 v{vRW}, v{AC}, v{AC+1} offset0:0 offset1:1
s_add_u32 s64, s64, 32768
s_waitcnt lgkmcnt(0)
s_barrier
s_cmp_lt_u32 {sW}, 2
s_cbranch_scc0 L_c_nopub
ds_read_b128 v[{X}:{X+3}], v{vRR}
ds_read_b128 v[{X+4}:{X+7}], v{vRR} offset:16
s_waitcnt lgkmcnt(0)
v_add_f32 v{X}, v{X}, v{X+1}
v_add_f32 v{X+2}, v{X+2}, v{X+3}
v_add_f32 v{X+4}, v{X+4}, v{X+5}
v_add_f32 v{X+6}, v{X+6}, v{X+7}
v_add_f32 v{X}, v{X}, v{X+2}
v_add_f32 v{X+4}, v{X+4}, v{X+6}
v_cvt_pk_bf16_f32 v{X}, v{X}, v{X+4}
v_min_u32 v{X}, -2, v{X}
buffer_store_dword v{X}, v{vL4}, {WS}, s64 offen sc1
v_mov_b32 v{X+1}, -1
s_add_u32 s56, s64, 65536
s_cmp_lt_u32 {sSEG}, 61
s_cbranch_scc0 L_c_nopub
buffer_store_dword v{X+1}, v{vL4}, {WS}, s56 offen sc1
L_c_nopub:
''')
    G.tick(4)
    G.flush(5, vt=(4, 5))
    G.stamp(sSEG, vt=(4, 5))
    a(f'''s_add_u32 s65, s65, 32768
s_add_u32 s66, s66, 16384
s_add_u32 s67, s67, 327680
s_add_u32 s73, {sSEG}, 2
s_add_u32 {sSEG}, {sSEG}, 1
''')
    G.wait_flags(f'v{vFL}', 'v4', 's73')
    voload()
    a(f's_cmp_lt_u32 {sSEG}, {NSEG - 1}\ns_cbranch_scc1 L_c_loop')
    G.stamp(3)
    a('s_branch L_end')


def roleT(G):
    a = G.a
    a('L_roleT:')
    if G.disabled('T'): return
    vZ, vL16, vFQ, vFS, vPM, vNI = 8, 9, 10, 11, 12, 13
    QB, KB, MB_ = 64, 112, 160
    D00, D01, D11, DM0, DM1 = 16, 20, 24, 28, 32
    X = 36
    a(f"""
s_sub_u32 {sIDX}, {sROLE}, {R_T}
s_lshl_b32 s64, {sIDX}, 2
s_add_u32 s64, s64, {sW}
s_lshl_b32 s66, s64, 2
s_add_u32 s66, s66, {FL + 4 * F_T}
v_mov_b32 v{vZ}, 0
""")
    G.set_flag('s66', 0, 'v4', f'v{vZ}')
    G.arrive()
    G.await_all()
    a(f"""
v_lshlrev_b32 v{vL16}, 4, v1
v_min_u32 v4, 5, v1
v_add_u32 v5, 93, v4
v_cmp_gt_u32 vcc, 3, v4
s_mul_i32 s56, s64, 3
s_add_u32 s56, s56, {F_XW + FL // 4}
v_cndmask_b32 v4, v5, v4, vcc
v_add_lshl_u32 v{vFQ}, v4, s56, 2
v_and_b32 v4, 3, v1
s_lshl_b32 s56, s64, 2
s_add_u32 s56, s56, {F_S + FL // 4}
v_add_lshl_u32 v{vFS}, v4, s56, 2
v_and_b32 v4, 31, v1
v_lshlrev_b32 v4, 3, v4
v_lshrrev_b32 v5, 5, v1
v_lshl_add_u32 v{vPM}, v5, 13, v4
v_mov_b32 v{vNI}, 0xff800000
s_mul_i32 s67, s64, 12288
s_add_u32 s67, s67, {QT}
s_mul_i32 s68, s64, 6144
s_add_u32 s68, s68, {KM}
s_lshl_b32 s69, s64, 11
s_add_u32 s69, s69, {PT}
s_lshl_b32 s70, s64, 8
s_add_u32 s70, s70, {PM}
s_mov_b32 s78, {f2u(C_SCALE):#x}
v_lshlrev_b32 v4, 2, v2
""")
    for r in range(4):
        a(f'v_add_u32 v5, {r}, v4\nv_cmp_le_u32 s[{40 + 2*r}:{41 + 2*r}], v5, v3')
    a(f's_mov_b32 s38, -1\ns_mov_b32 s39, 0\ns_mov_b32 {sSEG}, 0\nL_t_loop:\ns_add_u32 s73, {sSEG}, 1')
    G.tick(0)
    G.wait_flags(f'v{vFQ}', 'v4', 's73')
    for base, extra in ((KB, QKV_SZ), (QB, 0)):
        for j in range(3):
            a(f's_add_u32 s56, s67, {extra + j * 4096}')
            for i in range(4):
                a(f'buffer_load_dwordx4 {vr(base + (j * 4 + i) * 4, 4)}, v{vL16}, {WS}, s56 offen offset:{i * 1024} sc1')
    a('s_waitcnt vmcnt(0)')
    G.tick(1)
    fr = lambda B, eb, t: vr(B + (eb * 2 + t) * 4, 4)
    for eb in range(6):
        for D, jt, tt in ((D00, 0, 0), (D01, 0, 1), (D11, 1, 1)):
            a(f'{MF32} {vr(D, 4)}, {fr(KB, eb, jt)}, {fr(QB, eb, tt)}, {"0" if eb == 0 else vr(D, 4)}')
    G.wait_flags(f'v{vFS}', 'v4', 's73', sleep=1)
    G.tick(2)
    a('s_add_u32 s56, s68, 4096')
    for i in range(6):
        a(f'buffer_load_dwordx4 {vr(MB_ + 4 * i, 4)}, v{vL16}, {WS}, {"s68" if i < 4 else "s56"} offen offset:{(i & 3) * 1024} sc1')
    for r in range(4):
        a(f'v_cndmask_b32 v{D00 + r}, v{vNI}, v{D00 + r}, s[{40 + 2*r}:{41 + 2*r}]\nv_cndmask_b32 v{D11 + r}, v{vNI}, v{D11 + r}, s[{40 + 2*r}:{41 + 2*r}]')
    M0, M1 = X, X + 1
    a(f"""v_max3_f32 v{M0}, v{D00}, v{D00+1}, v{D00+2}
v_max_f32 v{M0}, v{M0}, v{D00+3}
v_max3_f32 v{M1}, v{D01}, v{D01+1}, v{D01+2}
v_max3_f32 v{M1}, v{M1}, v{D01+3}, v{D11}
v_max3_f32 v{M1}, v{M1}, v{D11+1}, v{D11+2}
v_max_f32 v{M1}, v{M1}, v{D11+3}
""")
    for eb in range(6):
        a(f's_waitcnt vmcnt({5 - eb})')
        for D, tt in ((DM0, 0), (DM1, 1)):
            a(f'{MF32} {vr(D, 4)}, {vr(MB_ + 4 * eb, 4)}, {fr(QB, eb, tt)}, {"0" if eb == 0 else vr(D, 4)}')
    a('s_nop 7')
    for r in range(4): a(f'v_permlane32_swap_b32 v{DM0 + r}, v{DM1 + r}')
    for r in range(4): a(f'v_add_f32 v{DM0 + r}, v{DM0 + r}, v{DM1 + r}')
    a(f"""v_max3_f32 v{X+2}, v{DM0}, v{DM0+1}, v{DM0+2}
v_max_f32 v{X+2}, v{X+2}, v{DM0+3}
v_cndmask_b32 v{X+3}, v{vNI}, v{X+2}, s[38:39]
v_cndmask_b32 v{X+2}, v{X+2}, v{vNI}, s[38:39]
v_max_f32 v{M0}, v{M0}, v{X+3}
v_max_f32 v{M1}, v{M1}, v{X+2}
""")
    def allred(op, A, B):
        for sw in ('v_permlane16_swap_b32', 'v_permlane32_swap_b32'):
            a(f'v_mov_b32 v{X+2}, v{A}\nv_mov_b32 v{X+3}, v{B}\ns_nop 1\n{sw} v{A}, v{X+2}\n{sw} v{B}, v{X+3}\n{op} v{A}, v{A}, v{X+2}\n{op} v{B}, v{B}, v{X+3}')
    allred('v_max_f32', M0, M1)
    a(f'v_mul_f32 v{M0}, s78, v{M0}\nv_mul_f32 v{M1}, s78, v{M1}\nv_cndmask_b32 v{X+4}, v{M1}, v{M0}, s[38:39]')
    for D, m in ((D00, M0), (D01, M1), (D11, M1), (DM0, X + 4)):
        for r in range(4): a(f'v_fma_f32 v{D + r}, v{D + r}, s78, -v{m}')
        for r in range(4): a(f'v_exp_f32 v{D + r}, v{D + r}')
    L0, L1 = X + 5, X + 6
    a(f"""s_nop 0
v_add_f32 v{X+7}, v{DM0}, v{DM0+1}
v_add_f32 v{X+8}, v{DM0+2}, v{DM0+3}
v_add_f32 v{X+7}, v{X+7}, v{X+8}
v_cndmask_b32 v{L0}, 0, v{X+7}, s[38:39]
v_cndmask_b32 v{L1}, v{X+7}, 0, s[38:39]
""")
    for r in range(4): a(f'v_add_f32 v{L0}, v{L0}, v{D00 + r}\nv_add_f32 v{L1}, v{L1}, v{D01 + r}\nv_add_f32 v{L1}, v{L1}, v{D11 + r}')
    allred('v_add_f32', L0, L1)
    a(f'v_rcp_f32 v{L0}, v{L0}\nv_rcp_f32 v{L1}, v{L1}\ns_nop 0\nv_cndmask_b32 v{X+4}, v{L1}, v{L0}, s[38:39]')
    for D, m in ((D00, L0), (D01, L1), (D11, L1), (DM0, X + 4)):
        for r in range(4): a(f'v_mul_f32 v{D + r}, v{D + r}, v{m}')
    O0, O1, OM = 48, 52, 56
    a(f"""v_cvt_pk_bf16_f32 v{O0}, v{D00}, v{D00+1}
v_cvt_pk_bf16_f32 v{O0+1}, v{D00+2}, v{D00+3}
v_mov_b32 v{O0+2}, 0
v_mov_b32 v{O0+3}, 0
v_cvt_pk_bf16_f32 v{O1}, v{D01}, v{D01+1}
v_cvt_pk_bf16_f32 v{O1+1}, v{D01+2}, v{D01+3}
v_cvt_pk_bf16_f32 v{O1+2}, v{D11}, v{D11+1}
v_cvt_pk_bf16_f32 v{O1+3}, v{D11+2}, v{D11+3}
v_cvt_pk_bf16_f32 v{OM}, v{DM0}, v{DM0+1}
v_cvt_pk_bf16_f32 v{OM+1}, v{DM0+2}, v{DM0+3}
buffer_store_dwordx4 v[{O0}:{O0+3}], v{vL16}, {WS}, s69 offen sc1
buffer_store_dwordx4 v[{O1}:{O1+3}], v{vL16}, {WS}, s69 offen offset:1024 sc1
buffer_store_dwordx2 v[{OM}:{OM+1}], v{vPM}, {WS}, s70 offen sc1
s_add_u32 s67, s67, 393216
s_add_u32 s68, s68, 196608
s_add_u32 s69, s69, 65536
s_add_u32 s70, s70, 16384
""")
    G.tick(3)
    G.flush(4); G.stamp(sSEG)
    a(f's_add_u32 {sSEG}, {sSEG}, 1\ns_waitcnt vmcnt(0)')
    G.set_flag('s66', sSEG, 'v4', f'v{vZ}')
    a(f's_cmp_lt_u32 {sSEG}, {NSEG}\ns_cbranch_scc1 L_t_loop')
    G.stamp(3)
    a('s_branch L_end')

def roleO(G):
    a = G.a
    a('L_roleO:')
    if G.disabled('O'): return
    vL16, vL8, vF1, vF2, vRW, vRR, vOUT, vT = 8, 9, 10, 11, 12, 13, 14, 7
    AC = 16
    XF = 32
    X = 36
    YB, ZR, PB, PMB = 64, 128, 144, 208
    G.arrive()
    G.srd(12, P_X, 2048 * 1280); G.srd(20, P_OUT, 2048 * 1280)
    G.await_all()
    a(f"""
s_sub_u32 {sIDX}, {sROLE}, {R_O}
v_lshlrev_b32 v{vL16}, 4, v1
v_lshlrev_b32 v{vL8}, 3, v1
s_mul_i32 s56, {sIDX}, 205
s_lshr_b32 s56, s56, 10
s_lshl_b32 s56, s56, 5
s_lshl_b32 s57, {sW}, 3
s_add_u32 s56, s56, s57
s_add_u32 s56, s56, {F_OT + FL // 4}
v_and_b32 v4, 7, v1
v_add_lshl_u32 v{vF1}, v4, s56, 2
s_add_u32 s56, s57, {F_T + FL // 4}
v_add_lshl_u32 v{vF2}, v4, s56, 2
s_lshl_b32 s58, {sIDX}, 2
s_add_u32 s58, s58, {sW}
s_mul_i32 s56, s58, 205
s_lshr_b32 s56, s56, 11
s_mul_i32 s57, s56, 10
s_sub_u32 s57, s58, s57
s_and_b32 s57, s57, 3
s_lshl_b32 s56, s56, 2
s_add_u32 s56, s56, s57
s_add_u32 s56, s56, {F_FD + FL // 4}
s_lshl_b32 s56, s56, 2
v_mov_b32 v4, s56
v_cmp_gt_u32 vcc, 8, v1
s_nop 1
v_cndmask_b32 v{vF1}, v4, v{vF1}, vcc
s_lshl_b32 s64, s58, 9
s_add_u32 s64, s64, {FB}
s_lshl_b32 s65, {sIDX}, 16
s_lshl_b32 s56, {sW}, 13
s_add_u32 s65, s65, s56
s_add_u32 s65, s65, {VO}
s_lshl_b32 s66, {sIDX}, 14
s_lshl_b32 s56, {sW}, 11
s_add_u32 s66, s66, s56
s_add_u32 s66, s66, {ZB}
s_lshl_b32 s67, {sW}, 14
s_add_u32 s67, s67, {PT}
s_add_u32 s68, s56, {PM}
s_lshl_b32 s56, {sW}, 12
v_add_u32 v{vRW}, s56, v{vL16}
s_lshl_b32 s56, {sW}, 10
v_add_u32 v{vRR}, s56, v{vL16}
v_mul_u32_u24 v4, 1280, v3
v_lshl_add_u32 v{vOUT}, v2, 3, v4
s_and_b32 s56, {sW}, 1
s_mul_i32 s69, s56, 20480
s_lshr_b32 s56, {sW}, 1
s_lshl_b32 s56, s56, 5
s_add_u32 s69, s69, s56
s_lshl_b32 s56, {sIDX}, 6
s_add_u32 s69, s69, s56
s_mov_b32 s74, 0
s_mov_b32 {sSEG}, 0
L_o_loop:
s_add_u32 s73, {sSEG}, 1
""")
    for o in range(20): assert (o * 205) >> 10 == o // 5
    for o in range(80): assert (o * 205) >> 11 == o // 10
    G.tick(0)
    G.wait_flags(f'v{vF1}', 'v4', 's73')
    for ct in range(2):
        for hh in range(2):
            a(f's_add_u32 s56, s65, {ct * 32768 + hh * 4096}')
            for i in range(4):
                a(f'buffer_load_dwordx4 {vr(YB + (ct * 8 + hh * 4 + i) * 4, 4)}, v{vL16}, {WS}, s56 offen offset:{i * 1024} sc1')
    a(f'buffer_load_dwordx2 v[{XF}:{XF+1}], v{vOUT}, {SA}, s69 offen\nbuffer_load_dwordx2 v[{XF+2}:{XF+3}], v{vL8}, {WS}, s64 offen sc1')
    G.wait_flags(f'v{vF2}', 'v4', 's73', sleep=1)
    G.tick(1)
    for j in range(4):
        a(f's_add_u32 s56, s67, {j * 4096}')
        for i in range(4):
            a(f'buffer_load_dwordx4 {vr(PB + (j * 4 + i) * 4, 4)}, v{vL16}, {WS}, s56 offen offset:{i * 1024} sc1')
    for tt in range(2):
        a(f's_add_u32 s56, s68, {tt * 8192}')
        for p in range(4):
            a(f'buffer_load_dwordx2 {vr(PMB + tt * 8 + 2 * p, 2)}, v{vL8}, {WS}, s56 offen offset:{512 * p} sc1')
    def zload(_):
        for ct in range(2):
            a(f's_add_u32 s56, s66, {ct * 8192}')
            for p in range(4):
                a(f'buffer_load_dwordx2 {vr(ZR + ct * 8 + 2 * p, 2)}, v{vL8}, {WS}, s56 offen offset:{512 * p} sc1')
    poll(G, zload, lambda b: None, 8, 16, ZR, None, f'v{vT}', pipe=False)
    G.tick(2)
    for k in range(10):
        for ct in range(2):
            for tt in range(2):
                d = vr(AC + (ct * 2 + tt) * 4, 4)
                if k < 8: A, B = YB + (ct * 8 + k) * 4, PB + (k * 2 + tt) * 4
                else: A, B = ZR + ct * 8 + (k - 8) * 4, PMB + tt * 8 + (k - 8) * 4
                a(f'{MF32} {d}, {vr(A, 4)}, {vr(B, 4)}, {"0" if k == 0 else d}')
    a(f's_nop 7\nv_add_u32 v4, s74, v{vRW}\nv_add_u32 v5, s74, v{vRR}')
    for t in range(4): a(f'ds_write_b128 v4, {vr(AC + 4 * t, 4)} offset:{1024 * t}')
    a('s_waitcnt lgkmcnt(0)\ns_barrier')
    for w in range(4): a(f'ds_read_b128 {vr(AC + 4 * w, 4)}, v5 offset:{4096 * w}')
    a(f"""v_lshlrev_b32 v{X}, 16, v{XF}
v_and_b32 v{X+1}, 0xffff0000, v{XF}
v_lshlrev_b32 v{X+2}, 16, v{XF+1}
v_and_b32 v{X+3}, 0xffff0000, v{XF+1}
v_lshlrev_b32 v{X+4}, 16, v{XF+2}
v_and_b32 v{X+5}, 0xffff0000, v{XF+2}
v_lshlrev_b32 v{X+6}, 16, v{XF+3}
v_and_b32 v{X+7}, 0xffff0000, v{XF+3}
s_waitcnt lgkmcnt(0)
""")
    for r in range(4):
        a(f'v_add_f32 v{AC+r}, v{AC+r}, v{AC+4+r}\nv_add_f32 v{AC+8+r}, v{AC+8+r}, v{AC+12+r}\nv_add_f32 v{X+r}, v{X+r}, v{X+4+r}\nv_add_f32 v{AC+r}, v{AC+r}, v{AC+8+r}\nv_add_f32 v{AC+r}, v{AC+r}, v{X+r}')
    a(f"""v_cvt_pk_bf16_f32 v{X}, v{AC}, v{AC+1}
v_cvt_pk_bf16_f32 v{X+1}, v{AC+2}, v{AC+3}
buffer_store_dwordx2 v[{X}:{X+1}], v{vOUT}, {SC}, s69 offen
s_xor_b32 s74, s74, 16384
s_add_u32 s64, s64, 40960
s_add_u32 s65, s65, 1310720
s_add_u32 s66, s66, 327680
s_add_u32 s67, s67, 65536
s_add_u32 s68, s68, 16384
s_add_u32 s69, s69, 40960
""")
    G.tick(3)
    G.flush(4, vt=(4, 5)); G.stamp(sSEG, vt=(4, 5))
    a(f's_add_u32 {sSEG}, {sSEG}, 1\ns_cmp_lt_u32 {sSEG}, {NSEG}\ns_cbranch_scc1 L_o_loop')
    G.stamp(3)
    a('s_branch L_end')

def emit(G):
    roleS(G); roleC(G); roleV(G); roleT(G); roleO(G)
```

```python
import sys, math
from asmlib import Asm, vr

NAME = 'parallel_sum__memory_aug_recurrent_mem_tr__glu_gated_geglu__prompt'
KN = NAME + '_kernel'
MB = 1 << 20
PG_M  = 0 * MB
PG_MV = 2 * MB
PG_E  = 4 * MB
PG_L  = 6 * MB
FL    = 8 * MB
PROF  = 212 * MB
XN    = 9 * MB
FB    = 12 * MB
HT    = 15 * MB
PT    = 21 * MB
PM    = 25 * MB
KM    = 26 * MB
ZB    = 38 * MB
QT    = 60 * MB
QKV_SZ = 64 * 393216
VO    = 132 * MB
WS_SIZE = 256 * MB
F_XW, F_OT, F_FD, F_T, F_S = 0, 384, 512, 576, 640
R_S, R_C, R_V, R_T, R_O, R_FD, R_OT, R_XW = 0, 32, 72, 104, 112, 132, 140, 172
NSEG = 64
SPIN = 400000
WS, DBG, SA, SB, SC = 's[4:7]', 's[8:11]', 's[12:15]', 's[16:19]', 's[20:23]'
P_X, P_MEM, P_WQ, P_WK, P_WV, P_WO, P_G, P_U, P_D, P_OUT = 24, 26, 28, 30, 32, 34, 40, 42, 44, 46
sROLE, sW, sIDX, sSEG = 's52', 's53', 's54', 's55'
sSELM, sSELV, sSELE, sSELL = 's60', 's61', 's62', 's63'
sSPIN = 's96'
C_SCALE = 192 ** -0.5 * math.log2(math.e)
import struct
def f2u(f): return struct.unpack('<I', struct.pack('<f', f))[0]

class Gen:
    def __init__(self, enable=('S','C','V','T','O','FD','OT','XW'), sel=0, place=1, prof=0):
        self.a = Asm(); self.enable = set(enable); self.sel = sel; self.place = place; self.prof = prof

    def srd(self, dst, ptr, size):
        a = self.a
        a(f's_mov_b32 s{dst}, s{ptr}\ns_mov_b32 s{dst+1}, s{ptr+1}\ns_mov_b32 s{dst+2}, {size}\ns_mov_b32 s{dst+3}, 0x20000')

    def prologue(self):
        a = self.a
        a(f'''
s_cmp_ge_u32 s2, 256
s_cbranch_scc1 L_end
s_load_dwordx16 s[24:39], s[0:1], 0
s_load_dwordx8 s[40:47], s[0:1], 64
s_load_dwordx4 s[48:51], s[0:1], 96
v_and_b32 v1, 63, v0
v_lshrrev_b32 v4, 6, v0
v_lshrrev_b32 v2, 4, v1
v_readfirstlane_b32 {sW}, v4
v_and_b32 v3, 15, v1
s_getreg_b32 s56, hwreg(HW_REG_XCC_ID)
s_waitcnt lgkmcnt(0)
''')
        self.srd(4, 50, WS_SIZE); self.srd(8, 48, 256)
        for s in (sSELM, sSELV, sSELE, sSELL):
            a(f's_mov_b32 {s}, {self.sel}')
        if self.place:
            a(f'''
s_bfe_u32 s56, s56, 0x10002
s_cmp_eq_u32 {sW}, 0
s_cbranch_scc0 L_noticket
s_mov_b64 exec, 1
v_mov_b32 v5, 1
s_lshl_b32 s57, s56, 2
v_mov_b32 v6, s57
buffer_atomic_add v5, v6, {DBG}, 0 offen sc0
s_waitcnt vmcnt(0)
v_mov_b32 v6, 0
ds_write_b32 v6, v5
s_waitcnt lgkmcnt(0)
s_mov_b64 exec, -1
L_noticket:
s_barrier
v_mov_b32 v6, 0
ds_read_b32 v5, v6
s_waitcnt lgkmcnt(0)
v_readfirstlane_b32 {sROLE}, v5
s_nop 3
s_and_b32 {sROLE}, {sROLE}, 255
s_sub_u32 s57, 255, {sROLE}
s_cmp_eq_u32 s56, 0
s_cselect_b32 {sROLE}, {sROLE}, s57
s_barrier
''')
        else:
            a(f's_mov_b32 {sROLE}, s2')
        a(f'''
''')
        self.stamp(0)
        a(f'''
s_cmp_lt_u32 {sROLE}, {R_C}
s_cbranch_scc1 L_roleS
s_cmp_lt_u32 {sROLE}, {R_V}
s_cbranch_scc1 L_ln
s_cmp_lt_u32 {sROLE}, {R_T}
s_cbranch_scc1 L_roleV
s_cmp_lt_u32 {sROLE}, {R_FD}
s_cbranch_scc1 L_ln
s_cmp_lt_u32 {sROLE}, {R_OT}
s_cbranch_scc1 L_roleFD
s_cmp_lt_u32 {sROLE}, {R_XW}
s_cbranch_scc1 L_roleOT
s_branch L_roleXW
''')

    def arrive(self):
        a = self.a; l = a.label('L_arr')
        a(f'''
s_waitcnt vmcnt(0)
s_barrier
s_cmp_eq_u32 {sW}, 0
s_cbranch_scc0 {l}
s_mov_b64 exec, 1
v_mov_b32 v4, 1
v_mov_b32 v5, 8
buffer_atomic_add v4, v5, {DBG}, 0 offen
s_mov_b64 exec, -1
{l}:
''')
    def await_all(self):
        a = self.a; l = a.label('L_aw')
        self.stamp(1)
        a(f'''
s_mov_b32 {sSPIN}, {SPIN}
v_mov_b32 v5, 8
{l}:
buffer_load_dword v4, v5, {DBG}, 0 offen sc1
s_sub_u32 {sSPIN}, {sSPIN}, 1
s_cbranch_scc1 L_fail
s_waitcnt vmcnt(0)
v_cmp_gt_u32 vcc, 256, v4
s_cbranch_vccz {l}_d
s_sleep 4
s_branch {l}
{l}_d:
''')
        self.stamp(2)
    def wait_flags(self, voff, vtmp, sneed, sleep=2):
        a = self.a; l = a.label('L_wf')
        a(f'''
s_mov_b32 {sSPIN}, {SPIN}
{l}:
buffer_load_dword {vtmp}, {voff}, {WS}, 0 offen sc1
s_sub_u32 {sSPIN}, {sSPIN}, 1
s_cbranch_scc1 L_fail
s_waitcnt vmcnt(0)
v_cmp_gt_u32 vcc, {sneed}, {vtmp}
s_cbranch_vccz {l}_d
s_sleep {sleep}
s_branch {l}
{l}_d:
''')
    def set_flag(self, sflag, val, vtmp, vzero):
        self.a(f'v_mov_b32 {vtmp}, {val}\nbuffer_store_dword {vtmp}, {vzero}, {WS}, {sflag} offen sc1')

    def stamp(self, slot, vt=(6, 7), sub=0, nsub=1):
        if not self.prof or (self.prof == 2 and isinstance(slot, str)): return
        a = self.a
        a(f's_memrealtime s[98:99]\ns_lshl_b32 s100, {sROLE}, 2\ns_add_u32 s100, s100, {sW}\ns_lshl_b32 s100, s100, 12')
        if isinstance(slot, str): a(f's_mul_i32 s101, {slot}, {4 * nsub}\ns_add_u32 s100, s100, s101\ns_add_u32 s100, s100, {PROF + 64 + 4 * sub}')
        else: a(f's_add_u32 s100, s100, {PROF + 4 * slot}')
        a(f's_waitcnt lgkmcnt(0)\nv_mov_b32 v{vt[0]}, s98\nv_mov_b32 v{vt[1]}, 0\nbuffer_store_dword v{vt[0]}, v{vt[1]}, {WS}, s100 offen')

    def tick(self, i):
        if self.prof == 2: self.a(f's_memtime s[{80 + 2 * i}:{81 + 2 * i}]')
    def flush(self, n, vt=(6, 7)):
        if self.prof != 2: return
        a = self.a
        a(f's_lshl_b32 s100, {sROLE}, 2\ns_add_u32 s100, s100, {sW}\ns_lshl_b32 s100, s100, 12\ns_lshl_b32 s101, {sSEG}, 5\ns_add_u32 s100, s100, s101\ns_add_u32 s100, s100, {PROF + 1024}')
        a(f's_waitcnt lgkmcnt(0)\nv_mov_b32 v{vt[1]}, 0')
        for i in range(n):
            a(f'v_mov_b32 v{vt[0]}, s{80 + 2 * i}\nbuffer_store_dword v{vt[0]}, v{vt[1]}, {WS}, s100 offen offset:{4 * i}')

    def check(self, regs, vt):
        a = self.a; r = list(regs)
        a(f'v_max3_u32 {vt}, {vr(r[0])}, {vr(r[1])}, {vr(r[2])}')
        i = 3
        while i + 1 < len(r):
            a(f'v_max3_u32 {vt}, {vt}, {vr(r[i])}, {vr(r[i+1])}'); i += 2
        if i < len(r):
            a(f'v_max_u32 {vt}, {vt}, {vr(r[i])}')
        a(f'v_cmp_eq_u32 vcc, -1, {vt}')

    def stream_load(self, nblocks, ninstr, ring, issue, consume):
        a = self.a
        assert ninstr * (ring - 1) <= 63
        for b in range(min(ring, nblocks)): issue(b)
        for b in range(nblocks):
            a(f's_waitcnt vmcnt({ninstr * (min(nblocks - 1, b + ring - 1) - b)})')
            consume(b)
            a('s_waitcnt lgkmcnt(0)')
            if b + ring < nblocks: issue(b + ring)

    def dma(self, voff, srd, soff, sbase, ldsoff, sc1=False):
        self.a(f's_add_u32 m0, {sbase}, {ldsoff}\ns_nop 0\nbuffer_load_dwordx4 {voff}, {srd}, {soff} offen {"sc1 " if sc1 else ""}lds')

    def ln(self):
        a = self.a
        a('L_ln:')
        self.srd(12, P_X, 2048 * 1280)
        a(f'''
s_sub_u32 s56, {sROLE}, {R_C}
s_sub_u32 s57, {sROLE}, {R_T - 40}
s_cmp_lt_u32 {sROLE}, {R_V}
s_cselect_b32 s56, s56, s57
s_lshl_b32 s56, s56, 2
s_add_u32 s56, s56, {sW}
v_and_b32 v4, 31, v1
v_lshrrev_b32 v5, 5, v1
v_mul_u32_u24 v6, 1280, v5
v_lshl_add_u32 v6, v4, 3, v6
''')
        a('''
v_lshrrev_b32 v7, 3, v4
v_lshlrev_b32 v7, 11, v7
v_bfe_u32 v8, v4, 1, 2
v_lshl_add_u32 v7, v8, 8, v7
v_and_b32 v8, 1, v4
v_lshl_add_u32 v7, v8, 3, v7
v_lshl_add_u32 v7, v5, 4, v7
s_mov_b32 s58, 0x3acccccd
L_ln_loop:
s_mul_i32 s57, s56, 2560
''')
        for j in range(5):
            a(f'buffer_load_dwordx2 v[{10+2*j}:{11+2*j}], v6, {SA}, s57 offen offset:{256*j}')
        a(f'''
s_lshr_b32 s59, s56, 4
s_mul_i32 s59, s59, 40960
s_bfe_u32 s64, s56, 0x10003
s_lshl_b32 s64, s64, 10
s_add_u32 s59, s59, s64
s_and_b32 s64, s56, 7
s_lshl_b32 s64, s64, 5
s_add_u32 s59, s59, s64
s_add_u32 s59, s59, {XN}
s_waitcnt vmcnt(0)
''')
        for j in range(10):
            a(f'v_lshlrev_b32 v{20+2*j}, 16, v{10+j}\nv_and_b32 v{21+2*j}, 0xffff0000, v{10+j}')
        def red32(v, t):
            for ror in (8, 4, 2, 1):
                a(f's_nop 1\nv_add_f32_dpp {v}, {v}, {v} row_ror:{ror} row_mask:0xf bank_mask:0xf')
            a(f'v_mov_b32 {t}, {v}\ns_nop 1\nv_permlane16_swap_b32 {v}, {t}\nv_add_f32 {v}, {v}, {t}')
        a('v_add_f32 v40, v20, v21')
        for j in range(2, 20): a(f'v_add_f32 v40, v40, v{20+j}')
        red32('v40', 'v41')
        a('v_mul_f32 v40, s58, v40')
        a('v_sub_f32 v42, v20, v40\nv_mul_f32 v43, v42, v42')
        for j in range(1, 20): a(f'v_sub_f32 v42, v{20+j}, v40\nv_fmac_f32 v43, v42, v42')
        red32('v43', 'v41')
        a(f'''
v_mul_f32 v43, s58, v43
v_cvt_pk_bf16_f32 v40, v40, v43
v_and_b32 v43, 0xffff0000, v40
v_lshlrev_b32 v40, 16, v40
v_add_f32 v43, 0x3727c5ac, v43
v_cvt_pk_bf16_f32 v43, v43, v43
v_lshlrev_b32 v43, 16, v43
v_sqrt_f32 v43, v43
s_nop 0
v_cvt_pk_bf16_f32 v43, v43, v43
v_lshlrev_b32 v43, 16, v43
v_rcp_f32 v43, v43
''')
        for j in range(10):
            a(f'''v_sub_f32 v{20+2*j}, v{20+2*j}, v40
v_sub_f32 v{21+2*j}, v{21+2*j}, v40
v_cvt_pk_bf16_f32 v{10+j}, v{20+2*j}, v{21+2*j}
v_lshlrev_b32 v{20+2*j}, 16, v{10+j}
v_and_b32 v{21+2*j}, 0xffff0000, v{10+j}
v_mul_f32 v{20+2*j}, v{20+2*j}, v43
v_mul_f32 v{21+2*j}, v{21+2*j}, v43
v_cvt_pk_bf16_f32 v{10+j}, v{20+2*j}, v{21+2*j}''')
        for j in range(5):
            a(f'buffer_store_dwordx2 v[{10+2*j}:{11+2*j}], v7, {WS}, s59 offen sc1\ns_add_u32 s59, s59, 8192')
        a(f'''
s_add_u32 s56, s56, 272
s_cmp_lt_u32 s56, 1024
s_cbranch_scc1 L_ln_loop
s_cmp_lt_u32 {sROLE}, {R_V}
s_cbranch_scc1 L_roleC
s_cmp_lt_u32 {sROLE}, {R_O}
s_cbranch_scc1 L_roleT
s_branch L_roleO
''')

    def disabled(self, name):
        if name in self.enable: return False
        self.arrive()
        self.a('s_branch L_end')
        return True

    def roleXW(self):
        a = self.a
        a('L_roleXW:')
        if self.disabled('XW'): return
        W0 = 192
        wf = lambda kk, t: W0 + (kk * 4 + t) * 4
        ACC = 64
        acc = lambda mt, t: ACC + (mt * 4 + t) * 4
        XB = 32
        a(f'''
s_sub_u32 {sIDX}, {sROLE}, {R_XW}
s_lshl_b32 s64, {sIDX}, 2
s_add_u32 s64, s64, {sW}
s_lshl_b32 s66, s64, 2
s_add_u32 s66, s66, {FL + 4 * F_XW}
v_mov_b32 v8, 0
''')
        self.set_flag('s66', 0, 'v4', 'v8')
        self.arrive()
        a(f'''
s_cmp_lt_u32 s64, 288
s_cbranch_scc0 L_xw_ffn
s_mov_b32 s69, 0
s_mov_b32 s65, 12288
s_mov_b32 s68, 393216
s_cmp_lt_u32 s64, 96
s_cselect_b32 s12, s{P_WQ}, s{P_WK}
s_cselect_b32 s13, s{P_WQ+1}, s{P_WK+1}
s_cselect_b32 s56, 0, 96
s_mov_b32 s67, {QT}
s_cselect_b32 s67, s67, {QT + QKV_SZ}
s_cmp_lt_u32 s64, 192
s_cselect_b32 s12, s12, s{P_WV}
s_cselect_b32 s13, s13, s{P_WV+1}
s_cselect_b32 s56, s56, 192
s_cselect_b32 s67, s67, {QT + 2 * QKV_SZ}
s_mov_b32 s14, {640 * 12288}
s_mov_b32 s15, 0x20000
s_mov_b32 s16, s12
s_mov_b32 s17, s13
s_mov_b32 s18, s14
s_mov_b32 s19, 0x20000
s_sub_u32 s56, s64, s56
s_lshl_b32 s57, s56, 12
s_add_u32 s67, s67, s57
s_lshl_b32 s57, s56, 7
s_add_u32 s58, s57, 64
s_branch L_xw_go
L_xw_ffn:
s_mov_b32 s69, 1
s_mov_b32 s65, 3072
s_mov_b32 s68, 98304
''')
        self.srd(12, P_G, 640 * 3072); self.srd(16, P_U, 640 * 3072)
        a(f'''
s_sub_u32 s56, s64, 288
s_lshl_b32 s67, s56, 11
s_add_u32 s67, s67, {HT}
s_lshl_b32 s57, s56, 6
s_mov_b32 s58, s57
L_xw_go:
v_lshrrev_b32 v4, 2, v1
v_mul_lo_u32 v4, v4, s65
v_and_b32 v5, 3, v1
v_lshl_add_u32 v4, v5, 4, v4
v_add_u32 v10, s57, v4
v_add_u32 v11, s58, v4
s_mul_i32 s70, {sW}, 40960
s_lshl_b32 s71, s65, 4
s_mov_b32 s72, 0
v_lshrrev_b32 v4, 2, v3
v_lshl_add_u32 v4, v2, 3, v4
v_lshlrev_b32 v4, 6, v4
v_and_b32 v5, 3, v3
v_lshl_add_u32 v4, v5, 3, v4
v_add_u32 v12, s70, v4
''')
        RING = 10
        def issue(b):
            o = (b % RING) * 4096
            self.dma('v10', SA, 's72', 's70', o); self.dma('v11', SB, 's72', 's70', o + 2048)
            a('s_add_u32 s72, s72, s71')
            self.dma('v10', SA, 's72', 's70', o + 1024); self.dma('v11', SB, 's72', 's70', o + 3072)
            a('s_add_u32 s72, s72, s71')
        def consume(b):
            o = (b % RING) * 4096
            for t in range(4):
                for hf in range(2):
                    a(f'ds_read_b64_tr_b16 {vr(wf(b, t) + 2 * hf, 2)}, v12 offset:{o + (t >> 1) * 2048 + hf * 256 + (t & 1) * 32}')
        self.stream_load(20, 4, RING, issue, consume)
        self.await_all()
        a('s_barrier')
        a(f'''
v_lshlrev_b32 v13, 4, v1
s_mul_i32 s70, {sW}, 10240
s_add_u32 s72, s70, {XN}
s_mov_b32 s73, s70
s_mov_b32 s74, 0
s_mov_b32 {sSEG}, 0
''')
        def xdma():
            for i in range(10):
                a(f's_add_u32 s75, s72, {i * 1024}')
                self.dma('v13', WS, 's75', 's73', i * 1024, sc1=True)
            a(f'''s_add_u32 s72, s72, 40960
s_add_u32 s73, s73, 40960
s_cmp_lt_u32 s73, 122880
s_cselect_b32 s73, s73, s70''')
        xdma(); xdma()
        a('s_waitcnt vmcnt(10)\ns_barrier')
        a('L_xw_loop:')
        self.stamp(sSEG)
        self.tick(0)
        a('v_add_u32 v14, s74, v13')
        def rd(kk):
            b = XB + (kk % 3) * 8
            a(f'ds_read_b128 {vr(b, 4)}, v14 offset:{kk * 2048}\nds_read_b128 {vr(b + 4, 4)}, v14 offset:{kk * 2048 + 1024}')
        rd(0); rd(1)
        for kk in range(20):
            if kk + 2 < 20: rd(kk + 2)
            a(f's_waitcnt lgkmcnt({min(4, 2 * (19 - kk))})')
            b = XB + (kk % 3) * 8
            for mt in range(2):
                for t in range(4):
                    c = vr(acc(mt, t), 4)
                    a(f'v_mfma_f32_16x16x32_bf16 {c}, {vr(wf(kk, t), 4)}, {vr(b + 4 * mt, 4)}, {"0" if kk == 0 else c}')
            if kk == 9:
                self.tick(1)
                a('s_waitcnt vmcnt(0)\ns_barrier')
                self.tick(2)
                self.set_flag('s66', sSEG, 'v4', 'v8')
                xdma()
                self.tick(3)
        self.tick(4)
        a('s_nop 7')
        a('s_cmp_eq_u32 s69, 0\ns_cbranch_scc0 L_xw_gelu')
        for mt in range(2):
            for p in range(2):
                d = 96 + (mt * 2 + p) * 4
                for q in range(2):
                    s = acc(mt, 2 * p + q)
                    a(f'v_cvt_pk_bf16_f32 v{d + 2*q}, v{s}, v{s+1}\nv_cvt_pk_bf16_f32 v{d + 2*q + 1}, v{s+2}, v{s+3}')
                a(f'buffer_store_dwordx4 v[{d}:{d+3}], v13, {WS}, s67 offen offset:{p * 2048 + mt * 1024} sc1')
        a('s_branch L_xw_next\nL_xw_gelu:')
        k1 = 2 * math.sqrt(2 / math.pi) * math.log2(math.e)
        a(f's_mov_b32 s76, {f2u(-k1 * 0.044715):#x}\ns_mov_b32 s77, {f2u(-k1):#x}\nv_mov_b32 v112, s77')
        for mt in range(2):
            for q in range(2):
                for r in range(4):
                    g = acc(mt, q) + r; u = acc(mt, 2 + q) + r; t = 116 + q * 4 + r
                    a(f'v_mul_f32 v{t}, v{g}, v{g}\nv_fma_f32 v{t}, v{t}, s76, v112\nv_mul_f32 v{t}, v{t}, v{g}\nv_exp_f32 v{t}, v{t}\nv_mul_f32 v{g}, v{g}, v{u}')
            for i in range(8): a(f'v_add_f32 v{116+i}, 1.0, v{116+i}')
            for i in range(8): a(f'v_rcp_f32 v{116+i}, v{116+i}')
            for q in range(2):
                for r in range(4):
                    g = acc(mt, q) + r
                    a(f'v_mul_f32 v{g}, v{g}, v{116 + q*4 + r}')
            d = 96 + mt * 4
            for q in range(2):
                s = acc(mt, q)
                a(f'v_cvt_pk_bf16_f32 v{d + 2*q}, v{s}, v{s+1}\nv_cvt_pk_bf16_f32 v{d + 2*q + 1}, v{s+2}, v{s+3}')
            a(f'buffer_store_dwordx4 v[{d}:{d+3}], v13, {WS}, s67 offen offset:{mt * 1024} sc1')
        a('L_xw_next:')
        self.flush(5)
        a(f'''
s_add_u32 s67, s67, s68
s_add_u32 s74, s74, 40960
s_cmp_lt_u32 s74, 122880
s_cselect_b32 s74, s74, 0
s_add_u32 {sSEG}, {sSEG}, 1
s_cmp_lt_u32 {sSEG}, {NSEG}
s_cbranch_scc1 L_xw_loop
s_waitcnt vmcnt(0)''')
        self.set_flag('s66', NSEG, 'v4', 'v8')
        self.stamp(3)
        a('s_branch L_end')

    def slab_voff(self, vb, n, ppr, pitch, magic, shift, scol):
        a = self.a
        for u in range(64 * n): assert (u * magic) >> shift == u // ppr, (u, ppr)
        for i in range(n):
            a(f'''v_add_u32 v4, {64 * i}, v1
v_mul_u32_u24 v5, {magic}, v4
v_lshrrev_b32 v5, {shift}, v5
v_mul_u32_u24 v6, {ppr}, v5
v_sub_u32 v4, v4, v6
v_mul_u32_u24 v5, {pitch}, v5
v_lshl_add_u32 v4, v4, 4, v5
v_add_u32 v{vb + i}, {scol}, v4''')

    def roleOT(self):
        a = self.a
        a('L_roleOT:')
        if self.disabled('OT'): return
        W0 = 256
        wf = lambda eb, c: W0 + (c * 6 + eb) * 4
        VB = 64
        vf = lambda buf, eb, mt: VB + buf * 48 + (eb * 2 + mt) * 4
        a(f'''
s_sub_u32 {sIDX}, {sROLE}, {R_OT}
s_lshl_b32 s66, {sW}, 5
s_add_u32 s66, s66, {sIDX}
s_lshl_b32 s66, s66, 2
s_add_u32 s66, s66, {FL + 4 * F_OT}
v_mov_b32 v8, 0
''')
        self.set_flag('s66', 0, 'v4', 'v8')
        self.arrive()
        self.srd(12, P_WO, 32 * 245760)
        a(f's_mul_i32 s57, {sW}, 320\ns_mul_i32 s72, {sIDX}, 245760\ns_mul_i32 s70, {sW}, 40960')
        self.slab_voff(16, 5, 20, 1280, 205, 12, 's57')
        a('''v_lshrrev_b32 v4, 2, v3
v_lshl_add_u32 v4, v2, 2, v4
v_mul_u32_u24 v4, 320, v4
v_and_b32 v5, 3, v3
v_lshl_add_u32 v4, v5, 3, v4
v_add_u32 v12, s70, v4''')
        RING = 4
        def issue(b):
            for hh in range(2):
                for i in range(5): self.dma(f'v{16+i}', SA, 's72', 's70', (b % RING) * 10240 + hh * 5120 + i * 1024)
                a('s_add_u32 s72, s72, 20480')
        def consume(b):
            for c in range(10):
                for hf in range(2):
                    a(f'ds_read_b64_tr_b16 {vr(wf(b, c) + 2 * hf, 2)}, v12 offset:{(b % RING) * 10240 + hf * 5120 + c * 32}')
        self.stream_load(6, 10, RING, issue, consume)
        self.await_all()
        a(f'''
v_lshlrev_b32 v13, 4, v1
v_min_u32 v4, 2, v1
s_mul_i32 s56, {sIDX}, 3
s_add_u32 s56, s56, {F_XW + 192 + FL // 4}
v_add_lshl_u32 v15, v4, s56, 2
s_mul_i32 s72, {sIDX}, 12288
s_add_u32 s72, s72, {QT + 2 * QKV_SZ}
s_mul_i32 s67, {sW}, {10 * 32768}
s_lshl_b32 s56, {sIDX}, 10
s_add_u32 s67, s67, s56
s_add_u32 s67, s67, {VO}
s_mov_b32 {sSEG}, 0
s_mov_b32 s73, 1
''')
        def vload(buf):
            for j in range(3):
                a(f's_add_u32 s75, s72, {j * 4096}')
                for i in range(4):
                    f = j * 4 + i
                    a(f'buffer_load_dwordx4 {vr(VB + buf * 48 + f * 4, 4)}, v13, {WS}, s75 offen offset:{i * 1024} sc1')
            a('s_add_u32 s72, s72, 393216')
        self.wait_flags('v15', 'v4', 's73')
        vload(0)
        a('L_ot_loop:')
        for buf in range(2):
            a(f's_add_u32 s73, {sSEG}, 2\ns_min_u32 s73, s73, {NSEG}')
            self.wait_flags('v15', 'v4', 's73')
            self.set_flag('s66', sSEG, 'v4', 'v8')
            self.stamp(sSEG)
            vload(1 - buf)
            a('s_mov_b32 s75, s67')
            for c in range(11):
                if c < 10:
                    A = 32 + (c & 1) * 8
                    for eb in range(6):
                        for mt in range(2):
                            d = vr(A + 4 * mt, 4)
                            a(f'v_mfma_f32_16x16x32_bf16 {d}, {vr(vf(buf, eb, mt), 4)}, {vr(wf(eb, c), 4)}, {"0" if eb == 0 else d}')
                else:
                    a('s_nop 7')
                if c > 0:
                    A = 32 + ((c - 1) & 1) * 8; d = 48 + ((c - 1) & 1) * 4
                    for i in range(4): a(f'v_cvt_pk_bf16_f32 v{d+i}, v{A+2*i}, v{A+2*i+1}')
                    a(f'buffer_store_dwordx4 v[{d}:{d+3}], v13, {WS}, s75 offen sc1\ns_add_u32 s75, s75, 32768')
            a(f's_add_u32 s67, s67, 1310720\ns_add_u32 {sSEG}, {sSEG}, 1')
        a(f's_cmp_lt_u32 {sSEG}, {NSEG}\ns_cbranch_scc1 L_ot_loop\ns_waitcnt vmcnt(0)')
        self.set_flag('s66', NSEG, 'v4', 'v8')
        self.stamp(3)
        a('s_branch L_end')

    def roleFD(self):
        a = self.a
        a('L_roleFD:')
        if self.disabled('FD'): return
        W0 = 256
        wf = lambda kb, c: W0 + (kb * 5 + c) * 4
        HB = 64
        ACC = 24
        a(f'''
s_sub_u32 {sIDX}, {sROLE}, {R_FD}
s_lshl_b32 s66, {sIDX}, 2
s_add_u32 s66, s66, {sW}
s_lshl_b32 s66, s66, 2
s_add_u32 s66, s66, {FL + 4 * F_FD}
v_mov_b32 v8, 0
''')
        self.set_flag('s66', 0, 'v4', 'v8')
        self.arrive()
        self.srd(12, P_D, 1536 * 1280)
        a(f's_mul_i32 s57, {sIDX}, 160\ns_mul_i32 s72, {sW}, {384 * 1280}\ns_mul_i32 s70, {sW}, 40960')
        self.slab_voff(16, 5, 10, 1280, 205, 11, 's57')
        a('''v_lshrrev_b32 v4, 2, v3
v_lshl_add_u32 v4, v2, 2, v4
v_mul_u32_u24 v4, 160, v4
v_and_b32 v5, 3, v3
v_lshl_add_u32 v4, v5, 3, v4
v_add_u32 v12, s70, v4''')
        RING = 8
        def issue(b):
            for i in range(5): self.dma(f'v{16+i}', SA, 's72', 's70', (b % RING) * 5120 + i * 1024)
            a('s_add_u32 s72, s72, 40960')
        def consume(b):
            for c in range(5):
                for hf in range(2):
                    a(f'ds_read_b64_tr_b16 {vr(wf(b, c) + 2 * hf, 2)}, v12 offset:{(b % RING) * 5120 + hf * 2560 + c * 32}')
        self.stream_load(12, 5, RING, issue, consume)
        self.await_all()
        a('s_barrier')
        a(f'''
v_lshlrev_b32 v13, 4, v1
v_lshlrev_b32 v10, 3, v1
s_mul_i32 s70, {sW}, 10240
v_add_u32 v14, s70, v13
s_lshl_b32 s70, {sW}, 10
v_add_u32 v9, s70, v13
v_min_u32 v4, 11, v1
s_mul_i32 s56, {sW}, 12
s_add_u32 s56, s56, {F_XW + 288 + FL // 4}
v_add_lshl_u32 v15, v4, s56, 2
s_mul_i32 s72, {sW}, 24576
s_add_u32 s72, s72, {HT}
s_mul_i32 s67, {sIDX}, 5120
s_lshl_b32 s56, {sW}, 9
s_add_u32 s67, s67, s56
s_add_u32 s67, s67, {FB}
s_mov_b32 {sSEG}, 0
s_mov_b32 s73, 1
''')
        def hload(buf):
            for j in range(6):
                a(f's_add_u32 s75, s72, {j * 4096}')
                for i in range(4):
                    a(f'buffer_load_dwordx4 {vr(HB + buf * 96 + (j * 4 + i) * 4, 4)}, v13, {WS}, s75 offen offset:{i * 1024} sc1')
            a('s_add_u32 s72, s72, 98304')
        self.wait_flags('v15', 'v4', 's73')
        hload(0)
        a('L_fd_loop:')
        for buf in range(2):
            a(f's_add_u32 s73, {sSEG}, 2\ns_min_u32 s73, s73, {NSEG}')
            self.wait_flags('v15', 'v4', 's73')
            self.set_flag('s66', sSEG, 'v4', 'v8')
            self.stamp(sSEG)
            hload(1 - buf)
            for kb in range(12):
                for c in range(5):
                    for tt in range(2):
                        d = vr(ACC + (c * 2 + tt) * 4, 4)
                        a(f'v_mfma_f32_16x16x32_bf16 {d}, {vr(wf(kb, c), 4)}, {vr(HB + buf * 96 + (kb * 2 + tt) * 4, 4)}, {"0" if kb == 0 else d}')
            a('s_nop 7')
            lb = buf * 40960
            for t in range(10): a(f'ds_write_b128 v14, {vr(ACC + t * 4, 4)} offset:{lb + t * 1024}')
            a('s_waitcnt lgkmcnt(0)\ns_barrier')
            lab = a.label('L_fd_skip')
            for j in range(3):
                if j == 2: a(f's_cmp_lt_u32 {sW}, 2\ns_cbranch_scc0 {lab}')
                for w in range(4):
                    off = lb + w * 10240 + j * 4096
                    if off > 65535 - 16:
                        a(f'v_add_u32 v11, {off}, v9\nds_read_b128 {vr(ACC + w * 4, 4)}, v11')
                    else:
                        a(f'ds_read_b128 {vr(ACC + w * 4, 4)}, v9 offset:{off}')
                a('s_waitcnt lgkmcnt(0)')
                for r in range(4):
                    a(f'v_add_f32 v{ACC+r}, v{ACC+r}, v{ACC+4+r}\nv_add_f32 v{ACC+8+r}, v{ACC+8+r}, v{ACC+12+r}\nv_add_f32 v{ACC+r}, v{ACC+r}, v{ACC+8+r}')
                a(f'v_cvt_pk_bf16_f32 v{16+2*j}, v{ACC}, v{ACC+1}\nv_cvt_pk_bf16_f32 v{17+2*j}, v{ACC+2}, v{ACC+3}')
                a(f'buffer_store_dwordx2 v[{16+2*j}:{17+2*j}], v10, {WS}, s67 offen offset:{j * 2048 if j < 2 else 0} sc1' if j < 2 else
                  f's_add_u32 s75, s67, 4096\nbuffer_store_dwordx2 v[{16+2*j}:{17+2*j}], v10, {WS}, s75 offen sc1')
            a(f'{lab}:\ns_add_u32 s67, s67, 40960\ns_add_u32 {sSEG}, {sSEG}, 1')
        a(f's_cmp_lt_u32 {sSEG}, {NSEG}\ns_cbranch_scc1 L_fd_loop\ns_waitcnt vmcnt(0)')
        self.set_flag('s66', NSEG, 'v4', 'v8')
        self.stamp(3)
        a('s_branch L_end')

    def build(self):
        a = self.a
        self.prologue(); self.ln()
        import roles2
        roles2.emit(self)
        self.roleFD(); self.roleOT(); self.roleXW()
        a(f'''L_fail:
s_waitcnt vmcnt(0) lgkmcnt(0)
s_mov_b64 exec, 1
v_mov_b32 v4, {sROLE}
v_add_u32 v4, 1, v4
v_mov_b32 v5, 12
buffer_store_dword v4, v5, {DBG}, 0 offen
L_end:
s_endpgm''')
        hdr = open(f'cdna_kernels/{NAME}.s.ref').read().split('; Override')[0]
        return (hdr + '; @launch grid=(256,1,1) block=(256,1,1) lds=163840\n'
                f'.amdgcn_target "amdgcn-amd-amdhsa--gfx950"\n.text\n.globl {KN}\n.p2align 8\n.type {KN},@function\n{KN}:\n'
                + a.text() + f'''.section .rodata,"a"
.p2align 6
.amdhsa_kernel {KN}
  .amdhsa_next_free_vgpr 512
  .amdhsa_next_free_sgpr 102
  .amdhsa_accum_offset 256
  .amdhsa_group_segment_fixed_size 0
  .amdhsa_kernarg_size 112
  .amdhsa_user_sgpr_count 2
  .amdhsa_user_sgpr_kernarg_segment_ptr 1
  .amdhsa_system_sgpr_workgroup_id_x 1
  .amdhsa_float_denorm_mode_32 3
  .amdhsa_float_denorm_mode_16_64 3
.end_amdhsa_kernel
''')

if __name__ == '__main__':
    kw = eval('dict(%s)' % (sys.argv[2] if len(sys.argv) > 2 else ''))
    open(sys.argv[1], 'w').write(Gen(**kw).build())
```

```python
class Asm:
    def __init__(self):
        self.lines = []
        self.nlabel = 0
    def __call__(self, s):
        for l in s.strip('\n').split('\n'):
            l = l.strip()
            if l.startswith('FIXW '):
                r = l.split()[1]
                for t in (f's_lshr_b32 s97, {r}, 8', 's_xor_b32 s97, s97, s60', f's_xor_b32 s97, s97, {r}', 's_and_b32 s97, s97, 8192', f's_xor_b32 {r}, {r}, s97'):
                    self.lines.append('    ' + t)
                continue
            if l.startswith('ADV '):
                p = l.split(); n = int(p[4]) if len(p) > 4 else 1
                if int(p[3]) > 64:
                    self.lines.append(f'    s_add_u32 {p[1]}, {p[2]}, {n * int(p[3])}'); continue
                self.lines.append(f'    s_add_u32 {p[1]}, {p[2]}, {n << int(p[3])}')
                self.lines.append(f'    s_bitset0_b32 {p[1]}, {int(p[3]) + (4 if int(p[3]) == 22 else 2)}')
                continue
            if l:
                self.lines.append(('' if l.endswith(':') else '    ') + l)
    def label(self, base='L'):
        self.nlabel += 1
        return f'{base}_{self.nlabel}'
    def text(self):
        return '\n'.join(self.lines) + '\n'

def vr(b, n=1):
    if b < 256:
        assert b + n <= 256, (b, n)
        return f'v{b}' if n == 1 else f'v[{b}:{b+n-1}]'
    b -= 256
    assert b + n <= 256
    return f'a{b}' if n == 1 else f'a[{b}:{b+n-1}]'

def kd(name, vgpr=512, sgpr=102, accum=256):
    return f'''.section .rodata,"a"
.p2align 6
.amdhsa_kernel {name}
  .amdhsa_next_free_vgpr {vgpr}
  .amdhsa_next_free_sgpr {sgpr}
  .amdhsa_accum_offset {accum}
  .amdhsa_group_segment_fixed_size 0
  .amdhsa_kernarg_size 112
  .amdhsa_user_sgpr_count 2
  .amdhsa_user_sgpr_kernarg_segment_ptr 1
  .amdhsa_system_sgpr_workgroup_id_x 1
  .amdhsa_float_denorm_mode_32 3
  .amdhsa_float_denorm_mode_16_64 3
.end_amdhsa_kernel
'''
```

```python
from gen import *
import roles2 as R

def roleC(G):
    a = G.a
    SMF, MF32, MF16 = R.SMF, R.MF32, R.MF16
    a('L_roleC:')
    if G.disabled('C'): return
    vT, vZ, vIDX, vL16, vL8, vL4, vE, vFL, vND, vFV, vHO, vHV, vFO, vMS, vOW, vOUT, vFBo, vXR, vFT = range(7, 26)
    vFR, vFTv, vNR = 60, 61, 62
    EB, E2 = 28, 44
    BZ = 68
    D1 = 84
    LA, LB = 116, 124
    AC = 132
    X = 136
    OA, XF = 148, 156
    FX = 224
    PB = 160
    YS = lambda u: 256 + 40 * (u & 3)
    for c in range(40): assert (c * 205) >> 11 == c // 10
    for o in range(80): assert (o * 205) >> 11 == o // 10
    G.srd(12, P_MEM, 10240)
    a(f'''
s_sub_u32 {sIDX}, {sROLE}, {R_C}
s_mul_i32 s74, {sIDX}, 205
s_lshr_b32 s74, s74, 11
s_mul_i32 s56, s74, 10
s_sub_u32 s76, {sIDX}, s56
s_lshl_b32 s75, s76, 2
s_add_u32 s75, s75, {sW}
v_mov_b32 v{vZ}, 0
v_lshlrev_b32 v{vL16}, 4, v1
v_lshlrev_b32 v{vL8}, 3, v1
v_lshlrev_b32 v{vL4}, 2, v1
s_lshl_b32 s72, {sIDX}, 7
s_add_u32 s72, s72, {FL + 128 * F_O}
s_lshl_b32 s79, s74, 7
s_add_u32 s79, s79, {HC}
s_cmp_eq_u32 s75, 0
s_cselect_b32 s56, 0, 0x40000000
v_mov_b32 v{vHO}, s56
buffer_store_dword v{vZ}, v{vHO}, {WS}, s79 offen sc1
buffer_store_dword v{vZ}, v{vZ}, {WS}, s72 offen sc1
s_lshl_b32 s64, s74, 14
s_lshl_b32 s56, s75, 8
s_add_u32 s64, s64, s56
s_add_u32 s64, s64, {LM}
v_bfe_u32 v4, v1, 2, 3
v_mul_u32_u24 v4, 1280, v4
v_and_b32 v5, 3, v1
v_lshl_add_u32 v4, v5, 3, v4
v_lshrrev_b32 v5, 5, v1
v_lshl_add_u32 v4, v5, 2, v4
s_lshl_b32 s56, s75, 5
buffer_load_dword v5, v4, {SA}, s56 offen
v_mov_b32 v26, -1
v_mov_b32 v27, -1
s_add_u32 s56, s64, {1 << L_LOC}
s_add_u32 s57, s64, {2 << L_LOC}
buffer_store_dword v26, v{vL4}, {WS}, s56 offen sc1
buffer_store_dword v26, v{vL4}, {WS}, s57 offen sc1
s_lshl_b32 s70, s76, 14
s_lshl_b32 s56, {sW}, 11
s_add_u32 s70, s70, s56
s_add_u32 s70, s70, {XM}
s_lshl_b32 s77, s74, 9
s_add_u32 s58, s70, s77
''')
    for extra in (0, 8192, L_XM, L_XM + 8192):
        a(f's_add_u32 s56, s58, {extra}\nbuffer_store_dwordx2 v[26:27], v{vL8}, {WS}, s56 offen sc1')
    a(f's_waitcnt vmcnt(6)\nv_min_u32 v5, -2, v5\nbuffer_store_dword v5, v{vL4}, {WS}, s64 offen sc1')
    G.arrive()
    G.await_all()
    R.idx_setup(G, vIDX)
    a(f'''
v_lshrrev_b32 v4, 3, v3
v_lshlrev_b32 v4, 9, v4
v_lshl_add_u32 v4, v2, 7, v4
v_and_b32 v5, 7, v3
v_lshl_add_u32 v{vE}, v5, 4, v4
s_lshl_b32 s65, s74, 12
s_add_u32 s65, s65, {LE}
s_lshl_b32 s56, s74, 11
s_add_u32 s66, s56, {LL}
s_lshl_b32 s67, s75, 13
s_add_u32 s67, s67, s56
s_add_u32 s67, s67, {LZ}
s_mul_i32 s68, s74, 327680
s_lshl_b32 s57, s75, 13
s_add_u32 s68, s68, s57
s_add_u32 s68, s68, {VO}
s_add_u32 s37, s57, {XO}
s_add_u32 s36, s37, s56
s_add_u32 s37, s37, s77
s_lshl_b32 s41, s74, 14
s_lshl_b32 s56, {sW}, 12
s_add_u32 s41, s41, s56
s_add_u32 s41, s41, {PT}
s_mov_b32 s45, s56
''')
    a(f'''
s_mul_i32 s56, s75, 205
s_lshr_b32 s56, s56, 11
s_lshl_b32 s56, s56, 5
s_lshl_b32 s57, s74, 3
s_add_u32 s56, s56, s57
s_add_u32 s56, s56, {F_OT + FL // 128}
v_and_b32 v4, 7, v1
v_add_lshl_u32 v{vFR}, v4, s56, 7
s_lshl_b32 s56, s74, 4
s_add_u32 s56, s56, {F_T + FL // 128}
v_add_lshl_u32 v{vFT}, v3, s56, 7
v_mov_b32 v{vFV}, 0
''')
    a(f'''
v_bfe_u32 v4, v1, 3, 1
v_lshlrev_b32 v4, 2, v4
v_bfe_u32 v5, v1, 4, 1
v_lshl_add_u32 v4, v5, 1, v4
v_lshrrev_b32 v6, 5, v1
v_add_u32 v4, v4, v6
v_and_b32 v5, 1, v1
v_lshl_add_u32 v4, v5, 3, v4
v_lshlrev_b32 v4, 4, v4
v_bfe_u32 v5, v1, 1, 2
v_lshl_add_u32 v{vMS}, v5, 2, v4
v_lshrrev_b32 v4, 3, v3
v_lshlrev_b32 v4, 9, v4
v_lshl_add_u32 v4, v2, 7, v4
v_and_b32 v5, 7, v1
v_lshl_add_u32 v{vOW}, v5, 4, v4
s_mov_b32 {sSEG}, 0
''')
    def need():
        a(f's_sub_u32 s58, {sSEG}, 1\ns_add_u32 s59, {sSEG}, 1\ns_min_u32 s40, s59, {NSEG}')
    waitR = lambda: G.wait_flags(f'v{vFR}', f'v{vFV}', 's40', sleep=1)
    waitT = lambda: G.wait_flags(f'v{vFT}', f'v{vFTv}', 's58', sleep=1)
    def progress(val):
        l = a.label('L_c_pg')
        a(f's_cmp_eq_u32 {sW}, 0\ns_cbranch_scc0 {l}\nv_mov_b32 v4, {val}\nbuffer_store_dword v4, v{vZ}, {WS}, s72 offen sc1\n{l}:')
    def pdma(par):
        if G.diag & 2: return
        a(f's_add_u32 m0, s45, {16384 * par}\ns_nop 0')
        for k in range(4): a(f'buffer_load_dwordx4 v{vL16}, {WS}, s41 offen offset:{k * 1024} sc1 lds')
        a(f'ADV s41 s41 {L_PT}')
    d0, d1 = vr(OA, 4), vr(OA + 4, 4)
    def prod_parts(H, par):
        rd = [f'ds_read_b128 {vr(PB + 4 * k, 4)}, v{vL16} offset:{16384 * par + 1024 * k}' for k in range(16)]
        mf = [(k + 1, f'{MF32} {d1}, {vr(H + 4 * k, 4)}, {vr(PB + 4 * k, 4)}, {"0" if k == 0 else d1}') for k in range(8)]
        mf += [(9 + k // 2, f'{MF16} {d0}, {vr(H + 4 * k, 2)}, {vr(PB + 32 + 2 * k, 2)}, {"0" if k == 0 else d0}') for k in range(8)]
        mf += [(16, ('s_nop 3\n' if k == 0 else '') + f'{MF32} {(d0, d1)[k >> 1]}, {vr(H + 32 + 4 * (k & 1), 4)}, {vr(PB + 48 + 4 * k, 4)}, {(d0, d1)[k >> 1]}') for k in (2, 3, 0, 1)]
        o = []; have = 0
        for need, t in mf:
            if need > have: t = f's_waitcnt lgkmcnt({16 - need})\n' + t; have = need
            o.append(t)
        return rd + o[:G.psplit], o[G.psplit:]
    def prod_store():
        a(f"""buffer_store_dwordx4 {d1}, v{vOW}, {WS}, s36 offen offset:1024 sc1
buffer_store_dwordx4 {d0}, v{vOW}, {WS}, s36 offen sc1
ADV s36 s36 {L_XO}""")
    def products(H, par):
        for t in sum(prod_parts(H, par), []): a(t)
        a('s_nop 7')
        prod_store()
    def voload(u):
        if G.diag & 2: return
        a('s_add_u32 s59, s68, 4096')
        for i in range(8): a(f'buffer_load_dwordx4 {vr(YS(u) + 4 * i, 4)}, v{vL16}, {WS}, {"s68" if i < 4 else "s59"} offen offset:{(i & 3) * 1024} sc1')
        a(f'ADV s68 s68 {L_VO}')
    def eload(b):
        for p in range(4): a(f'buffer_load_dwordx4 v[{b + 4*p}:{b + 4*p + 3}], v{vE}, {WS}, s65 offen offset:{1024 * p} sc1')
    zregs = [BZ + 4 * p + i for p in range(4) for i in range(2)]
    def zload(_):
        for p in range(4): a(f'buffer_load_dwordx2 v[{BZ + 4*p}:{BZ + 4*p + 1}], v{vL8}, {WS}, s67 offen offset:{512 * p} sc1')
    def lload(b):
        a(f'buffer_load_dwordx4 v[{b}:{b+3}], v{vL16}, {WS}, s66 offen sc1\nbuffer_load_dwordx4 v[{b+4}:{b+7}], v{vL16}, {WS}, s66 offen offset:1024 sc1')
    zero = lambda: [a(f'v_mov_b32 v{AC + i}, 0') for i in range(4)]
    zsave = lambda u: [a(f'v_accvgpr_write_b32 {vr(YS(u) + 32 + i)}, v{zregs[i]}') for i in range(8)]
    comb = lambda b: f'{SMF} v[{AC}:{AC+3}], v[{b}:{b+3}], v[{BZ}:{BZ+7}], v{vIDX}\n{SMF} v[{AC}:{AC+3}], v[{b+4}:{b+7}], v[{BZ+8}:{BZ+15}], v{vIDX}'
    flv = f'buffer_load_dword v{vFV}, v{vFL}, {WS}, 0 offen sc1'
    def umf(u, p, b):
        for q in range(2):
            a(f'{MF32} {vr(D1 + (2*p + q) * 4, 4)}, v[{b + 4*p}:{b + 4*p + 3}], {vr(YS(u) + (2*p+q)*4, 4)}, 0')
    def xprep():
        a(G.win('s69', 's70') + '\ns_add_u32 s71, s69, s77')
    def xchg(between, pre, during):
        xl = f'buffer_load_dwordx4 v[{X}:{X+3}], v{vL16}, {WS}, s69 offen sc1\nbuffer_load_dwordx4 v[{X+4}:{X+7}], v{vL16}, {WS}, s69 offen offset:1024 sc1'
        l = a.label('L_c_x')
        a(f'buffer_store_dwordx2 v[{AC}:{AC+1}], v{vL8}, {WS}, s71 offen sc1')
        between()
        if not G.xd: a('s_waitcnt vmcnt(0)')
        a(xl)
        pre()
        during()
        a('s_waitcnt vmcnt(0)')
        G.check(range(X, X + 8), f'v{vT}')
        a(f's_cbranch_vccz {l}')
        R.poll(G, lambda b: a(xl), lambda b: None, 2, 8, X, None, f'v{vT}', pipe=False)
        a(f'{l}:')
    def xarm():
        a(G.win('s56', 's70', 2 * L_XM) + f'\ns_add_u32 s56, s56, s77\nbuffer_store_dwordx2 v[26:27], v{vL8}, {WS}, s56 offen sc1\nADV s70 s70 {L_XM}')
    def arms():
        a(f'buffer_store_dword v26, v{vL4}, {WS}, s57 offen LOCAL')
        xarm()
    if not G.diag & 2:
        need(); waitR()
    voload(0)
    def main():
        a('L_c_loop:')
        for u in range(4):
            G.tick(0)
            xprep()
            zero()
            a(f'ADV s64 s64 {L_LOC}\ns_add_u32 s62, {sSEG}, 1\nv_mov_b32 v{vHV}, s62')
            a('s_waitcnt vmcnt(0)\ns_barrier')
            R.poll(G, eload, lambda b: None, 4, 16, EB, None, f'v{vT}', pipe=False)
            G.tick(1)
            zload(0)
            for p in range(4): umf(u, p, EB)
            a('s_nop 5')
            for q in range(2):
                a('s_mov_b32 exec_hi, 0' if q == 0 else 's_mov_b32 exec_lo, 0\ns_mov_b32 exec_hi, -1')
                for p in range(4):
                    s_ = D1 + (2 * p + q) * 4
                    a(f'v_cvt_pk_bf16_f32 v{BZ + 4*p + 2}, v{s_}, v{s_+1}\nv_cvt_pk_bf16_f32 v{BZ + 4*p + 3}, v{s_+2}, v{s_+3}')
            a('s_mov_b64 exec, -1')
            lload(LA)
            a('s_waitcnt vmcnt(2)')
            G.check(zregs, f'v{vT}')
            a(f's_cbranch_vccz L_c_zok{u}')
            R.poll(G, lambda b: (zload(0), lload(LA)), lambda b: None, 6, 8, zregs, None, f'v{vT}', pipe=False)
            a(f'L_c_zok{u}:')
            G.tick(2)
            if G.lser:
                a(f's_mov_b32 {sSPIN}, {SPIN}\nL_c_lp{u}:\ns_waitcnt vmcnt(0)')
                a(comb(LA)); G.check(range(LA, LA + 8), f'v{vT}')
                a(f's_cbranch_vccz L_c_red{u}')
                lload(LA); a('s_nop 1'); zero()
                a(f's_sub_u32 {sSPIN}, {sSPIN}, 1\ns_cbranch_scc1 L_fail')
            else:
                lload(LB)
                a(f's_mov_b32 {sSPIN}, {SPIN}\nL_c_lp{u}:\ns_waitcnt vmcnt(2)')
                a(comb(LA)); G.check(range(LA, LA + 8), f'v{vT}')
                a(f's_cbranch_vccz L_c_red{u}')
                lload(LA); a('s_nop 1'); zero()
                a(f's_sub_u32 {sSPIN}, {sSPIN}, 1\ns_cbranch_scc1 L_fail\ns_waitcnt vmcnt(2)')
                a(comb(LB)); G.check(range(LB, LB + 8), f'v{vT}')
                a(f's_cbranch_vccz L_c_red{u}')
                lload(LB); a('s_nop 1'); zero()
            a(f'''s_branch L_c_lp{u}
L_c_red{u}:
s_nop 1
v_permlane32_swap_b32 v{AC}, v{AC+2}
v_permlane32_swap_b32 v{AC+1}, v{AC+3}
v_add_f32 v{AC}, v{AC}, v{AC+2}
v_add_f32 v{AC+1}, v{AC+1}, v{AC+3}''')
            pa, pb = prod_parts(YS(u + 2), u & 1)
            def between():
                G.tick(3)
                for t in pa: a(t)
            def hint():
                a(f's_cmp_eq_u32 s75, 0\ns_cbranch_scc0 L_c_nh{u}\nbuffer_store_dword v{vHV}, v{vZ}, {WS}, s79 offen LOCAL\nL_c_nh{u}:')
            def during():
                for t in pb: a(t)
                zsave(u)
                a(f'ADV s65 s65 {L_LOC}\nADV s66 s66 {L_LOC}\nADV s67 s67 {L_LOC}\nADV s57 s64 {L_LOC} 2\ns_add_u32 {sSEG}, {sSEG}, 1')
            xchg(between, hint, during)
            for r in range(4): a(f'v_add_f32 v{X+r}, v{X+r}, v{X+4+r}')
            a(f'''s_nop 0
v_permlane32_swap_b32 v{X}, v{X+1}
v_permlane32_swap_b32 v{X+2}, v{X+3}
v_add_f32 v{X}, v{X}, v{X+1}
v_add_f32 v{X+2}, v{X+2}, v{X+3}
v_cvt_pk_bf16_f32 v{X}, v{X}, v{X+2}
v_min_u32 v{X}, -2, v{X}
buffer_store_dword v{X}, v{vMS}, {WS}, s64 offen LOCAL''')
            G.tick(4)
            a('s_barrier')
            need()
            a(f's_cmp_lt_u32 {sSEG}, 3\ns_cbranch_scc1 L_c_early{u}')
            if G.diag & 2: arms()
            else:
                a(f'buffer_load_dword v{vFTv}, v{vFT}, {WS}, 0 offen sc1\ns_sub_u32 s42, {sSEG}, 3')
                a(f'v_cmp_gt_u32 vcc, s40, v{vFV}\ns_cbranch_vccnz L_c_rw{u}\nL_c_rok{u}:')
                if G.vof: voload(u + 1)
                prod_store(); arms()
                if not G.vof: voload(u + 1)
                G.tick(5)
                a(f's_waitcnt vmcnt(12)\nv_cmp_gt_u32 vcc, s58, v{vFTv}\ns_cbranch_vccnz L_c_tw{u}\nL_c_tok{u}:')
                pdma((u + 1) & 1)
                a(f'buffer_load_dword v{vFV}, v{vFR}, {WS}, 0 offen sc1')
                progress('s42')
                G.tick(6)
                if G.diag & 4: a('s_waitcnt vmcnt(0)')
            G.tick(7)
            G.flush(8, vt=(4, 5))
            a(f'L_c_next{u}:')
            if u == 2: a(f's_cmp_lt_u32 {sSEG}, {NSEG - 1}\ns_cbranch_scc0 L_c_drain')
        a('s_branch L_c_loop')
        for u in range(4):
            a(f'L_c_early{u}:')
            arms()
            if not G.diag & 2:
                waitR(); voload(u + 1)
                if u == 1: waitT(); pdma(0)
            a(f's_branch L_c_next{u}')
            if not G.diag & 2:
                a(f'L_c_rw{u}:'); waitR()
                a(f's_branch L_c_rok{u}\nL_c_tw{u}:'); waitT()
                a(f's_branch L_c_tok{u}')
        a('L_c_drain:')
        if G.diag & 2:
            a('s_branch L_end'); return
        for seg in (61, 62, 63):
            if seg == 63:
                R.poll(G, zload, lambda b: None, 4, 8, zregs, None, f'v{vT}', pipe=False, sleep=1)
                zsave(3)
            if seg > 61:
                a(f's_mov_b32 s58, {seg + 1}')
                waitT(); pdma(seg & 1)
            a('s_waitcnt vmcnt(0)\ns_barrier')
            progress(seg)
            products(YS(seg), seg & 1)
        a('s_waitcnt vmcnt(0)\ns_barrier')
        progress(64)
        G.stamp(3)
        a('s_branch L_end')
    G.two_flavours('c', main)
```

```python
from gen import *

def head_slab_setup(G, vb, vtr, sbase):
    a = G.a
    a(f'''
s_lshr_b32 s56, {sW}, 1
s_lshl_b32 s56, s56, 1
s_add_u32 s56, s56, {sW}
s_lshl_b32 s56, s56, 6
s_lshl_b32 s57, {sW}, 5
s_add_u32 s57, s57, 64
s_mul_i32 s58, {sIDX}, 384
s_add_u32 s56, s56, s58
s_add_u32 s57, s57, s58
''')
    for u in range(192): assert (u * 171) >> 10 == u // 6
    for i in range(3):
        a(f'''v_add_u32 v4, {64 * i}, v1
v_mul_u32_u24 v5, 171, v4
v_lshrrev_b32 v5, 10, v5
v_mul_u32_u24 v6, 6, v5
v_sub_u32 v4, v4, v6
v_mul_u32_u24 v5, 12288, v5
v_lshl_add_u32 v5, v4, 4, v5
v_mov_b32 v6, s57
v_mov_b32 v7, s56
v_cmp_gt_u32 vcc, 4, v4
s_nop 1
v_cndmask_b32 v6, v6, v7, vcc
v_add_u32 v{vb + i}, v5, v6''')
    a(f'''v_lshrrev_b32 v4, 2, v3
v_lshl_add_u32 v4, v2, 3, v4
v_mul_u32_u24 v4, 96, v4
v_and_b32 v5, 3, v3
v_lshl_add_u32 v4, v5, 3, v4
v_add_u32 v{vtr}, {sbase}, v4''')

def head_slab_load(G, mats, vb, vtr, sbase, ring, vres, tmp):
    a = G.a
    a(f's_lshl_b32 s59, {sW}, 2')
    def issue(bb):
        srd = mats[bb // 20][0]; b = bb % 20
        if b < 16: a(f's_xor_b32 s72, s59, {b}\ns_mul_i32 s72, s72, {32 * 12288}')
        else: a(f's_mov_b32 s72, {b * 32 * 12288}')
        for i in range(3): G.dma(f'v{vb+i}', srd, 's72', sbase, (bb % ring) * 3072 + i * 1024)
    def consume(bb):
        dest = mats[bb // 20][1]; b = bb % 20
        pend = []
        for tl in range(3):
            kind, d = dest(b >> 1, tl)
            r = d + 4 * (b & 1) if kind == 'r' else tmp + 4 * len(pend)
            if kind == 'l': pend.append((r, d + (b & 1) * 1024))
            for hf in range(2):
                a(f'ds_read_b64_tr_b16 {vr(r + 2 * hf, 2)}, v{vtr} offset:{(bb % ring) * 3072 + hf * 384 + tl * 32}')
        if pend:
            a('s_waitcnt lgkmcnt(0)')
            for r, o in pend: a(f'ds_write_b128 v{vres}, {vr(r, 4)} offset:{o}')
    G.stream_load(20 * len(mats), 3, ring, issue, consume)

def mpoll_setup(G, vg4, vg2, vl4, vl2, ssel, ldsbase):
    a = G.a
    a(f'''
s_lshl_b32 s56, {sW}, 11
v_lshl_add_u32 v{vl4}, v1, 4, s56
v_mov_b32 v{vg4}, v{vl4}
v_add_u32 v{vl4}, {ldsbase}, v{vl4}
s_lshl_b32 s56, {sW}, 9
v_lshl_add_u32 v{vl2}, v1, 3, s56
v_add_u32 v{vg2}, 8192, v{vl2}
v_add_u32 v{vl2}, {ldsbase + 8192}, v{vl2}
''')

def poll(G, load, use, n, nreg, A, B, vt, pipe=True, sleep=0):
    a = G.a; l = a.label('L_poll')
    a(f's_mov_b32 {sSPIN}, {SPIN}')
    if not pipe:
        a(f'{l}:')
        load(A)
        a(f's_sub_u32 {sSPIN}, {sSPIN}, 1\ns_cbranch_scc1 L_fail\ns_waitcnt vmcnt(0)')
        use(A)
        G.check(A if isinstance(A, list) else range(A, A + nreg), vt)
        if sleep: a(f's_cbranch_vccz {l}_d\ns_sleep {sleep}\ns_branch {l}\n{l}_d:')
        else: a(f's_cbranch_vccnz {l}')
    else:
        load(A)
        a(f'{l}:')
        load(B)
        a(f's_waitcnt vmcnt({n})')
        use(A); G.check(range(A, A + nreg), vt)
        a(f's_cbranch_vccz {l}_d')
        load(A)
        a(f's_sub_u32 {sSPIN}, {sSPIN}, 1\ns_cbranch_scc1 L_fail\ns_waitcnt vmcnt({n})')
        use(B); G.check(range(B, B + nreg), vt)
        a(f's_cbranch_vccnz {l}')
        a(f'{l}_d:')

def idx_setup(G, v):
    G.a(f'v_mov_b32 v4, 0x4444\nv_mov_b32 v5, 0xeeee\nv_cmp_gt_u32 vcc, 8, v3\ns_nop 1\nv_cndmask_b32 v{v}, v5, v4, vcc')

def ttile_addr(G, vw, vr_):
    G.a(f"""v_lshrrev_b32 v4, 1, v2
v_lshlrev_b32 v4, 3, v4
v_xor_b32 v4, v4, v3
v_lshlrev_b32 v4, 3, v4
v_lshl_add_u32 {vw}, v2, 7, v4
v_lshrrev_b32 v4, 2, v3
v_lshl_add_u32 v4, v2, 2, v4
v_bfe_u32 v5, v3, 1, 1
v_lshlrev_b32 v5, 3, v5
v_xor_b32 v4, v4, v5
v_lshlrev_b32 v4, 3, v4
v_and_b32 v5, 3, v3
v_lshl_add_u32 {vr_}, v5, 7, v4""")

SMF = 'v_smfmac_f32_16x16x64_bf16'
MF32 = 'v_mfma_f32_16x16x32_bf16'
MF16 = 'v_mfma_f32_16x16x16_bf16'

class Proj:
    def __init__(self, G, AB, SBUF, vA, vres, vidx, nbuf=3):
        self.G, self.AB, self.SBUF, self.vA, self.vres, self.vidx, self.nbuf = G, AB, SBUF, vA, vres, vidx, nbuf

class LQ:
    def __init__(self, a): self.a = a; self.n = 0; self.tag = {}; self.done = 0
    def op(self, ins, tag=None):
        self.a(ins); self.n += 1
        if tag is not None: self.tag[tag] = self.n
    def need(self, *tags):
        k = max(self.tag[t] for t in tags if t in self.tag) if any(t in self.tag for t in tags) else 0
        if k > self.done:
            self.a(f's_waitcnt lgkmcnt({min(15, self.n - k)})'); self.done = k
    def drain(self):
        self.a('s_waitcnt lgkmcnt(0)'); self.done = self.n

def roleS(G):
    a = G.a
    a('L_roleS:')
    if G.disabled('S'): return
    (vZ, vIDX, vG4, vG2, vL4, vL2, vA, vRES, vTW, vTR, vPW, vL16, vMW, vMR, vES, vLS, vFL, vKH, vD0, vD1, vA1, vA2, vA3, vPR) = range(8, 32)
    SQ, SK = 16, 124
    vT = 7
    AB = 32
    AQ = 44
    AK = 56
    KT = 68
    KH = 80
    QH = 86
    X = 92
    SB = 108
    Y = 126
    POLA = 98
    W0 = 128
    order = [(0, 0, t) for t in range(3)] + [(0, 1, t) for t in range(3)] + [(1, 0, t) for t in range(3)]
    order += [(0, tau, t) for tau in range(2, 7) for t in range(3)]
    order += [(0, tau, t) for tau in (7, 8, 9) for t in range(2)] + [(0, tau, 2) for tau in (7, 8, 9)] + [(1, 1, t) for t in range(3)]
    order += [(1, tau, t) for tau in (7, 8, 9, 2, 3) for t in range(3)]
    order += [(1, tau, t) for tau in (4, 5, 6) for t in range(2)] + [(1, tau, 2) for tau in (4, 5, 6)]
    assert len(set(order)) == 60
    lds_set = [order[n] for n in (6, 10, 15, 19, 24, 28, 33, 37, 42, 46, 51, 55)]
    nl = len(lds_set); RESW = nl * 2048
    RES, MST, TT, PMT, PMM, STG = 0, 98304, 108544, 120832, 125440, 98304
    assert 4 * RESW <= MST
    loc = {}; nr = 0
    for key in sorted(order):
        if key in lds_set: loc[key] = ('l', lds_set.index(key) * 2048)
        else: loc[key] = ('r', W0 + 8 * nr); nr += 1
    assert W0 + 8 * nr <= 512
    a(f"""
s_mov_b32 {sIDX}, {sROLE}
s_lshl_b32 s66, {sIDX}, 2
s_add_u32 s66, s66, {sW}
s_lshl_b32 s66, s66, 7
s_add_u32 s66, s66, {FL + 128 * F_S}
v_mov_b32 v{vZ}, 0
v_lshlrev_b32 v{vL16}, 4, v1
""")
    G.set_flag('s66', 0, 'v4', f'v{vZ}')
    a(f"""
s_lshl_b32 s64, {sIDX}, 9
s_add_u32 s64, s64, {LE}
s_lshl_b32 s65, {sIDX}, 8
s_add_u32 s65, s65, {LL}
v_mov_b32 v4, -1
v_mov_b32 v5, -1
v_lshlrev_b32 v6, 3, v1
v_lshlrev_b32 v7, 2, v1
s_and_b32 s59, {sW}, 1
s_lshl_b32 s59, s59, {L_LOC}
s_add_u32 s56, s59, s64
s_add_u32 s57, s59, s65
buffer_store_dwordx2 v[4:5], v6, {WS}, s56 offen sc1
buffer_store_dword v4, v7, {WS}, s57 offen sc1
""")
    G.arrive()
    G.srd(12, P_WQ, 640 * 12288); G.srd(16, P_WK, 640 * 12288)
    a(f's_mul_i32 s70, {sW}, 15360\ns_add_u32 s70, s70, {STG}\ns_mul_i32 s71, {sW}, {RESW}\nv_add_u32 v{vRES}, s71, v{vL16}')
    head_slab_setup(G, 32, 35, 's70')
    head_slab_load(G, [(SA, lambda t, tl: loc[0, t, tl]), ('s[16:19]', lambda t, tl: loc[1, t, tl])], 32, 35, 's70', 5, vRES, 44)
    G.await_all()
    a('s_barrier')
    idx_setup(G, vIDX)
    mpoll_setup(G, vG4, vG2, vL4, vL2, sSELM, MST)
    a(f"""
v_xor_b32 v{vA1}, 2048, v{vL4}
v_xor_b32 v{vA2}, 4096, v{vL4}
v_xor_b32 v{vA3}, 6144, v{vL4}
v_add_u32 v{vA}, {MST}, v{vL16}
""")
    a(f"""
v_and_b32 v4, 1, v2
v_lshlrev_b32 v4, 2, v4
v_and_b32 v5, 7, v3
v_sub_u32 v5, v5, v4
v_lshrrev_b32 v6, 2, v3
v_and_b32 v7, 3, v3
v_lshl_add_u32 v6, v6, 1, v7
v_lshrrev_b32 v7, 1, v7
v_lshl_add_u32 v6, v7, 4, v6
v_sub_u32 v6, v6, v4
v_mov_b32 v4, 0x3f80
v_mov_b32 v7, 0x3f800000
""")
    for dst, src in ((SQ, 5), (SK, 6)):
        for hh in range(2):
            a(f"""v_cmp_eq_u32 vcc, {2 * hh}, v{src}
v_cmp_eq_u32 s[56:57], {2 * hh + 1}, v{src}
s_nop 1
v_cndmask_b32 v{dst + hh}, 0, v4, vcc
v_cndmask_b32 v{dst + hh}, v{dst + hh}, v7, s[56:57]""")
    a(f"""
v_cmp_gt_u32 s[74:75], 8, v3
s_mul_i32 s56, {sW}, 1152
s_add_u32 s56, s56, {PMT}
v_lshl_add_u32 v4, v2, 5, v{vL16}
v_add_u32 v{vPW}, s56, v4
v_bfe_u32 v4, v1, 1, 2
v_mul_u32_u24 v4, 288, v4
v_and_b32 v5, 1, v1
v_lshl_add_u32 v4, v5, 7, v4
v_lshrrev_b32 v6, 3, v1
v_lshl_add_u32 v4, v6, 4, v4
v_add_u32 v{vPR}, {PMT}, v4
s_mul_i32 s56, {sW}, 576
s_add_u32 s56, s56, {PMM}
v_mul_u32_u24 v4, 144, v2
v_lshl_add_u32 v4, v3, 3, v4
v_add_u32 v{vMW}, s56, v4
v_and_b32 v4, 3, v1
v_mul_u32_u24 v4, 144, v4
v_lshl_add_u32 v4, v6, 3, v4
v_bfe_u32 v5, v1, 2, 1
v_lshl_add_u32 v4, v5, 6, v4
v_add_u32 v{vMR}, {PMM}, v4
""")
    a(f"""
v_lshrrev_b32 v4, 3, v1
v_bfe_u32 v5, v1, 1, 2
v_and_b32 v6, 1, v1
v_lshlrev_b32 v7, 7, v5
v_lshl_add_u32 v7, v4, 4, v7
v_lshl_add_u32 v{vES}, v6, 3, v7
v_lshl_add_u32 v7, v6, 3, v4
v_lshlrev_b32 v7, 4, v7
v_bfe_u32 v5, v1, 1, 1
v_lshl_add_u32 v7, v5, 3, v7
v_bfe_u32 v{vD0}, v1, 2, 1
v_lshl_add_u32 v{vLS}, v{vD0}, 2, v7
v_lshlrev_b32 v5, 2, v5
v_lshl_add_u32 v5, v6, 1, v5
v_cmp_eq_u32 s[76:77], 1, v{vD0}
v_cmp_eq_u32 vcc, v4, v5
s_nop 1
v_cndmask_b32 v{vD0}, 0, 1.0, vcc
v_add_u32 v5, 1, v5
v_cmp_eq_u32 vcc, v4, v5
s_nop 1
v_cndmask_b32 v{vD1}, 0, 1.0, vcc
""")
    a(f"""
s_cmp_eq_u32 {sW}, 0
s_cselect_b32 s56, 0, 0x40000000
v_add_u32 v{vES}, s56, v{vES}
v_add_u32 v{vLS}, s56, v{vLS}
v_min_u32 v4, 2, v1
s_mul_i32 s56, {sIDX}, 3
s_add_u32 s56, s56, {F_XW + 96 + FL // 128}
v_add_lshl_u32 v{vFL}, v4, s56, 7
s_lshr_b32 s56, {sW}, 1
s_lshl_b32 s57, s56, 1
s_add_u32 s57, s57, {sW}
s_add_u32 s56, s56, 2
s_and_b32 s58, {sW}, 1
s_lshl_b32 s58, s58, 3
v_add_u32 v{vKH}, s58, v{vL16}
s_mul_i32 s58, {sIDX}, 12288
s_add_u32 s58, s58, {QT + QKV_SZ}
s_lshl_b32 s67, s57, 11
s_add_u32 s67, s67, s58
s_lshl_b32 s68, s56, 11
s_add_u32 s68, s68, s58
s_mul_i32 s58, {sIDX}, 6144
s_add_u32 s58, s58, {KM}
s_lshl_b32 s69, s57, 10
s_add_u32 s69, s69, s58
s_lshl_b32 s70, s56, 10
s_add_u32 s70, s70, s58
s_lshr_b32 s56, {sIDX}, 3
s_lshl_b32 s79, s56, 7
s_add_u32 s79, s79, {HC}
s_lshl_b32 s71, s56, 14
s_add_u32 s71, s71, {LM}
s_mov_b32 s78, {f2u(C_SCALE):#x}
s_mov_b32 {sSEG}, 0
s_mov_b32 s73, 1
""")
    ktl = [f'buffer_load_dwordx4 v[{KT}:{KT+3}], v{vL16}, {WS}, s67 offen sc1',
           f'buffer_load_dwordx4 v[{KT+4}:{KT+7}], v{vL16}, {WS}, s67 offen offset:1024 sc1\nADV s67 s67 {L_Q}',
           f'buffer_load_dwordx2 v[{KT+8}:{KT+9}], v{vKH}, {WS}, s68 offen sc1',
           f'buffer_load_dwordx2 v[{KT+10}:{KT+11}], v{vKH}, {WS}, s68 offen offset:1024 sc1\nADV s68 s68 {L_Q}']
    if G.diag & 2: ktl = []
    else: G.wait_flags(f'v{vFL}', 'v4', 's73')
    for t in ktl: a(t)
    def main():
        a('L_s_loop:')
        G.tick(0)
        q = LQ(a)
        def wread(q, i):
            b = SB + (i % 2) * 8
            q.op(f'ds_read_b128 {vr(b, 4)}, v{vRES} offset:{i * 2048}')
            q.op(f'ds_read_b128 {vr(b + 4, 4)}, v{vRES} offset:{i * 2048 + 1024}', ('w', i))
        wread(q, 0); wread(q, 1)
        for i in range(24): a(f'v_mov_b32 v{AQ + i}, 0')
        q.drain()
        aseq = [2, 3, 4, 5, 6, 7, 8, 9, 2, 3, 4, 5, 6]
        slot1 = {t: (t - 2) % 3 for t in range(2, 10)}
        slot2 = dict(slot1); slot2.update({t: (8 + t - 2) % 3 for t in range(2, 7)})
        def ard(q, pos):
            t = aseq[pos]
            ad, off = ((vA1, vA2, vA3)[(t >> 1) - 1], (t & 1) * 1024) if t < 8 else (vA, t * 1024)
            q.op(f'ds_read_b128 {vr(AB + (pos % 3) * 4, 4)}, v{ad} offset:{off}', ('a', pos))
        def smf(q, n, own=POLA):
            mtx, tau, tl = order[n]
            kind, d = loc[mtx, tau, tl]
            if kind == 'l':
                i = d // 2048; d = SB + (i % 2) * 8; q.need(('w', i))
            if tau < 2: A = own + 4 * tau
            else:
                pos = tau - 2 if (mtx == 0 or tau >= 7) else 8 + tau - 2
                q.need(('a', pos)); A = AB + (pos % 3) * 4
            a(f'{SMF} {vr((AQ, AK)[mtx] + 4 * tl, 4)}, {vr(A, 4)}, {vr(d, 8)}, v{vIDX}')
            if kind == 'l' and i + 2 < nl: wread(q, i + 2)
        def mload(b):
            a(f"""buffer_load_dwordx4 v[{b}:{b+3}], v{vG4}, {WS}, s71 offen sc1
buffer_load_dwordx4 v[{b+4}:{b+7}], v{vG4}, {WS}, s71 offen offset:1024 sc1
buffer_load_dwordx2 v[{b+8}:{b+9}], v{vG2}, {WS}, s71 offen sc1""")
        def mwrite(b):
            a(f"""ds_write_b128 v{vL4}, v[{b}:{b+3}]
ds_write_b128 v{vL4}, v[{b+4}:{b+7}] offset:1024
ds_write_b64 v{vL2}, v[{b+8}:{b+9}]""")
        import copy
        def phase0(b, q0, fail):
            a(f'v_max3_u32 v{vT}, v{b+3}, v{b+7}, v{b+9}\nv_cmp_eq_u32 vcc, -1, v{vT}\ns_cbranch_vccnz {fail}')
            G.tick(1)
            wr = [f'ds_write_b128 v{vL4}, v[{b}:{b+3}]', f'ds_write_b128 v{vL4}, v[{b+4}:{b+7}] offset:1024', f'ds_write_b64 v{vL2}, v[{b+8}:{b+9}]']
            ck = [f'v_max3_u32 v{vT}, v{b}, v{b+1}, v{b+2}', f'v_max3_u32 v{vT}, v{vT}, v{b+4}, v{b+5}', f'v_max3_u32 v{vT}, v{vT}, v{b+6}, v{b+8}', f'v_cmp_eq_u32 vcc, -1, v{vT}']
            for n in range(9):
                smf(q0, n, own=b)
                if n < 3: q0.op(wr[n], 'mw')
                if n < 4: a(ck[n])
                if n == 4: a(f's_cbranch_vccnz {fail}_z')
                if n == G.sb1:
                    q0.need('mw'); a('s_barrier')
                    ard(q0, 0); ard(q0, 1); ard(q0, 2)
        def rezero(lab):
            a(f'{lab}_z:\ns_nop 7')
            for i in range(12): a(f'v_mov_b32 v{AQ + i}, 0')
        G.wait_flags(f'v{vZ}', 'v4', sSEG, sleep=0, soff='s79', first=lambda: G.set_flag('s66', sSEG, 'v5', f'v{vZ}', 'LOCAL'))
        G.tick(6)
        a(f's_mov_b32 {sSPIN}, {SPIN}\ns_branch L_s_poll')
        rezero('L_s_poll')
        a('L_s_poll:')
        mload(POLA)
        a(f's_sub_u32 {sSPIN}, {sSPIN}, 1\ns_cbranch_scc1 L_fail\ns_waitcnt vmcnt(0)')
        phase0(POLA, q, 'L_s_poll')
        a('L_s_main:')
        fill = {n: [] for n in range(60)}
        V = lambda s_: (lambda: a(s_))
        last_use = {}
        for n in range(9, 60):
            mtx, tau, tl = order[n]
            if tau < 2: continue
            pos = tau - 2 if (mtx == 0 or tau >= 7) else 8 + tau - 2
            last_use[pos] = n
        for pos in range(3, len(aseq)): fill[last_use[pos - 3]].append(lambda pos=pos: ard(q, pos))
        def cvt2(ACC, tl, dst):
            s_ = ACC + 4 * tl
            return [V(f'v_cvt_pk_bf16_f32 v{dst}, v{s_}, v{s_+1}'), V(f'v_cvt_pk_bf16_f32 v{dst+1}, v{s_+2}, v{s_+3}')]
        def tmf(ACC, tl, src, sel): return V(f'{MF16} {vr(ACC + 4 * tl, 4)}, v[{src}:{src+1}], v[{sel}:{sel+1}], 0')
        fill[12].append(V(f'buffer_load_dword v2, v{vFL}, {WS}, 0 offen sc1'))
        fill[31] += cvt2(AQ, 0, X)
        fill[32] += [V('s_nop 0'), tmf(AQ, 0, X, SQ)] + cvt2(AQ, 1, X + 2)
        fill[33] += [V('s_nop 0'), tmf(AQ, 1, X + 2, SQ)] + cvt2(AQ, 2, X + 4)
        fill[34] += [V('s_nop 0'), tmf(AQ, 2, X + 4, SQ)] + cvt2(AQ, 0, QH)
        fill[35] += cvt2(AQ, 1, QH + 2)
        fill[36] += [V('s_nop 0')] + [V(f'{MF32} {vr(AQ + 4*mt, 4)}, v[{KT + 4*mt}:{KT + 4*mt + 3}], v[{QH}:{QH+3}], 0') for mt in range(2)] + cvt2(AQ, 2, QH + 4)
        fill[38] += [V(f'{MF16} {vr(AQ + 4*mt, 4)}, v[{KT + 8 + 2*mt}:{KT + 9 + 2*mt}], v[{QH+4}:{QH+5}], {vr(AQ + 4*mt, 4)}') for mt in range(2)]
        fill[41] += [V(f'v_cndmask_b32 v{X + r}, v{AQ + 4 + r}, v{AQ + r}, s[74:75]') for r in range(4)]
        fill[41].append(lambda: q.op(f'ds_write_b128 v{vPW}, v[{X}:{X+3}]', 'pw'))
        def b2():
            q.need('pw'); a('s_barrier'); G.tick(2)
            for w in range(4): q.op(f'ds_read_b128 v[{X + 4*w}:{X + 4*w + 3}], v{vPR} offset:{1152 * w}', ('p', w))
        fill[45].append(b2)
        add = lambda d, x, y: V(f'v_add_f32 v{d}, v{x}, v{y}')
        DP = ['quad_perm:[1,0,3,2]', 'quad_perm:[2,3,0,1]', 'row_half_mirror']
        dpt = lambda op, v, k: f'{op}_dpp {v}, {v}, {v} {DP[k]} row_mask:0xf bank_mask:0xf'
        dpp = lambda op, v, k: a(dpt(op, v, k))
        ex = lambda r: V(f'v_exp_f32 v{X+r}, v{X+r}')
        fill[49] += [lambda: q.need(('p', 1))] + [add(X + r, X + r, X + 4 + r) for r in range(4)]
        fill[50] += [lambda: q.need(('p', 3))] + [add(X + 8 + r, X + 8 + r, X + 12 + r) for r in range(4)] + [add(X + r, X + r, X + 8 + r) for r in range(4)]
        fill[50] += [V(f'v_max3_f32 v5, v{X}, v{X+1}, v{X+2}'), V(f'v_max_f32 v5, v5, v{X+3}')]
        fill[51] += [V('s_nop 0'), V(dpt('v_max_f32', 'v5', 0))]
        fill[52] += [V('s_nop 0'), V(dpt('v_max_f32', 'v5', 1))]
        fill[53] += [V('s_nop 0'), V(dpt('v_max_f32', 'v5', 2)), V('v_mul_f32 v5, s78, v5')] + [V(f'v_fma_f32 v{X+r}, v{X+r}, s78, -v5') for r in range(4)] + [ex(r) for r in range(4)]
        fill[54] += [V(f'v_cvt_pk_bf16_f32 v{X+4}, v{X}, v{X+1}\nv_cvt_pk_bf16_f32 v{X+5}, v{X+2}, v{X+3}\nbuffer_store_dwordx2 v[{X+4}:{X+5}], v{vES}, {WS}, s64 offen LOCAL')]
        fill[54].append(lambda: G.tick(7))
        fill[55] += [add(6, X, X + 1)]
        fill[56] += [add(4, X + 2, X + 3)]
        fill[57] += [add(6, 6, 4)]
        fill[58] += cvt2(AK, 0, X + 8)
        for n in range(9, 60):
            smf(q, n)
            for f in fill[n]: f()
        G.tick(3)
        S0 = AQ + 8; d = vr(S0, 4)
        run = lambda fs: [f() for f in fs]
        run(cvt2(AK, 1, X + 10) + [tmf(AK, 0, X + 8, SK)])
        dpp('v_add_f32', 'v6', 0)
        run([tmf(AK, 1, X + 10, SK)])
        a(f's_cmp_eq_u32 {sW}, 0')
        dpp('v_add_f32', 'v6', 1)
        a('s_nop 0')
        run(cvt2(AK, 2, Y))
        dpp('v_add_f32', 'v6', 2)
        a('s_nop 0')
        run([tmf(AK, 2, Y, SK)] + cvt2(AK, 0, KH) + cvt2(AK, 1, KH + 2))
        a(f's_nop 1\n{MF32} {d}, v[{KH}:{KH+3}], v[{QH}:{QH+3}], 0\ns_nop 0')
        run(cvt2(AK, 2, KH + 4))
        a(f"""s_nop 2
{MF16} {d}, v[{KH+4}:{KH+5}], v[{QH+4}:{QH+5}], {d}
s_nop 7
ds_write_b64 v{vMW}, v[{S0}:{S0+1}]
s_waitcnt lgkmcnt(0)
s_barrier
""")
        G.tick(4)
        a(f"""s_cbranch_scc0 L_s_nolate
ds_read2_b64 v[{X+8}:{X+11}], v{vMR} offset0:0 offset1:72
ds_read2_b64 v[{X+12}:{X+15}], v{vMR} offset0:144 offset1:216""")
        Z = X + 8
        a(f"""s_waitcnt lgkmcnt(1)
v_add_f32 v{Z}, v{Z}, v{Z+2}
v_add_f32 v{Z+1}, v{Z+1}, v{Z+3}
s_waitcnt lgkmcnt(0)
v_add_f32 v{Z+4}, v{Z+4}, v{Z+6}
v_add_f32 v{Z+5}, v{Z+5}, v{Z+7}
v_add_f32 v{Z}, v{Z}, v{Z+4}
v_add_f32 v{Z+1}, v{Z+1}, v{Z+5}
v_max_f32 v{Z+2}, v{Z}, v{Z+1}
s_nop 1""")
        dpp('v_max_f32', f'v{Z+2}', 0); a('s_nop 1'); dpp('v_max_f32', f'v{Z+2}', 1)
        a(f"""v_mul_f32 v{Z+2}, s78, v{Z+2}
v_max_f32 v{Z+2}, v{Z+2}, v5
v_fma_f32 v{Z}, v{Z}, s78, -v{Z+2}
v_fma_f32 v{Z+1}, v{Z+1}, s78, -v{Z+2}
v_sub_f32 v{Z+3}, v5, v{Z+2}
v_exp_f32 v{Z}, v{Z}
v_exp_f32 v{Z+1}, v{Z+1}
v_exp_f32 v{Z+3}, v{Z+3}
v_add_f32 v{Z+4}, v{Z}, v{Z+1}
v_mul_f32 v{Z+5}, v{vD0}, v{Z+3}
v_mul_f32 v{Z+6}, v{vD1}, v{Z+3}""")
        dpp('v_add_f32', f'v{Z+4}', 0)
        a(f'v_cndmask_b32 v{Z}, v{Z}, v{Z+5}, s[76:77]\nv_cndmask_b32 v{Z+1}, v{Z+1}, v{Z+6}, s[76:77]')
        dpp('v_add_f32', f'v{Z+4}', 1)
        a(f"""v_fmac_f32 v{Z+4}, v6, v{Z+3}
v_rcp_f32 v{Z+4}, v{Z+4}
s_nop 0
v_mul_f32 v{Z}, v{Z}, v{Z+4}
v_mul_f32 v{Z+1}, v{Z+1}, v{Z+4}
v_cvt_pk_bf16_f32 v{Z}, v{Z}, v{Z+1}
v_min_u32 v{Z}, -2, v{Z}
buffer_store_dword v{Z}, v{vLS}, {WS}, s65 offen LOCAL
""")
        G.tick(5)
        a(f"""L_s_nolate:
s_barrier
v_mov_b32 v{X}, -1
v_mov_b32 v{X+1}, -1
ADV s56 s64 {L_LOC} 2
ADV s57 s65 {L_LOC} 2
buffer_store_dwordx2 v[{X}:{X+1}], v{vES}, {WS}, s56 offen LOCAL
buffer_store_dword v{X}, v{vLS}, {WS}, s57 offen LOCAL
buffer_store_dwordx4 v[{KH}:{KH+3}], v{vL16}, {WS}, s69 offen LOCAL
buffer_store_dwordx2 v[{KH+4}:{KH+5}], v{vKH}, {WS}, s70 offen LOCAL
s_add_u32 s73, {sSEG}, 2
s_min_u32 s73, s73, {NSEG}
s_waitcnt vmcnt(5)
v_cmp_gt_u32 vcc, {0 if G.diag & 2 else 's73'}, v2
s_cbranch_vccnz L_s_kwait
L_s_kok:
""")
        for t in ktl: a(t)
        a(f"""ADV s69 s69 {L_KM}
ADV s70 s70 {L_KM}
ADV s64 s64 {L_LOC}
ADV s65 s65 {L_LOC}
ADV s71 s71 {L_LOC}
""")
        G.flush(8, vt=(4, 7))
        G.stamp(sSEG, vt=(4, 7))
        a(f's_add_u32 {sSEG}, {sSEG}, 1\ns_cmp_lt_u32 {sSEG}, {NSEG}\ns_cbranch_scc1 L_s_loop\ns_waitcnt vmcnt(0)')
        G.set_flag('s66', sSEG, 'v4', f'v{vZ}', 'LOCAL')
        G.stamp(3)
        a('s_branch L_end\nL_s_kwait:')
        G.wait_flags(f'v{vFL}', 'v2', 's73')
        a('s_branch L_s_kok')
    G.two_flavours('s', main)

def roleV(G):
    a = G.a
    a('L_roleV:')
    if G.disabled('V'): return
    vT, vIDX, vG4, vG2, vL4, vL2, vA, vRES, vTW, vTW3, vL16, vZS, vA1, vA2, vA3 = range(8, 23)
    SEL = 0
    AB = 24
    AC = 36
    POL = 48
    X = 60
    SB = 64
    W0 = 80
    order = [(tau, t) for tau in range(7) for t in range(3)] + [(tau, t) for tau in (7, 8, 9) for t in range(2)] + [(tau, 2) for tau in (7, 8, 9)]
    lds_set = [order[n] for n in (5, 9, 14, 18, 23, 27)]
    RESW = len(lds_set) * 2048
    RES, MST, TT, STG = 0, 49152, 59392, 49152
    loc = {}; nr = 0
    wo = {}
    for t3 in range(3):
        for c in range(10): wo[t3, c] = W0 + 8 * nr; nr += 1
    for key in order:
        if key in lds_set: loc[key] = ('l', lds_set.index(key) * 2048)
        else: loc[key] = ('r', W0 + 8 * nr); nr += 1
    assert W0 + 8 * nr <= 512
    a(f'''
s_sub_u32 {sIDX}, {sROLE}, {R_V}
v_lshlrev_b32 v{vL16}, 4, v1
v_and_b32 v4, 31, v1
v_lshlrev_b32 v4, 3, v4
v_lshrrev_b32 v5, 5, v1
v_lshl_add_u32 v{vZS}, v5, 13, v4
s_mul_i32 s64, {sW}, 81920
s_lshl_b32 s56, {sIDX}, 8
s_add_u32 s64, s64, s56
s_add_u32 s64, s64, {LZ}
v_mov_b32 v4, -1
v_mov_b32 v5, -1
''')
    for extra in (0, 1 << L_LOC):
        for p in range(5):
            a(f's_add_u32 s56, s64, {extra + p * 16384}\nbuffer_store_dwordx2 v[4:5], v{vZS}, {WS}, s56 offen sc1')
    G.arrive()
    G.srd(12, P_WO, 32 * 245760); G.srd(16, P_WV, 640 * 12288)
    a(f's_mul_i32 s57, {sW}, 320\ns_mul_i32 s72, {sIDX}, 245760\ns_mul_i32 s70, {sW}, 40960')
    G.slab_voff(24, 5, 20, 1280, 205, 12, 's57')
    a('''v_and_b32 v4, 1, v2
v_lshlrev_b32 v4, 5, v4
v_lshrrev_b32 v5, 3, v3
v_lshl_add_u32 v4, v5, 4, v4
v_lshrrev_b32 v5, 1, v2
v_lshl_add_u32 v4, v5, 2, v4
v_bfe_u32 v5, v3, 2, 1
v_add_u32 v4, v4, v5
v_mul_u32_u24 v4, 320, v4
v_and_b32 v5, 3, v3
v_lshl_add_u32 v4, v5, 3, v4
v_add_u32 v29, s70, v4''')
    def issue(b):
        for hh in range(4):
            for i in range(5): G.dma(f'v{24+i}', SA, 's72', 's70', (b % 2) * 20480 + hh * 5120 + i * 1024)
            a('s_add_u32 s72, s72, 20480')
    def consume(b):
        for c in range(10):
            for q2 in range(4):
                a(f'ds_read_b64_tr_b16 {vr(wo[b, c] + 2 * q2, 2)}, v29 offset:{(b % 2) * 20480 + (8 * (q2 >> 1) + 2 * (q2 & 1)) * 320 + c * 32}')
    G.stream_load(3, 20, 2, issue, consume)
    a('s_barrier')
    a(f's_mul_i32 s70, {sW}, 27648\ns_add_u32 s70, s70, {STG}\ns_mul_i32 s71, {sW}, {RESW}\nv_add_u32 v{vRES}, s71, v{vL16}')
    head_slab_setup(G, 24, 27, 's70')
    head_slab_load(G, [('s[16:19]', lambda t, tl: loc[t, tl])], 24, 27, 's70', 9, vRES, 36)
    G.await_all()
    a('s_barrier')
    idx_setup(G, vIDX)
    mpoll_setup(G, vG4, vG2, vL4, vL2, sSELV, MST)
    a(f'''
v_add_u32 v{vA}, {MST}, v{vL16}
s_lshr_b32 s56, {sW}, 1
s_lshl_b32 s57, s56, 11
s_and_b32 s58, {sW}, 1
s_lshl_b32 s59, s58, 3
s_add_u32 s57, s57, s59
s_add_u32 s57, s57, {TT}
v_add_u32 v{vTW}, s57, v{vL16}
s_lshl_b32 s56, s56, 3
s_add_u32 s56, s56, {TT + 1024}
v_add_u32 v{vTW3}, s56, v{vL16}
v_lshrrev_b32 v4, 3, v3
v_cmp_eq_u32 s[76:77], s58, v4
s_lshr_b32 s56, {sIDX}, 3
s_lshl_b32 s79, s56, 7
s_add_u32 s79, s79, {HC}
s_lshl_b32 s71, s56, 14
s_add_u32 s71, s71, {LM}
v_mov_b32 v23, 0
s_mov_b32 {sSEG}, 0
v_and_b32 v4, 1, v2
v_lshlrev_b32 v4, 2, v4
v_sub_u32 v5, v3, v4
v_mov_b32 v6, 0x3f80
v_mov_b32 v7, 0x3f800000
''')
    for hh in range(4):
        k0 = 2 * (hh & 1) + 8 * (hh >> 1)
        a(f'''v_cmp_eq_u32 vcc, {k0}, v5
v_cmp_eq_u32 s[56:57], {k0 + 1}, v5
s_nop 1
v_cndmask_b32 v{SEL + hh}, 0, v6, vcc
v_cndmask_b32 v{SEL + hh}, v{SEL + hh}, v7, s[56:57]''')
    a(f'''s_lshl_b32 s56, {sIDX}, 2
s_add_u32 s56, s56, {sW}
s_mul_i32 s65, s56, 10240
s_add_u32 s65, s65, {VO + 2 * L_VO}
s_mul_i32 s66, s56, 3072
s_add_u32 s66, s66, {QT + QKV_SZ + L_Q}''')
    nl = len(lds_set)
    a(f'v_xor_b32 v{vA1}, 2048, v{vL4}\nv_xor_b32 v{vA2}, 4096, v{vL4}\nv_xor_b32 v{vA3}, 6144, v{vL4}')
    def main():
        a('L_v_loop:')
        G.tick(0)
        q = LQ(a)
        def wread(i):
            b = SB + (i % 2) * 8
            q.op(f'ds_read_b128 {vr(b, 4)}, v{vRES} offset:{i * 2048}')
            q.op(f'ds_read_b128 {vr(b + 4, 4)}, v{vRES} offset:{i * 2048 + 1024}', ('w', i))
        wread(0); wread(1)
        for i in range(12): a(f'v_mov_b32 v{AC + i}, 0')
        q.drain()
        def mload(b):
            a(f"""buffer_load_dwordx4 v[{b}:{b+3}], v{vG4}, {WS}, s71 offen sc1
buffer_load_dwordx4 v[{b+4}:{b+7}], v{vG4}, {WS}, s71 offen offset:1024 sc1
buffer_load_dwordx2 v[{b+8}:{b+9}], v{vG2}, {WS}, s71 offen sc1""")
        def mwrite(b):
            a(f"""ds_write_b128 v{vL4}, v[{b}:{b+3}]
ds_write_b128 v{vL4}, v[{b+4}:{b+7}] offset:1024
ds_write_b64 v{vL2}, v[{b+8}:{b+9}]""")
        G.wait_flags('v23', 'v4', sSEG, sleep=0, soff='s79')
        poll(G, mload, lambda b: None, 3, 10, POL, None, f'v{vT}', pipe=False)
        G.tick(1)
        wr = [f'ds_write_b128 v{vL4}, v[{POL}:{POL+3}]', f'ds_write_b128 v{vL4}, v[{POL+4}:{POL+7}] offset:1024', f'ds_write_b64 v{vL2}, v[{POL+8}:{POL+9}]']
        def ard(t):
            ad, off = ((vA1, vA2, vA3)[(t >> 1) - 1], (t & 1) * 1024) if t < 8 else (vA, t * 1024)
            q.op(f'ds_read_b128 {vr(AB + (t % 3) * 4, 4)}, v{ad} offset:{off}', ('a', t))
        for n, (tau, tl) in enumerate(order):
            kind, d = loc[tau, tl]
            if kind == 'l':
                i = d // 2048; d = SB + (i % 2) * 8; q.need(('w', i))
            if tau < 2: A = POL + 4 * tau
            else:
                q.need(('a', tau)); A = AB + (tau % 3) * 4
            a(f'{SMF} {vr(AC + 4 * tl, 4)}, {vr(A, 4)}, {vr(d, 8)}, v{vIDX}')
            if kind == 'l' and i + 2 < nl: wread(i + 2)
            if n < 3: q.op(wr[n], 'mw')
            if n == 4:
                q.need('mw'); a('s_barrier'); ard(2); ard(3); ard(4)
            if tl == 2 and tau >= 2 and tau + 3 < 10: ard(tau + 3)
            if 10 <= n < 18: a(f'v_mov_b32 v{AC + 16 + n - 10}, 0')
            if G.pf:
                ld = lambda sr: f'buffer_load_dword v{vT}, v6, {WS}, {sr} offen sc1'
                if n == 7: a(f'v_lshlrev_b32 v6, 3, v{vL16}')
                if n == 8: a(ld('s65') + '\ns_add_u32 s56, s65, 8192')
                if n == 9: a('s_mov_b64 exec, 0xffff\n' + ld('s56') + '\ns_mov_b64 exec, -1')
                if n == 19: a('s_mov_b64 exec, 0xffffff\n' + ld('s66') + '\ns_mov_b64 exec, -1')
                if n == 23: a(f'ADV s65 s65 {L_VO}\nADV s66 s66 {L_Q}')
        cv = lambda d, s_: f'v_cvt_pk_bf16_f32 v{d}, v{s_}, v{s_+1}'
        sel = f'v[{SEL}:{SEL+3}]'
        for i in range(4): a(cv(X + i, AC + 2 * i))
        a(f's_nop 1\n{MF32} v[{AC}:{AC+3}], v[{X}:{X+3}], {sel}, 0\ns_nop 1')
        a(cv(4, AC + 8) + '\n' + cv(5, AC + 10) + '\nv_mov_b32 v6, v4\nv_mov_b32 v7, v5\ns_nop 1')
        a(f'{MF32} v[{AC+4}:{AC+7}], v[4:7], {sel}, 0')
        a(cv(X, AC) + '\n' + cv(X + 1, AC + 2) + f'\nds_write_b64 v{vTW}, v[{X}:{X+1}]')
        for i in range(8, 13): a(f'v_mov_b32 v{AC + i}, 0')
        a(cv(X + 2, AC + 4) + '\n' + cv(X + 3, AC + 6))
        a(f's_mov_b64 exec, s[76:77]\nds_write_b64 v{vTW3}, v[{X+2}:{X+3}]\ns_mov_b64 exec, -1')
        for i in range(13, 16): a(f'v_mov_b32 v{AC + i}, 0')
        a('s_waitcnt lgkmcnt(0)\ns_barrier')
        G.tick(2)
        for t3 in range(3): a(f'ds_read_b128 v[{AB + 4*t3}:{AB + 4*t3 + 3}], v{vA} offset:{TT - MST + 1024 * t3}')
        for i in range(8): a(f'v_mov_b32 v{AC + i}, 0')
        grp = [2, 1, 0, 2, 1]
        sched = {}
        def at(n, txt): sched.setdefault(n, []).append(txt)
        for p in range(5):
            A = AC + grp[p] * 8; T_ = (X, SB)[p & 1]; F = SB + 4 + (p & 1) * 4; d = SB + 12 + (p & 1) * 2
            n0 = 6 * p + 8
            at(n0, cv(T_, A)); at(n0, cv(T_ + 1, A + 2)); at(n0 + 1, cv(T_ + 2, A + 4)); at(n0 + 1, cv(T_ + 3, A + 6))
            at(n0 + 2, f's_nop 0\n{MF32} v[{F}:{F+3}], {sel}, v[{T_}:{T_+3}], 0')
            if p + 3 < 5:
                for i in range(8): at(n0 + 2 + i // 2, f'v_mov_b32 v{A + i}, 0')
            at(n0 + 4, f's_add_u32 s56, s64, {p * 16384}')
            at(n0 + 5, cv(d, F)); at(n0 + 5, cv(d + 1, F + 2))
            at(n0 + 5, f'buffer_store_dwordx2 v[{d}:{d+1}], v{vZS}, {WS}, s56 offen LOCAL')
        n = 0
        for p in range(5):
            A = AC + grp[p] * 8
            for t3 in range(3):
                if p == 0: a(f's_waitcnt lgkmcnt({2 - t3})')
                for qq in range(2):
                    a(f'{SMF} {vr(A + 4 * qq, 4)}, {vr(AB + 4 * t3, 4)}, {vr(wo[t3, 2 * p + qq], 8)}, v{vIDX}')
                    for t in sched.pop(n, []): a(t)
                    n += 1
        for n in range(30, 40):
            a('s_nop 2')
            for t in sched.pop(n, []): a(t)
            if not sched: break
        G.tick(3)
        a('v_mov_b32 v4, -1\nv_mov_b32 v5, -1')
        a(f'ADV s57 s64 {L_LOC} 2')
        for p in range(5):
            a(f's_add_u32 s56, s57, {p * 16384}\nbuffer_store_dwordx2 v[4:5], v{vZS}, {WS}, s56 offen LOCAL')
        G.flush(4, vt=(4, 5))
        G.stamp(sSEG, vt=(4, 5))
        a(f'''ADV s64 s64 {L_LOC}
ADV s71 s71 {L_LOC}
s_add_u32 {sSEG}, {sSEG}, 1
s_cmp_lt_u32 {sSEG}, {NSEG}
s_cbranch_scc1 L_v_loop''')
        G.stamp(3)
        a('s_branch L_end')
    G.two_flavours('v', main)


def roleT(G):
    a = G.a
    a('L_roleT:')
    if G.disabled('T'): return
    vZ, vL16, vFQ, vFS, vPM, vNI, vPT = 8, 9, 10, 11, 12, 13, 14
    DA, DB, DM = 16, 20, 24
    X = 28
    MB_ = 64
    FRG = 256
    a(f"""
s_sub_u32 {sIDX}, {sROLE}, {R_T}
s_lshl_b32 s66, {sIDX}, 2
s_add_u32 s66, s66, {sW}
s_lshr_b32 s64, s66, 1
s_and_b32 s65, {sW}, 1
s_lshl_b32 s66, s66, 7
s_add_u32 s66, s66, {FL + 128 * F_T}
v_mov_b32 v{vZ}, 0
""")
    G.set_flag('s66', 0, 'v4', f'v{vZ}')
    if G.probe:
        a(f'''
s_and_b32 s57, {sW}, 1
s_lshl_b32 s56, s57, 13
s_lshl_b32 s58, s64, 8
s_add_u32 s56, s56, s58
s_add_u32 s56, s56, {PG_PROBE}
s_getreg_b32 s58, hwreg(HW_REG_XCC_ID)
s_bfe_u32 s58, s58, 0x10002
s_xor_b32 s57, s57, s58
s_lshl_b32 s57, s57, 2
s_mov_b32 s58, 65535
s_mov_b32 s59, 0
s_waitcnt vmcnt(0)
L_t_probe:
s_memtime s[68:69]
s_waitcnt lgkmcnt(0)
buffer_store_dword v{vZ}, v{vZ}, {WS}, s56 offen sc1
s_waitcnt vmcnt(0)
s_memtime s[70:71]
s_waitcnt lgkmcnt(0)
s_sub_u32 s67, s70, s68
s_min_u32 s58, s58, s67
s_add_u32 s59, s59, 1
s_cmp_lt_u32 s59, 10
s_cbranch_scc1 L_t_probe
s_sub_u32 s58, 65535, s58
v_mov_b32 v4, s58
s_mov_b64 exec, 1
buffer_atomic_umax v4, v{vZ}, {DBG}, s57 offen offset:16
s_mov_b64 exec, -1
''')
    G.arrive()
    if G.diag & 2:
        a('s_branch L_end'); return
    G.await_all()
    a(f"""
v_lshlrev_b32 v{vL16}, 4, v1
v_min_u32 v4, 5, v1
v_add_u32 v5, 93, v4
v_cmp_gt_u32 vcc, 3, v4
s_mul_i32 s56, s64, 3
s_add_u32 s56, s56, {F_XW + FL // 128}
v_cndmask_b32 v4, v5, v4, vcc
v_add_lshl_u32 v{vFQ}, v4, s56, 7
v_and_b32 v4, 3, v1
s_lshl_b32 s56, s64, 2
s_add_u32 s56, s56, {F_S + FL // 128}
v_add_lshl_u32 v{vFS}, v4, s56, 7
v_lshrrev_b32 v4, 1, v2
v_lshl_add_u32 v4, v4, 4, v3
v_lshlrev_b32 v4, 4, v4
v_and_b32 v5, 1, v2
v_lshl_add_u32 v{vPM}, v5, 2, v4
v_mov_b32 v{vNI}, 0xff800000
s_mul_i32 s67, s64, 12288
s_add_u32 s67, s67, {QT}
s_lshl_b32 s74, s65, 10
s_mul_i32 s68, s64, 6144
s_add_u32 s68, s68, {KM}
s_and_b32 s59, s64, 7
s_lshl_b32 s69, s59, 10
s_lshr_b32 s56, s59, 1
s_lshl_b32 s56, s56, 10
s_and_b32 s57, s59, 1
s_lshl_b32 s58, s57, 3
s_add_u32 s56, s56, s58
s_add_u32 s56, s56, 8192
s_cmp_eq_u32 s65, 0
s_cselect_b32 s69, s56, s69
s_lshl_b32 s70, s65, 11
s_lshr_b32 s56, s59, 2
s_lshl_b32 s56, s56, 10
s_add_u32 s70, s70, s56
s_lshl_b32 s57, s57, 9
s_add_u32 s70, s70, s57
s_bfe_u32 s56, s59, 0x10001
s_lshl_b32 s56, s56, 3
s_add_u32 s70, s70, s56
s_add_u32 s70, s70, 12288
s_lshr_b32 s56, s64, 3
s_lshl_b32 s56, s56, 14
s_add_u32 s56, s56, {PT}
s_add_u32 s69, s69, s56
s_add_u32 s70, s70, s56
s_mov_b32 s78, {f2u(C_SCALE):#x}
v_lshlrev_b32 v4, 2, v2
s_lshl_b32 s56, s65, 4
v_add_u32 v6, s56, v3
""")
    for r in range(4):
        a(f'v_add_u32 v5, {r}, v4\nv_cmp_le_u32 s[{24 + 2*r}:{25 + 2*r}], v5, v6\nv_add_u32 v5, {16 + r}, v4\nv_cmp_le_u32 s[{32 + 2*r}:{33 + 2*r}], v5, v6')
    a(f's_mov_b32 {sSEG}, 0\ns_mov_b32 s73, 1')
    fr = lambda buf, kind, eb: FRG + 72 * buf + (kind * 6 + eb) * 4
    def qkload(buf):
        l = a.label('L_t_skip')
        for kind in range(3):
            if kind == 2: a(f's_cmp_eq_u32 s65, 0\ns_cbranch_scc1 {l}')
            for j in range(3):
                if kind == 0: a(f's_add_u32 s56, s67, s74\ns_add_u32 s56, s56, {j * 4096}')
                else: a(f's_add_u32 s56, s67, {QKV_SZ + j * 4096 + (kind - 1) * 1024}')
                for i in range(2):
                    a(f'buffer_load_dwordx4 {vr(fr(buf, kind, 2 * j + i), 4)}, v{vL16}, {WS}, s56 offen offset:{i * 2048} sc1')
        a(f'{l}:\nADV s67 s67 {L_Q}')
    G.wait_flags(f'v{vFQ}', 'v4', 's73')
    qkload(0)
    def main():
        a('L_t_loop:')
        for buf in range(2):
            G.tick(0)
            a(f's_add_u32 s73, {sSEG}, 2\ns_min_u32 s73, s73, {NSEG}\ns_waitcnt vmcnt(0)')
            G.set_flag('s66', sSEG, 'v4', f'v{vZ}', 'LOCAL')
            G.wait_flags(f'v{vFQ}', 'v4', 's73')
            qkload(1 - buf)
            a(f's_add_u32 s73, {sSEG}, 1')
            G.tick(1)
            for eb in range(6):
                for D, kind in ((DA, 1), (DB, 2)):
                    a(f'{MF32} {vr(D, 4)}, {vr(fr(buf, kind, eb), 4)}, {vr(fr(buf, 0, eb), 4)}, {"0" if eb == 0 else vr(D, 4)}')
            G.wait_flags(f'v{vFS}', 'v4', 's73', sleep=1)
            G.tick(2)
            a('s_add_u32 s56, s68, 4096')
            for i in range(6):
                a(f'buffer_load_dwordx4 {vr(MB_ + 4 * i, 4)}, v{vL16}, {WS}, {"s68" if i < 4 else "s56"} offen offset:{(i & 3) * 1024} sc1')
            for r in range(4):
                a(f'v_cndmask_b32 v{DA + r}, v{vNI}, v{DA + r}, s[{24 + 2*r}:{25 + 2*r}]\nv_cndmask_b32 v{DB + r}, v{vNI}, v{DB + r}, s[{32 + 2*r}:{33 + 2*r}]')
            M = X
            a(f"""v_max3_f32 v{M}, v{DA}, v{DA+1}, v{DA+2}
v_max3_f32 v{M}, v{M}, v{DA+3}, v{DB}
v_max3_f32 v{M}, v{M}, v{DB+1}, v{DB+2}
v_max_f32 v{M}, v{M}, v{DB+3}
""")
            for eb in range(6):
                a(f's_waitcnt vmcnt({5 - eb})\n{MF32} {vr(DM, 4)}, {vr(MB_ + 4 * eb, 4)}, {vr(fr(buf, 0, eb), 4)}, {"0" if eb == 0 else vr(DM, 4)}')
            a(f's_nop 7\nv_max3_f32 v{M}, v{M}, v{DM}, v{DM+1}')
            def allred(op, A):
                for sw in ('v_permlane16_swap_b32', 'v_permlane32_swap_b32'):
                    a(f'v_mov_b32 v{X+2}, v{A}\ns_nop 1\n{sw} v{A}, v{X+2}\n{op} v{A}, v{A}, v{X+2}')
            allred('v_max_f32', M)
            a(f'v_mul_f32 v{M}, s78, v{M}')
            vals = [DA + r for r in range(4)] + [DB + r for r in range(4)] + [DM, DM + 1]
            for v in vals: a(f'v_fma_f32 v{v}, v{v}, s78, -v{M}')
            for v in vals: a(f'v_exp_f32 v{v}, v{v}')
            L = X + 1
            a(f'v_add_f32 v{L}, v{vals[0]}, v{vals[1]}')
            for v in vals[2:]: a(f'v_add_f32 v{L}, v{L}, v{v}')
            allred('v_add_f32', L)
            a(f'v_rcp_f32 v{L}, v{L}\ns_cmp_eq_u32 s65, 0')
            for v in vals: a(f'v_mul_f32 v{v}, v{v}, v{L}')
            O1 = 32
            l = a.label('L_t_st')
            for i in range(5): a(f'v_cvt_pk_bf16_f32 v{O1 + i}, v{vals[2*i]}, v{vals[2*i+1]}')
            a(f"""buffer_store_dword v{O1+4}, v{vPM}, {WS}, s70 offen LOCAL
s_cbranch_scc1 {l}
buffer_store_dwordx4 v[{O1}:{O1+3}], v{vL16}, {WS}, s69 offen LOCAL
s_branch {l}_e
{l}:
buffer_store_dwordx2 v[{O1}:{O1+1}], v{vL16}, {WS}, s69 offen LOCAL
{l}_e:
ADV s68 s68 {L_KM}
ADV s69 s69 {L_PT}
ADV s70 s70 {L_PT}
""")
            G.tick(3)
            G.flush(4); G.stamp(sSEG)
            a(f's_add_u32 {sSEG}, {sSEG}, 1')
        a(f's_cmp_lt_u32 {sSEG}, {NSEG}\ns_cbranch_scc1 L_t_loop\ns_waitcnt vmcnt(0)')
        G.set_flag('s66', sSEG, 'v4', f'v{vZ}', 'LOCAL')
        G.stamp(3)
        a('s_branch L_end')
    G.two_flavours('t', main)

def roleO(G):
    a = G.a
    a('L_roleO:')
    G.arrive()
    a(f's_sub_u32 {sIDX}, {sROLE}, {R_O}\ns_cmp_lt_u32 {sIDX}, {0 if G.diag & 2 else 10}\ns_cbranch_scc0 L_end')
    G.srd(12, P_X, 2048 * 1280); G.srd(20, P_OUT, 2048 * 1280)
    G.await_all()
    vXR, vOUT, vFB, vFL = 8, 9, 10, 11
    B = 16
    a(f"""
v_and_b32 v4, 31, v1
v_lshlrev_b32 v4, 4, v4
v_lshrrev_b32 v5, 5, v1
v_lshl_add_u32 v{vXR}, v5, 13, v4
v_and_b32 v6, 7, v1
v_bfe_u32 v7, v1, 3, 2
v_mul_u32_u24 v{vOUT}, 1280, v6
v_lshl_add_u32 v{vOUT}, v7, 3, v{vOUT}
v_lshl_add_u32 v{vOUT}, v5, 5, v{vOUT}
v_lshlrev_b32 v{vFB}, 10, v5
v_lshl_add_u32 v{vFB}, v7, 7, v{vFB}
v_lshl_add_u32 v{vFB}, v6, 3, v{vFB}
s_lshl_b32 s64, {sIDX}, 15
s_lshl_b32 s56, {sW}, 9
s_add_u32 s64, s64, s56
s_add_u32 s64, s64, {XO}
s_lshl_b32 s65, {sIDX}, 12
s_lshr_b32 s57, {sW}, 1
s_lshl_b32 s56, s57, 9
s_add_u32 s65, s65, s56
s_and_b32 s56, {sW}, 1
s_lshl_b32 s56, s56, 6
s_add_u32 s65, s65, s56
s_add_u32 s65, s65, {FB}
s_mul_i32 s66, {sW}, 10240
s_lshl_b32 s56, {sIDX}, 7
s_add_u32 s66, s66, s56
v_and_b32 v4, 3, v1
v_mul_u32_u24 v5, 10, v4
s_add_u32 s56, {sIDX}, {F_O + FL // 128}
v_add_lshl_u32 v5, v5, s56, 7
s_lshl_b32 s56, {sIDX}, 3
s_add_u32 s56, s56, s57
v_lshl_add_u32 v4, v4, 1, s56
v_mul_u32_u24 v6, 205, v4
v_lshrrev_b32 v6, 11, v6
v_mul_u32_u24 v7, 10, v6
v_sub_u32 v7, v4, v7
v_and_b32 v7, 3, v7
v_lshl_add_u32 v6, v6, 2, v7
v_add_u32 v6, {F_FD + FL // 128}, v6
v_lshlrev_b32 v6, 7, v6
v_cmp_gt_u32 vcc, 4, v1
s_mov_b32 {sSEG}, 1
s_nop 0
v_cndmask_b32 v{vFL}, v6, v5, vcc
L_o_loop:
buffer_load_dwordx2 v[{B+32}:{B+33}], v{vOUT}, {SA}, s66 offen
buffer_load_dwordx2 v[{B+34}:{B+35}], v{vOUT}, {SA}, s66 offen offset:64
""")
    G.wait_flags(f'v{vFL}', 'v4', sSEG, sleep=2)
    for h in range(2):
        for xx in range(2):
            a(f's_add_u32 s56, s64, {h * 16384 + xx * 4096}')
            for k in range(2):
                r = B + h * 16 + (xx * 2 + k) * 4
                a(f'buffer_load_dwordx4 v[{r}:{r+3}], v{vXR}, {WS}, s56 offen offset:{k * 2048} sc1')
        a(f'buffer_load_dwordx2 v[{B+36+2*h}:{B+37+2*h}], v{vFB}, {WS}, s65 offen offset:{h * 2048} sc1')
    for h in range(2):
        r = B + h * 16; T_ = B + 40
        a(f's_waitcnt vmcnt({5 if h == 0 else 1})')
        for i, src in enumerate((B + 32 + 2*h, B + 33 + 2*h, B + 36 + 2*h, B + 37 + 2*h)):
            a(f'v_lshlrev_b32 v{T_ + 2*i}, 16, v{src}\nv_and_b32 v{T_ + 2*i + 1}, 0xffff0000, v{src}')
        for i in range(4):
            a(f'v_add_f32 v{r+i}, v{r+i}, v{r+4+i}\nv_add_f32 v{r+8+i}, v{r+8+i}, v{r+12+i}\nv_add_f32 v{T_+i}, v{T_+i}, v{T_+4+i}\nv_add_f32 v{r+i}, v{r+i}, v{r+8+i}\nv_add_f32 v{r+i}, v{r+i}, v{T_+i}')
        a(f'v_cvt_pk_bf16_f32 v{r+4}, v{r}, v{r+1}\nv_cvt_pk_bf16_f32 v{r+5}, v{r+2}, v{r+3}\nbuffer_store_dwordx2 v[{r+4}:{r+5}], v{vOUT}, {SC}, s66 offen offset:{64 * h}')
    a(f'ADV s64 s64 {L_XO}\nADV s65 s65 {L_FB}\ns_add_u32 s66, s66, 40960\ns_add_u32 {sSEG}, {sSEG}, 1\ns_cmp_le_u32 {sSEG}, {NSEG}\ns_cbranch_scc1 L_o_loop')
    G.stamp(3)
    a('s_branch L_end')

def emit(G):
    from roleC import roleC
    roleS(G); roleC(G); roleV(G); roleT(G); roleO(G)
```

```python
import sys, math
from asmlib import Asm, vr

NAME = 'parallel_sum__memory_aug_recurrent_mem_tr__glu_gated_geglu__prompt'
KN = NAME + '_kernel'
MB = 1 << 20
import os
XM, L_XM = 0, 262144
PG_PROBE = 196608
LOC, L_LOC = 20 * MB, 19
LM, LE, LL, LZ = LOC, LOC + 65536, LOC + 81920, LOC + 131072
HC = LOC + 98304
FL    = 18 * MB
XN    = 22 * MB
FB, L_FB = 25 * MB, 40960
PT, L_PT = LOC + 458752, L_LOC
HT, L_HT = 33 * MB, 98304
KM, L_KM = 40 * MB, 18
XO, L_XO = 54 * MB, 327680
QT, L_Q = 84 * MB, 393216
QKV_SZ = 24 * MB
VO, L_VO = 157 * MB, 1310720
PROF  = 240 * MB
GATE = int(os.environ.get('GATE', 12))
WS_SIZE = 256 * MB
F_XW, F_OT, F_FD, F_T, F_S, F_O = 0, 384, 512, 576, 640, 768
R_S, R_C, R_V, R_T, R_O, R_FD, R_OT, R_XW = 0, 32, 72, 104, 120, 132, 140, 172
def role_table():
    t = [[] for _ in range(8)]
    for x in range(4):
        t[x] += [R_S + 8 * x + j for j in range(8)] + [R_V + 8 * x + j for j in range(8)] + [R_T + 4 * x + j for j in range(4)]
        t[x] += [R_C + 10 * x + j for j in range(10)] + [R_O + 2 * x + j for j in range(2)]
    for x in range(4):
        t[4 + x] += [R_OT + 8 * x + j for j in range(8)]
    t[4] += [R_FD + j for j in range(8)]
    xw = list(range(R_XW, 256)) + [R_O + 8 + j for j in range(4)]
    x = 0
    while xw:
        while len(t[4 + x]) >= 32: x = (x + 1) % 4
        t[4 + x].append(xw.pop(0)); x = (x + 1) % 4
    flat = sum(t, [])
    assert sorted(flat) == list(range(256)) and all(len(r) == 32 for r in t)
    return flat
NSEG = 64
SPIN = 400000
WS, DBG, SA, SB, SC = 's[4:7]', 's[8:11]', 's[12:15]', 's[16:19]', 's[20:23]'
P_X, P_MEM, P_WQ, P_WK, P_WV, P_WO, P_G, P_U, P_D, P_OUT = 24, 26, 28, 30, 32, 34, 40, 42, 44, 46
sROLE, sW, sIDX, sSEG = 's52', 's53', 's54', 's55'
sSELM = sSELV = sSELE = sSELL = 's60'
sSPIN = 's96'
sSLOW = 's3'
C_SCALE = 192 ** -0.5 * math.log2(math.e)
import struct
def f2u(f): return struct.unpack('<I', struct.pack('<f', f))[0]

class VQ:
    def __init__(self, G): self.G = G; self.n = 0; self.tag = {}
    def op(self, ins, tag=None, n=1):
        self.G.a(ins); self.n += n
        if tag is not None: self.tag[tag] = self.n
    def need(self, tag):
        if tag in self.tag: self.G.a(f's_waitcnt vmcnt({min(63, self.n - self.tag[tag])})')

class Gen:
    def __init__(self, enable=('S','C','V','T','O','FD','OT','XW'), sel=0, place=1, prof=0, probe=1, diag=0, slp=1, rt=0, zpos=0, hs=14, hc=1, pf=0, hp=1, sb1=5, slow=0, xd=0, lser=1, psplit=12, vof=1):
        self.a = Asm(); self.enable = set(enable); self.sel = sel; self.place = place; self.prof = prof; self.probe = probe; self.diag = diag; self.slp = slp; self.rt = rt; self.zpos = zpos; self.hs = hs; self.hc = hc; self.pf = pf; self.hp = hp; self.sb1 = sb1; self.slow = slow; self.xd = xd; self.lser = lser; self.psplit = psplit; self.vof = vof

    def two_flavours(self, name, body):
        import re
        a = self.a
        a(f's_cmp_eq_u32 {sSLOW}, 0\ns_cbranch_scc0 L_{name}_slow')
        keep = a.lines; a.lines = []
        body()
        txt = a.lines; a.lines = keep
        labels = [l[:-1] for l in txt if l.endswith(':')]
        a.lines += [l.replace(' LOCAL', '') for l in txt]
        a(f'L_{name}_slow:')
        pat = re.compile(r'\b(' + '|'.join(map(re.escape, labels)) + r')\b')
        a.lines += [pat.sub(lambda m: m.group(1) + '_w', l).replace(' LOCAL', ' sc1') for l in txt]

    def loop2(self, body):
        keep = self.a.lines; self.a.lines = []
        body(); self.a.lines = keep
        body()

    def win(self, dst, src, add=0):
        return (f's_add_u32 {dst}, {src}, {add}\ns_lshr_b32 s97, {dst}, 8\ns_xor_b32 s97, s97, {sSELM}\ns_and_b32 s97, s97, 8192\ns_add_u32 {dst}, {dst}, s97')

    def srd(self, dst, ptr, size):
        a = self.a
        a(f's_mov_b32 s{dst}, s{ptr}\ns_mov_b32 s{dst+1}, s{ptr+1}\ns_mov_b32 s{dst+2}, {size}\ns_mov_b32 s{dst+3}, 0x20000')

    def prologue(self):
        a = self.a
        a(f'''
s_cmp_ge_u32 s2, 256
s_cbranch_scc1 L_end
s_load_dwordx16 s[24:39], s[0:1], 0
s_load_dwordx8 s[40:47], s[0:1], 64
s_load_dwordx4 s[48:51], s[0:1], 96
v_and_b32 v1, 63, v0
v_lshrrev_b32 v4, 6, v0
v_lshrrev_b32 v2, 4, v1
v_readfirstlane_b32 {sW}, v4
v_and_b32 v3, 15, v1
s_getreg_b32 s56, hwreg(HW_REG_XCC_ID)
s_waitcnt lgkmcnt(0)
''')
        self.srd(4, 50, WS_SIZE); self.srd(8, 48, 256)
        a(f's_mov_b32 {sSELM}, {self.sel}')
        if self.place:
            a(f'''
s_and_b32 s56, s56, 7
s_cmp_eq_u32 {sW}, 0
s_cbranch_scc0 L_noticket
s_mov_b64 exec, 1
L_ticket:
v_mov_b32 v5, 1
s_mul_i32 s57, s56, 24
v_mov_b32 v6, s57
buffer_atomic_add v5, v6, {DBG}, 0 offen offset:64 sc0
s_waitcnt vmcnt(0)
v_readfirstlane_b32 s57, v5
s_nop 3
s_cmp_lt_u32 s57, 32
s_cbranch_scc1 L_gotticket
v_mov_b32 v5, 1
v_mov_b32 v6, 0
buffer_store_dword v5, v6, {DBG}, 0 offen offset:24 sc1
s_add_u32 s56, s56, 1
s_and_b32 s56, s56, 7
s_branch L_ticket
L_gotticket:
s_lshl_b32 s58, s56, 5
s_add_u32 s57, s57, s58
s_getpc_b64 s[58:59]
L_pc:
s_and_b32 s56, s57, 0xfc
s_add_u32 s56, s56, role_tab - L_pc
s_load_dword s56, s[58:59], s56
s_and_b32 s57, s57, 3
s_lshl_b32 s57, s57, 3
s_waitcnt lgkmcnt(0)
s_lshr_b32 s57, s56, s57
v_mov_b32 v5, s57
v_mov_b32 v6, 0
ds_write_b32 v6, v5
s_waitcnt lgkmcnt(0)
s_mov_b64 exec, -1
L_noticket:
s_barrier
v_mov_b32 v6, 0
ds_read_b32 v5, v6
s_waitcnt lgkmcnt(0)
v_readfirstlane_b32 {sROLE}, v5
s_nop 3
s_and_b32 {sROLE}, {sROLE}, 255
s_barrier
''')
        else:
            a(f's_mov_b32 {sROLE}, s2')
        a(f'''
''')
        self.stamp(0)
        a(f'''
s_cmp_lt_u32 {sROLE}, {R_C}
s_cbranch_scc1 L_roleS
s_cmp_lt_u32 {sROLE}, {R_V}
s_cbranch_scc1 L_ln
s_cmp_lt_u32 {sROLE}, {R_T}
s_cbranch_scc1 L_roleV
s_cmp_lt_u32 {sROLE}, {R_O}
s_cbranch_scc1 L_roleT
s_cmp_lt_u32 {sROLE}, {R_FD}
s_cbranch_scc1 L_ln
s_cmp_lt_u32 {sROLE}, {R_OT}
s_cbranch_scc1 L_roleFD
s_cmp_lt_u32 {sROLE}, {R_XW}
s_cbranch_scc1 L_roleOT
s_branch L_roleXW
''')

    def arrive(self):
        a = self.a; l = a.label('L_arr')
        a(f'''
s_waitcnt vmcnt(0)
s_barrier
s_cmp_eq_u32 {sW}, 0
s_cbranch_scc0 {l}
s_mov_b64 exec, 1
v_mov_b32 v4, 1
v_mov_b32 v5, 8
buffer_atomic_add v4, v5, {DBG}, 0 offen
s_mov_b64 exec, -1
{l}:
''')
    def await_all(self):
        a = self.a; l = a.label('L_aw')
        self.stamp(1)
        a(f'''
s_mov_b32 {sSPIN}, {SPIN}
v_mov_b32 v5, 8
{l}:
buffer_load_dword v4, v5, {DBG}, 0 offen sc1
s_sub_u32 {sSPIN}, {sSPIN}, 1
s_cbranch_scc1 L_fail
s_waitcnt vmcnt(0)
v_cmp_gt_u32 vcc, 256, v4
s_cbranch_vccz {l}_d
s_sleep 4
s_branch {l}
{l}_d:
''')
        a(f'''buffer_load_dwordx3 v[4:6], v5, {DBG}, 0 offen offset:8 sc1
s_waitcnt vmcnt(0)
v_readfirstlane_b32 s61, v4
v_readfirstlane_b32 s62, v5
v_readfirstlane_b32 {sSLOW}, v6
s_nop 3
s_cmp_lt_u32 s61, s62
s_cselect_b32 {sSELM}, 8192, 0''')
        if self.slow or not self.place: a(f's_mov_b32 {sSLOW}, 1')
        self.stamp(2)
    def wait_flags(self, voff, vtmp, sneed, sleep=2, soff='0', first=None):
        a = self.a; l = a.label('L_wf')
        if first:
            a(f'buffer_load_dword {vtmp}, {voff}, {WS}, {soff} offen sc1\ns_waitcnt vmcnt(0)')
            first()
            a(f'v_cmp_gt_u32 vcc, {sneed}, {vtmp}\ns_cbranch_vccz {l}_d')
        a(f'''
s_mov_b32 {sSPIN}, {SPIN}
{l}:
buffer_load_dword {vtmp}, {voff}, {WS}, {soff} offen sc1
s_sub_u32 {sSPIN}, {sSPIN}, 1
s_cbranch_scc1 L_fail
s_waitcnt vmcnt(0)
v_cmp_gt_u32 vcc, {sneed}, {vtmp}
''' + (f's_cbranch_vccz {l}_d\ns_sleep {min(127, sleep * self.slp)}\ns_branch {l}\n{l}_d:' if sleep else f's_cbranch_vccnz {l}\n{l}_d:'))
    def set_flag(self, sflag, val, vtmp, vzero, fl='sc1'):
        self.a(f'v_mov_b32 {vtmp}, {val}\nbuffer_store_dword {vtmp}, {vzero}, {WS}, {sflag} offen {fl}')

    def stamp(self, slot, vt=(6, 7), sub=0, nsub=1):
        if not self.prof or (self.prof == 2 and isinstance(slot, str)): return
        a = self.a
        a(f's_memrealtime s[98:99]\ns_lshl_b32 s100, {sROLE}, 2\ns_add_u32 s100, s100, {sW}\ns_lshl_b32 s100, s100, 12')
        if isinstance(slot, str): a(f's_mul_i32 s101, {slot}, {4 * nsub}\ns_add_u32 s100, s100, s101\ns_add_u32 s100, s100, {PROF + 64 + 4 * sub}')
        else: a(f's_add_u32 s100, s100, {PROF + 4 * slot}')
        a(f's_waitcnt lgkmcnt(0)\nv_mov_b32 v{vt[0]}, s98\nv_mov_b32 v{vt[1]}, 0\nbuffer_store_dword v{vt[0]}, v{vt[1]}, {WS}, s100 offen')

    def tick(self, i):
        if self.prof == 2: self.a(f'{"s_memrealtime" if self.rt else "s_memtime"} s[{80 + 2 * i}:{81 + 2 * i}]')
    def flush(self, n, vt=(6, 7)):
        if self.prof != 2: return
        a = self.a
        a(f's_lshl_b32 s100, {sROLE}, 2\ns_add_u32 s100, s100, {sW}\ns_lshl_b32 s100, s100, 12\ns_lshl_b32 s101, {sSEG}, 5\ns_add_u32 s100, s100, s101\ns_add_u32 s100, s100, {PROF + 1024}')
        a(f's_waitcnt lgkmcnt(0)\nv_mov_b32 v{vt[1]}, 0')
        for i in range(n):
            a(f'v_mov_b32 v{vt[0]}, s{80 + 2 * i}\nbuffer_store_dword v{vt[0]}, v{vt[1]}, {WS}, s100 offen offset:{4 * i}')

    def check(self, regs, vt):
        a = self.a; r = list(regs)
        a(f'v_max3_u32 {vt}, {vr(r[0])}, {vr(r[1])}, {vr(r[2])}')
        i = 3
        while i + 1 < len(r):
            a(f'v_max3_u32 {vt}, {vt}, {vr(r[i])}, {vr(r[i+1])}'); i += 2
        if i < len(r):
            a(f'v_max_u32 {vt}, {vt}, {vr(r[i])}')
        a(f'v_cmp_eq_u32 vcc, -1, {vt}')

    def stream_load(self, nblocks, ninstr, ring, issue, consume):
        a = self.a
        assert ninstr * (ring - 1) <= 63
        for b in range(min(ring, nblocks)): issue(b)
        for b in range(nblocks):
            a(f's_waitcnt vmcnt({ninstr * (min(nblocks - 1, b + ring - 1) - b)})')
            consume(b)
            a('s_waitcnt lgkmcnt(0)')
            if b + ring < nblocks: issue(b + ring)

    def dma(self, voff, srd, soff, sbase, ldsoff, sc1=False):
        self.a(f's_add_u32 m0, {sbase}, {ldsoff}\ns_nop 0\nbuffer_load_dwordx4 {voff}, {srd}, {soff} offen {"sc1 " if sc1 else ""}lds')

    def ln(self):
        a = self.a
        a('L_ln:')
        self.srd(12, P_X, 2048 * 1280)
        a(f'''
s_sub_u32 s56, {sROLE}, {R_C}
s_sub_u32 s57, {sROLE}, {R_O - 40}
s_cmp_lt_u32 {sROLE}, {R_V}
s_cselect_b32 s56, s56, s57
s_lshl_b32 s56, s56, 2
s_add_u32 s56, s56, {sW}
v_and_b32 v4, 31, v1
v_lshrrev_b32 v5, 5, v1
v_mul_u32_u24 v6, 1280, v5
v_lshl_add_u32 v6, v4, 3, v6
''')
        a('''
v_lshrrev_b32 v7, 3, v4
v_lshlrev_b32 v7, 11, v7
v_bfe_u32 v8, v4, 1, 2
v_lshl_add_u32 v7, v8, 8, v7
v_and_b32 v8, 1, v4
v_lshl_add_u32 v7, v8, 3, v7
v_lshl_add_u32 v7, v5, 4, v7
s_mov_b32 s58, 0x3acccccd
s_mul_i32 s57, s56, 2560
''')
        for rnd in range(5):
            for j in range(5):
                a(f'buffer_load_dwordx2 v[{64+10*rnd+2*j}:{65+10*rnd+2*j}], v6, {SA}, s57 offen offset:{256*j}')
            a(f's_add_u32 s57, s57, {208 * 2560}')
        a('s_waitcnt vmcnt(0)\nL_ln_loop:')
        for j in range(10): a(f'v_mov_b32 v{10+j}, v{64+j}')
        for j in range(40): a(f'v_mov_b32 v{64+j}, v{74+j}')
        a(f'''
s_lshr_b32 s59, s56, 4
s_mul_i32 s59, s59, 40960
s_bfe_u32 s64, s56, 0x10003
s_lshl_b32 s64, s64, 10
s_add_u32 s59, s59, s64
s_and_b32 s64, s56, 7
s_lshl_b32 s64, s64, 5
s_add_u32 s59, s59, s64
s_add_u32 s59, s59, {XN}
''')
        for j in range(10):
            a(f'v_lshlrev_b32 v{20+2*j}, 16, v{10+j}\nv_and_b32 v{21+2*j}, 0xffff0000, v{10+j}')
        def red32(v, t):
            for ror in (8, 4, 2, 1):
                a(f's_nop 1\nv_add_f32_dpp {v}, {v}, {v} row_ror:{ror} row_mask:0xf bank_mask:0xf')
            a(f'v_mov_b32 {t}, {v}\ns_nop 1\nv_permlane16_swap_b32 {v}, {t}\nv_add_f32 {v}, {v}, {t}')
        a('v_add_f32 v40, v20, v21')
        for j in range(2, 20): a(f'v_add_f32 v40, v40, v{20+j}')
        red32('v40', 'v41')
        a('v_mul_f32 v40, s58, v40')
        a('v_sub_f32 v42, v20, v40\nv_mul_f32 v43, v42, v42')
        for j in range(1, 20): a(f'v_sub_f32 v42, v{20+j}, v40\nv_fmac_f32 v43, v42, v42')
        red32('v43', 'v41')
        a(f'''
v_mul_f32 v43, s58, v43
v_cvt_pk_bf16_f32 v40, v40, v43
v_and_b32 v43, 0xffff0000, v40
v_lshlrev_b32 v40, 16, v40
v_add_f32 v43, 0x3727c5ac, v43
v_cvt_pk_bf16_f32 v43, v43, v43
v_lshlrev_b32 v43, 16, v43
v_sqrt_f32 v43, v43
s_nop 0
v_cvt_pk_bf16_f32 v43, v43, v43
v_lshlrev_b32 v43, 16, v43
v_rcp_f32 v43, v43
''')
        for j in range(10):
            a(f'''v_sub_f32 v{20+2*j}, v{20+2*j}, v40
v_sub_f32 v{21+2*j}, v{21+2*j}, v40
v_cvt_pk_bf16_f32 v{10+j}, v{20+2*j}, v{21+2*j}
v_lshlrev_b32 v{20+2*j}, 16, v{10+j}
v_and_b32 v{21+2*j}, 0xffff0000, v{10+j}
v_mul_f32 v{20+2*j}, v{20+2*j}, v43
v_mul_f32 v{21+2*j}, v{21+2*j}, v43
v_cvt_pk_bf16_f32 v{10+j}, v{20+2*j}, v{21+2*j}''')
        for j in range(5):
            a(f'buffer_store_dwordx2 v[{10+2*j}:{11+2*j}], v7, {WS}, s59 offen sc1\ns_add_u32 s59, s59, 8192')
        a(f'''
s_add_u32 s56, s56, 208
s_cmp_lt_u32 s56, 1024
s_cbranch_scc1 L_ln_loop
s_cmp_lt_u32 {sROLE}, {R_V}
s_cbranch_scc1 L_roleC
s_branch L_roleO
''')

    def disabled(self, name):
        if name in self.enable: return False
        self.arrive()
        self.a('s_branch L_end')
        return True

    def roleXW(self):
        a = self.a
        a('L_roleXW:')
        if self.disabled('XW'): return
        W0 = 192
        wf = lambda kk, t: W0 + (kk * 4 + t) * 4
        ACC = 64
        acc = lambda mt, t: ACC + (mt * 4 + t) * 4
        XB = 32
        a(f'''
s_sub_u32 {sIDX}, {sROLE}, {R_XW}
s_lshl_b32 s64, {sIDX}, 2
s_add_u32 s64, s64, {sW}
s_lshl_b32 s66, s64, 7
s_add_u32 s66, s66, {FL + 128 * F_XW}
v_mov_b32 v8, 0
''')
        self.set_flag('s66', 0, 'v4', 'v8')
        self.arrive()
        a(f'''
s_cmp_lt_u32 s64, 288
s_cbranch_scc0 L_xw_ffn
s_mov_b32 s69, 0
s_mov_b32 s65, 12288
s_mov_b32 s68, {L_Q}
s_cmp_lt_u32 s64, 96
s_cselect_b32 s12, s{P_WQ}, s{P_WK}
s_cselect_b32 s13, s{P_WQ+1}, s{P_WK+1}
s_cselect_b32 s56, 0, 96
s_mov_b32 s67, {QT}
s_cselect_b32 s67, s67, {QT + QKV_SZ}
s_cmp_lt_u32 s64, 192
s_cselect_b32 s12, s12, s{P_WV}
s_cselect_b32 s13, s13, s{P_WV+1}
s_cselect_b32 s56, s56, 192
s_cselect_b32 s67, s67, {QT + 2 * QKV_SZ}
s_mov_b32 s14, {640 * 12288}
s_mov_b32 s15, 0x20000
s_mov_b32 s16, s12
s_mov_b32 s17, s13
s_mov_b32 s18, s14
s_mov_b32 s19, 0x20000
s_sub_u32 s56, s64, s56
s_lshl_b32 s57, s56, 12
s_add_u32 s67, s67, s57
s_lshl_b32 s57, s56, 7
s_add_u32 s58, s57, 64
s_branch L_xw_go
L_xw_ffn:
s_mov_b32 s69, 1
s_mov_b32 s65, 3072
s_mov_b32 s68, {L_HT}
''')
        self.srd(12, P_G, 640 * 3072); self.srd(16, P_U, 640 * 3072)
        a(f'''
s_sub_u32 s56, s64, 288
s_lshl_b32 s67, s56, 11
s_add_u32 s67, s67, {HT}
s_lshl_b32 s57, s56, 6
s_mov_b32 s58, s57
L_xw_go:
v_lshrrev_b32 v4, 2, v1
v_mul_lo_u32 v4, v4, s65
v_and_b32 v5, 3, v1
v_lshl_add_u32 v4, v5, 4, v4
v_add_u32 v10, s57, v4
v_add_u32 v11, s58, v4
s_mul_i32 s70, {sW}, 40960
s_lshl_b32 s71, s65, 4
s_mov_b32 s72, 0
v_lshrrev_b32 v4, 2, v3
v_lshl_add_u32 v4, v2, 3, v4
v_lshlrev_b32 v4, 6, v4
v_and_b32 v5, 3, v3
v_lshl_add_u32 v4, v5, 3, v4
v_add_u32 v12, s70, v4
''')
        RING = 10
        def issue(b):
            o = (b % RING) * 4096
            self.dma('v10', SA, 's72', 's70', o); self.dma('v11', SB, 's72', 's70', o + 2048)
            a('s_add_u32 s72, s72, s71')
            self.dma('v10', SA, 's72', 's70', o + 1024); self.dma('v11', SB, 's72', 's70', o + 3072)
            a('s_add_u32 s72, s72, s71')
        def consume(b):
            o = (b % RING) * 4096
            for t in range(4):
                for hf in range(2):
                    a(f'ds_read_b64_tr_b16 {vr(wf(b, t) + 2 * hf, 2)}, v12 offset:{o + (t >> 1) * 2048 + hf * 256 + (t & 1) * 32}')
        self.stream_load(20, 4, RING, issue, consume)
        self.await_all()
        a('s_barrier')
        a(f'''
v_lshlrev_b32 v13, 4, v1
s_mul_i32 s70, {sW}, 10240
s_add_u32 s72, s70, {XN}
s_mov_b32 s73, s70
s_mov_b32 s74, 0
s_mov_b32 {sSEG}, 0
''')
        def xdma1(i):
            return (f's_add_u32 s75, s72, {i * 1024}\ns_add_u32 m0, s73, {i * 1024}\ns_nop 0\n'
                    f'buffer_load_dwordx4 v13, {WS}, s75 offen sc1 lds')
        xadv = 's_add_u32 s72, s72, 40960\ns_add_u32 s73, s73, 40960\ns_cmp_lt_u32 s73, 122880\ns_cselect_b32 s73, s73, s70'
        for _ in range(2):
            for i in range(10): a(xdma1(i))
            a(xadv)
        k1 = 2 * math.sqrt(2 / math.pi) * math.log2(math.e)
        a(f's_mov_b32 s76, {f2u(-k1 * 0.044715):#x}\ns_mov_b32 s77, {f2u(-k1):#x}\nv_mov_b32 v15, s77')
        a(f'v_add_u32 v16, 0x40000000, v13\ns_sub_u32 s67, s67, s68\nv_mov_b32 v17, {FL + 128 * F_O}\nv_mov_b32 v18, 0\ns_waitcnt vmcnt(0)\ns_barrier')
        a('s_cmp_eq_u32 s69, 0\ns_cbranch_scc0 L_xf_loop')
        acc2 = lambda par, mt, t: 64 + par * 32 + (mt * 4 + t) * 4
        OUT, TMP = 128, 144
        def epilogue(ffn, par):
            o = []
            if not ffn:
                for mt in range(2):
                    for p in range(2):
                        d = OUT + (mt * 2 + p) * 4
                        for q in range(2):
                            s_ = acc2(par, mt, 2 * p + q)
                            o += [('v', f'v_cvt_pk_bf16_f32 v{d + 2*q}, v{s_}, v{s_+1}'), ('v', f'v_cvt_pk_bf16_f32 v{d + 2*q + 1}, v{s_+2}, v{s_+3}')]
                        o.append(('m', f'buffer_store_dwordx4 v[{d}:{d+3}], v16, {WS}, s67 offen offset:{p * 2048 + mt * 1024} sc1'))
            else:
                for mt in range(2):
                    G_ = [acc2(par, mt, q) + r for q in range(2) for r in range(4)]
                    U_ = [acc2(par, mt, 2 + q) + r for q in range(2) for r in range(4)]
                    T_ = [TMP + i for i in range(8)]
                    o += [('v', f'v_mul_f32 v{t}, v{g}, v{g}') for g, t in zip(G_, T_)]
                    o += [('v', f'v_fma_f32 v{t}, v{t}, s76, v15') for t in T_]
                    o += [('v', f'v_mul_f32 v{t}, v{t}, v{g}') for g, t in zip(G_, T_)]
                    o += [('t', f'v_exp_f32 v{t}, v{t}') for t in T_]
                    o += [('v', f'v_mul_f32 v{g}, v{g}, v{u}') for g, u in zip(G_, U_)]
                    o += [('v', f'v_add_f32 v{t}, 1.0, v{t}') for t in T_]
                    o += [('t', f'v_rcp_f32 v{t}, v{t}') for t in T_]
                    o += [('v', f'v_mul_f32 v{g}, v{g}, v{t}') for g, t in zip(G_, T_)]
                    d = OUT + mt * 4
                    o += [('v', f'v_cvt_pk_bf16_f32 v{d + i}, v{G_[2*i]}, v{G_[2*i+1]}') for i in range(4)]
                    o.append(('m', f'buffer_store_dwordx4 v[{d}:{d+3}], v16, {WS}, s67 offen offset:{mt * 1024} sc1'))
            return o
        for ffn in (0, 1):
            nm = 'L_xf' if ffn else 'L_xw'
            vq = VQ(self)
            def body():
                for par in range(2):
                    self.tick(0)
                    l = a.label('L_xw_go')
                    a(f's_sub_u32 s79, {sSEG}, {GATE}\ns_max_i32 s79, s79, 0')
                    vq.need('fl')
                    a(f'v_cmp_gt_u32 vcc, s79, v18\ns_cbranch_vccz {l}')
                    self.wait_flags('v17', 'v18', 's79', sleep=8)
                    a(f'{l}:\nv_add_u32 v14, s74, v13')
                    def rd(kk):
                        b = XB + (kk % 3) * 8
                        a(f'ds_read_b128 {vr(b, 4)}, v14 offset:{kk * 2048}\nds_read_b128 {vr(b + 4, 4)}, v14 offset:{kk * 2048 + 1024}')
                    rd(0); rd(1)
                    ep = epilogue(ffn, 1 - par)
                    n = 0
                    for kk in range(20):
                        if kk + 2 < 20: rd(kk + 2)
                        a(f's_waitcnt lgkmcnt({min(4, 2 * (19 - kk))})')
                        b = XB + (kk % 3) * 8
                        for mt in range(2):
                            for t in range(4):
                                c = vr(acc2(par, mt, t), 4)
                                a(f'v_mfma_f32_16x16x32_bf16 {c}, {vr(wf(kk, t), 4)}, {vr(b + 4 * mt, 4)}, {"0" if kk == 0 else c}')
                                n += 1
                                if n >= 3:
                                    budget = 2 if ffn else (1 if n % 2 else 0)
                                    while ep and budget > 0:
                                        kind, txt = ep[0]
                                        if kind == 't' and budget < 2: break
                                        ep.pop(0)
                                        if kind == 'm': vq.op(txt, 'st'); budget = 0
                                        else: a(txt); budget -= 2 if kind == 't' else 1
                                if kk >= 10 and mt == 0 and t == 3: vq.op(xdma1(kk - 10), 'dma')
                        if kk == (18 if ffn else 12):
                            assert not ep
                            vq.need('st')
                            vq.op(f'v_mov_b32 v4, {sSEG}\nbuffer_store_dword v4, v8, {WS}, s66 offen sc1')
                        if kk == 8: vq.op(f'buffer_load_dword v18, v17, {WS}, 0 offen sc1', 'fl')
                        if kk == 9:
                            self.tick(1)
                            vq.need('dma'); a('s_barrier')
                            self.tick(2)
                    assert not ep
                    a(xadv)
                    self.tick(3)
                    self.tick(4)
                    if self.prof == 2: self.flush(5); vq.n += 5
                    if self.prof == 1: self.stamp(sSEG); vq.n += 1
                    a(f'''v_mov_b32 v16, v13
s_add_u32 s67, s67, s68
s_add_u32 s74, s74, 40960
s_cmp_lt_u32 s74, 122880
s_cselect_b32 s74, s74, 0
s_add_u32 {sSEG}, {sSEG}, 1''')
            a(f'{nm}_loop:')
            self.loop2(body)
            a(f's_cmp_lt_u32 {sSEG}, {NSEG}\ns_cbranch_scc1 {nm}_loop\ns_nop 7')
            for kind, txt in epilogue(ffn, 1): a(txt + ('\ns_nop 0' if kind == 't' else ''))
            a('s_waitcnt vmcnt(0)')
            self.set_flag('s66', NSEG, 'v4', 'v8')
            self.stamp(3)
            a('s_branch L_end')

    def slab_voff(self, vb, n, ppr, pitch, magic, shift, scol):
        a = self.a
        for u in range(64 * n): assert (u * magic) >> shift == u // ppr, (u, ppr)
        for i in range(n):
            a(f'''v_add_u32 v4, {64 * i}, v1
v_mul_u32_u24 v5, {magic}, v4
v_lshrrev_b32 v5, {shift}, v5
v_mul_u32_u24 v6, {ppr}, v5
v_sub_u32 v4, v4, v6
v_mul_u32_u24 v5, {pitch}, v5
v_lshl_add_u32 v4, v4, 4, v5
v_add_u32 v{vb + i}, {scol}, v4''')

    def roleOT(self):
        a = self.a
        a('L_roleOT:')
        if self.disabled('OT'): return
        W0 = 256
        wf = lambda eb, c: W0 + (c * 6 + eb) * 4
        VB = 64
        vf = lambda buf, eb, mt: VB + buf * 48 + (eb * 2 + mt) * 4
        a(f'''
s_sub_u32 {sIDX}, {sROLE}, {R_OT}
s_lshl_b32 s66, {sW}, 5
s_add_u32 s66, s66, {sIDX}
s_lshl_b32 s66, s66, 7
s_add_u32 s66, s66, {FL + 128 * F_OT}
v_mov_b32 v8, 0
''')
        self.set_flag('s66', 0, 'v4', 'v8')
        self.arrive()
        self.srd(12, P_WO, 32 * 245760)
        a(f's_mul_i32 s57, {sW}, 320\ns_mul_i32 s72, {sIDX}, 245760\ns_mul_i32 s70, {sW}, 40960')
        self.slab_voff(16, 5, 20, 1280, 205, 12, 's57')
        a('''v_lshrrev_b32 v4, 2, v3
v_lshl_add_u32 v4, v2, 2, v4
v_mul_u32_u24 v4, 320, v4
v_and_b32 v5, 3, v3
v_lshl_add_u32 v4, v5, 3, v4
v_add_u32 v12, s70, v4''')
        RING = 4
        def issue(b):
            for hh in range(2):
                for i in range(5): self.dma(f'v{16+i}', SA, 's72', 's70', (b % RING) * 10240 + hh * 5120 + i * 1024)
                a('s_add_u32 s72, s72, 20480')
        def consume(b):
            for c in range(10):
                for hf in range(2):
                    a(f'ds_read_b64_tr_b16 {vr(wf(b, c) + 2 * hf, 2)}, v12 offset:{(b % RING) * 10240 + hf * 5120 + c * 32}')
        self.stream_load(6, 10, RING, issue, consume)
        self.await_all()
        a(f'''
v_lshlrev_b32 v13, 4, v1
v_min_u32 v4, 2, v1
s_mul_i32 s56, {sIDX}, 3
s_add_u32 s56, s56, {F_XW + 192 + FL // 128}
v_add_lshl_u32 v15, v4, s56, 7
s_mul_i32 s72, {sIDX}, 12288
s_add_u32 s72, s72, {QT + 2 * QKV_SZ}
s_mul_i32 s67, {sW}, {10 * 8192}
s_and_b32 s56, {sIDX}, 7
s_lshl_b32 s56, s56, 10
s_add_u32 s67, s67, s56
s_lshr_b32 s56, {sIDX}, 3
s_mul_i32 s56, s56, 327680
s_add_u32 s67, s67, s56
s_add_u32 s67, s67, {VO}
s_mov_b32 {sSEG}, 0
s_mov_b32 s73, 1
''')
        def vload1(buf, f):
            return f's_add_u32 s75, s72, {(f >> 2) * 4096}\nbuffer_load_dwordx4 {vr(VB + buf * 48 + f * 4, 4)}, v13, {WS}, s75 offen offset:{(f & 3) * 1024} sc1'
        self.wait_flags('v15', 'v4', 's73')
        for f in range(12): a(vload1(0, f))
        a(f'ADV s72 s72 {L_Q}\nv_mov_b32 v17, 0\ns_waitcnt vmcnt(0)')
        vq = VQ(self)
        def body():
            for buf in range(2):
                self.tick(0)
                l = a.label('L_ot_ok')
                a(f's_add_u32 s73, {sSEG}, 2\ns_min_u32 s73, s73, {NSEG}')
                vq.need('fl')
                a(f'v_cmp_gt_u32 vcc, s73, v17\ns_cbranch_vccz {l}')
                self.wait_flags('v15', 'v4', 's73')
                a(f'{l}:\ns_mov_b32 s74, s67')
                self.tick(1)
                for c in range(11):
                    n = 0
                    fin = []
                    if c > 0:
                        A = 32 + ((c - 1) & 1) * 8; d = 48 + ((c - 1) & 1) * 4
                        fin = [f'v_cvt_pk_bf16_f32 v{d+i}, v{A+2*i}, v{A+2*i+1}' for i in range(4)]
                        st = f'buffer_store_dwordx4 v[{d}:{d+3}], v13, {WS}, s74 offen sc1\ns_add_u32 s74, s74, 8192'
                    if c < 10:
                        A = 32 + (c & 1) * 8
                        for eb in range(6):
                            for mt in range(2):
                                dd = vr(A + 4 * mt, 4)
                                a(f'v_mfma_f32_16x16x32_bf16 {dd}, {vr(vf(buf, eb, mt), 4)}, {vr(wf(eb, c), 4)}, {"0" if eb == 0 else dd}')
                                n += 1
                                if 3 <= n < 7 and fin: a(fin[n - 3])
                                if n == 7 and fin: vq.op(st, 'st')
                                if n in (2, 10) and c < 6: vq.op(vload1(1 - buf, 2 * c + (n == 10)), 'v')
                                if n == 2 and c == 6:
                                    vq.need('stprev')
                                    vq.op(f'v_mov_b32 v4, {sSEG}\nbuffer_store_dword v4, v8, {WS}, s66 offen sc1')
                                if n == 2 and c == 7: vq.op(f'buffer_load_dword v17, v15, {WS}, 0 offen sc1', 'fl')
                    else:
                        a('s_nop 7')
                        for f in fin: a(f)
                        vq.op(st, 'stprev')
                self.tick(2)
                if self.prof == 2: self.flush(3); vq.n += 3
                if self.prof == 1: self.stamp(sSEG); vq.n += 1
                a(f'ADV s72 s72 {L_Q}\nADV s67 s67 {L_VO}\ns_add_u32 {sSEG}, {sSEG}, 1')
        a('L_ot_loop:')
        self.loop2(body)
        a(f's_cmp_lt_u32 {sSEG}, {NSEG}\ns_cbranch_scc1 L_ot_loop\ns_waitcnt vmcnt(0)')
        self.set_flag('s66', NSEG, 'v4', 'v8')
        self.stamp(3)
        a('s_branch L_end')

    def roleFD(self):
        a = self.a
        a('L_roleFD:')
        if self.disabled('FD'): return
        W0 = 256
        wf = lambda kb, c: W0 + (kb * 5 + c) * 4
        HB = 64
        ACC = 24
        a(f'''
s_sub_u32 {sIDX}, {sROLE}, {R_FD}
s_lshl_b32 s66, {sIDX}, 2
s_add_u32 s66, s66, {sW}
s_lshl_b32 s66, s66, 7
s_add_u32 s66, s66, {FL + 128 * F_FD}
v_mov_b32 v8, 0
''')
        self.set_flag('s66', 0, 'v4', 'v8')
        self.arrive()
        self.srd(12, P_D, 1536 * 1280)
        a(f's_mul_i32 s57, {sIDX}, 160\ns_mul_i32 s72, {sW}, {384 * 1280}\ns_mul_i32 s70, {sW}, 40960')
        self.slab_voff(16, 5, 10, 1280, 205, 11, 's57')
        a('''v_lshrrev_b32 v4, 2, v3
v_lshl_add_u32 v4, v2, 2, v4
v_mul_u32_u24 v4, 160, v4
v_and_b32 v5, 3, v3
v_lshl_add_u32 v4, v5, 3, v4
v_add_u32 v12, s70, v4''')
        RING = 8
        def issue(b):
            for i in range(5): self.dma(f'v{16+i}', SA, 's72', 's70', (b % RING) * 5120 + i * 1024)
            a('s_add_u32 s72, s72, 40960')
        def consume(b):
            for c in range(5):
                for hf in range(2):
                    a(f'ds_read_b64_tr_b16 {vr(wf(b, c) + 2 * hf, 2)}, v12 offset:{(b % RING) * 5120 + hf * 2560 + c * 32}')
        self.stream_load(12, 5, RING, issue, consume)
        self.await_all()
        a('s_barrier')
        a(f'''
v_lshlrev_b32 v13, 4, v1
v_lshlrev_b32 v10, 3, v1
s_mul_i32 s70, {sW}, 10240
v_add_u32 v14, s70, v13
s_lshl_b32 s70, {sW}, 10
v_add_u32 v9, s70, v13
v_min_u32 v4, 11, v1
s_mul_i32 s56, {sW}, 12
s_add_u32 s56, s56, {F_XW + 288 + FL // 128}
v_add_lshl_u32 v15, v4, s56, 7
s_mul_i32 s72, {sW}, 24576
s_add_u32 s72, s72, {HT}
s_mul_i32 s67, {sIDX}, 5120
s_lshl_b32 s56, {sW}, 9
s_add_u32 s67, s67, s56
s_add_u32 s67, s67, {FB}
s_mov_b32 {sSEG}, 0
s_mov_b32 s73, 1
''')
        def hload1(buf, f):
            return f's_add_u32 s75, s72, {(f >> 2) * 4096}\nbuffer_load_dwordx4 {vr(HB + buf * 96 + f * 4, 4)}, v13, {WS}, s75 offen offset:{(f & 3) * 1024} sc1'
        self.wait_flags('v15', 'v4', 's73')
        for f in range(24): a(hload1(0, f))
        a(f'ADV s72 s72 {L_HT}\nv_mov_b32 v22, 0\ns_waitcnt vmcnt(0)')
        a('L_fd_loop:')
        for buf in range(2):
            self.tick(0)
            l = a.label('L_fd_ok')
            a(f's_add_u32 s73, {sSEG}, 2\ns_min_u32 s73, s73, {NSEG}\ns_waitcnt vmcnt(2)\nv_cmp_gt_u32 vcc, s73, v22\ns_cbranch_vccz {l}')
            self.wait_flags('v15', 'v4', 's73')
            a(f'{l}:')
            self.tick(1)
            n = 0
            for kb in range(12):
                for c in range(5):
                    for tt in range(2):
                        d = vr(ACC + (c * 2 + tt) * 4, 4)
                        a(f'v_mfma_f32_16x16x32_bf16 {d}, {vr(wf(kb, c), 4)}, {vr(HB + buf * 96 + (kb * 2 + tt) * 4, 4)}, {"0" if kb == 0 else d}')
                        if n % 4 == 1 and n // 4 < 24: a(hload1(1 - buf, n // 4))
                        if n == 62:
                            a('s_waitcnt vmcnt(16)')
                            self.set_flag('s66', sSEG, 'v4', 'v8')
                        if n == 110: a(f'buffer_load_dword v22, v15, {WS}, 0 offen sc1')
                        n += 1
            a(f'ADV s72 s72 {L_HT}')
            self.tick(2)
            a('s_nop 7')
            lb = buf * 40960
            for t in range(10): a(f'ds_write_b128 v14, {vr(ACC + t * 4, 4)} offset:{lb + t * 1024}')
            a('s_waitcnt lgkmcnt(0)\ns_barrier')
            lab = a.label('L_fd_skip')
            for j in range(3):
                if j == 2: a(f's_cmp_lt_u32 {sW}, 2\ns_cbranch_scc0 {lab}')
                for w in range(4):
                    off = lb + w * 10240 + j * 4096
                    if off > 65535 - 16:
                        a(f'v_add_u32 v11, {off}, v9\nds_read_b128 {vr(ACC + w * 4, 4)}, v11')
                    else:
                        a(f'ds_read_b128 {vr(ACC + w * 4, 4)}, v9 offset:{off}')
                a('s_waitcnt lgkmcnt(0)')
                for r in range(4):
                    a(f'v_add_f32 v{ACC+r}, v{ACC+r}, v{ACC+4+r}\nv_add_f32 v{ACC+8+r}, v{ACC+8+r}, v{ACC+12+r}\nv_add_f32 v{ACC+r}, v{ACC+r}, v{ACC+8+r}')
                a(f'v_cvt_pk_bf16_f32 v{16+2*j}, v{ACC}, v{ACC+1}\nv_cvt_pk_bf16_f32 v{17+2*j}, v{ACC+2}, v{ACC+3}')
                a(f'buffer_store_dwordx2 v[{16+2*j}:{17+2*j}], v10, {WS}, s67 offen offset:{j * 2048 if j < 2 else 0} sc1' if j < 2 else
                  f's_add_u32 s75, s67, 4096\nbuffer_store_dwordx2 v[{16+2*j}:{17+2*j}], v10, {WS}, s75 offen sc1')
            a(f'{lab}:')
            self.tick(3)
            if self.prof == 2: self.flush(4); a('s_waitcnt vmcnt(0)')
            a(f'ADV s67 s67 {L_FB}\ns_add_u32 {sSEG}, {sSEG}, 1')
        a(f's_cmp_lt_u32 {sSEG}, {NSEG}\ns_cbranch_scc1 L_fd_loop\ns_waitcnt vmcnt(0)')
        self.set_flag('s66', NSEG, 'v4', 'v8')
        self.stamp(3)
        a('s_branch L_end')

    def build(self):
        a = self.a
        self.prologue(); self.ln()
        import roles2
        roles2.emit(self)
        self.roleFD(); self.roleOT(); self.roleXW()
        a(f'''L_fail:
s_waitcnt vmcnt(0) lgkmcnt(0)
s_mov_b64 exec, 1
v_mov_b32 v4, {sROLE}
v_add_u32 v4, 1, v4
v_mov_b32 v5, 12
buffer_store_dword v4, v5, {DBG}, 0 offen
L_end:
s_endpgm''')
        a('.p2align 2\n.type role_tab,@object\n.size role_tab, 256\nrole_tab:')
        rt = role_table()
        for i in range(0, 256, 16): a('.byte ' + ', '.join(str(r) for r in rt[i:i+16]))
        hdr = open(f'cdna_kernels/{NAME}.s.ref').read().split('; Override')[0]
        return (hdr + '; @launch grid=(256,1,1) block=(256,1,1) lds=163840\n'
                f'.amdgcn_target "amdgcn-amd-amdhsa--gfx950"\n.text\n.globl {KN}\n.p2align 8\n.type {KN},@function\n{KN}:\n'
                + a.text() + f'''.section .rodata,"a"
.p2align 6
.amdhsa_kernel {KN}
  .amdhsa_next_free_vgpr 512
  .amdhsa_next_free_sgpr 102
  .amdhsa_accum_offset 256
  .amdhsa_group_segment_fixed_size 0
  .amdhsa_kernarg_size 112
  .amdhsa_user_sgpr_count 2
  .amdhsa_user_sgpr_kernarg_segment_ptr 1
  .amdhsa_system_sgpr_workgroup_id_x 1
  .amdhsa_float_denorm_mode_32 3
  .amdhsa_float_denorm_mode_16_64 3
.end_amdhsa_kernel
''')

if __name__ == '__main__':
    kw = eval('dict(%s)' % (sys.argv[2] if len(sys.argv) > 2 else ''))
    open(sys.argv[1], 'w').write(Gen(**kw).build())
```

```python
from gen import *
import roles2 as R

def roleC(G):
    a = G.a
    SMF, MF32, MF16 = R.SMF, R.MF32, R.MF16
    a('L_roleC:')
    if G.disabled('C'): return
    vT, vZ, vIDX, vL16, vL8, vL4, vE, vFL, vND, vFV, vHO, vHV, vFO, vMS, vOW, vOUT, vFBo, vXR, vFT = range(7, 26)
    vFR, vFTv, vNR = 60, 61, 62
    EB, E2 = 28, 44
    BZ = 68
    D1 = 84
    LA, LB = 116, 124
    AC = 132
    X = 136
    OA, XF = 148, 156
    FX = 224
    PB = 160
    YS = lambda u: 256 + 40 * (u & 3)
    for c in range(40): assert (c * 205) >> 11 == c // 10
    for o in range(80): assert (o * 205) >> 11 == o // 10
    G.srd(12, P_MEM, 10240)
    a(f'''
s_sub_u32 {sIDX}, {sROLE}, {R_C}
s_mul_i32 s74, {sIDX}, 205
s_lshr_b32 s74, s74, 11
s_mul_i32 s56, s74, 10
s_sub_u32 s76, {sIDX}, s56
s_lshl_b32 s75, s76, 2
s_add_u32 s75, s75, {sW}
v_mov_b32 v{vZ}, 0
v_lshlrev_b32 v{vL16}, 4, v1
v_lshlrev_b32 v{vL8}, 3, v1
v_lshlrev_b32 v{vL4}, 2, v1
s_lshl_b32 s72, {sIDX}, 7
s_add_u32 s72, s72, {PG_CP}
s_lshl_b32 s79, s74, 7
s_add_u32 s79, s79, {HC}
s_cmp_eq_u32 s75, 0
s_cselect_b32 s56, 0, 0x40000000
v_mov_b32 v{vHO}, s56
buffer_store_dword v{vZ}, v{vHO}, {WS}, s79 offen sc1
buffer_store_dword v{vZ}, v{vZ}, {WS}, s72 offen sc1
s_add_u32 s56, s72, 8192
buffer_store_dword v{vZ}, v{vZ}, {WS}, s56 offen sc1
s_lshl_b32 s64, s74, 14
s_lshl_b32 s56, s75, 8
s_add_u32 s64, s64, s56
s_add_u32 s64, s64, {LM}
v_bfe_u32 v4, v1, 2, 3
v_mul_u32_u24 v4, 1280, v4
v_and_b32 v5, 3, v1
v_lshl_add_u32 v4, v5, 3, v4
v_lshrrev_b32 v5, 5, v1
v_lshl_add_u32 v4, v5, 2, v4
s_lshl_b32 s56, s75, 5
buffer_load_dword v5, v4, {SA}, s56 offen
v_mov_b32 v26, -1
v_mov_b32 v27, -1
s_add_u32 s56, s64, {1 << L_LOC}
s_add_u32 s57, s64, {2 << L_LOC}
buffer_store_dword v26, v{vL4}, {WS}, s56 offen sc1
buffer_store_dword v26, v{vL4}, {WS}, s57 offen sc1
s_lshl_b32 s70, s76, 14
s_lshl_b32 s56, {sW}, 11
s_add_u32 s70, s70, s56
s_add_u32 s70, s70, {XM}
s_lshl_b32 s77, s74, 9
s_add_u32 s58, s70, s77
''')
    for extra in (0, 8192, 262144, 262144 + 8192):
        a(f's_add_u32 s56, s58, {extra}\nbuffer_store_dwordx2 v[26:27], v{vL8}, {WS}, s56 offen sc1')
    a(f's_waitcnt vmcnt(6)\nv_min_u32 v5, -2, v5\nbuffer_store_dword v5, v{vL4}, {WS}, s64 offen sc1')
    G.arrive()
    G.await_all()
    a(f's_add_u32 s72, s72, {sSELM}')
    R.idx_setup(G, vIDX)
    a(f'''
v_lshrrev_b32 v4, 3, v3
v_lshlrev_b32 v4, 9, v4
v_lshl_add_u32 v4, v2, 7, v4
v_and_b32 v5, 7, v3
v_lshl_add_u32 v{vE}, v5, 4, v4
s_lshl_b32 s65, s74, 12
s_add_u32 s65, s65, {LE}
s_lshl_b32 s56, s74, 11
s_add_u32 s66, s56, {LL}
s_lshl_b32 s67, s75, 13
s_add_u32 s67, s67, s56
s_add_u32 s67, s67, {LZ}
s_mul_i32 s68, s74, {MB if VNEAR else 327680}
s_lshl_b32 s57, s75, {14 if VNEAR else 13}
s_add_u32 s68, s68, s57
s_add_u32 s68, s68, {VO}
{'FIXW s68' if VNEAR else ''}
{'s_xor_b32 s68, s68, 8192' if VNEAR == 2 else ''}
s_lshl_b32 s57, s75, 13
s_add_u32 s37, s57, {XO}
s_add_u32 s36, s37, s56
s_add_u32 s37, s37, s77
s_lshl_b32 s41, s74, 14
s_lshl_b32 s56, {sW}, 12
s_add_u32 s41, s41, s56
s_add_u32 s41, s41, {PT}
s_mov_b32 s45, s56
''')
    a(f'''
s_mul_i32 s56, s75, 205
s_lshr_b32 s56, s56, 11
s_lshl_b32 s56, s56, 5
s_lshl_b32 s57, s74, 3
s_add_u32 s56, s56, s57
s_add_u32 s56, s56, {F_OT + FL // 128}
v_and_b32 v4, 7, v1
v_add_lshl_u32 v{vFR}, v4, s56, 7
s_lshl_b32 s56, s74, 4
s_add_u32 s56, s56, {F_T + FL // 128}
v_add_lshl_u32 v{vFT}, v3, s56, 7
v_mov_b32 v{vFV}, 0
''')
    a(f'''
v_bfe_u32 v4, v1, 3, 1
v_lshlrev_b32 v4, 2, v4
v_bfe_u32 v5, v1, 4, 1
v_lshl_add_u32 v4, v5, 1, v4
v_lshrrev_b32 v6, 5, v1
v_add_u32 v4, v4, v6
v_and_b32 v5, 1, v1
v_lshl_add_u32 v4, v5, 3, v4
v_lshlrev_b32 v4, 4, v4
v_bfe_u32 v5, v1, 1, 2
v_lshl_add_u32 v{vMS}, v5, 2, v4
v_lshrrev_b32 v4, 3, v3
v_lshlrev_b32 v4, 9, v4
v_lshl_add_u32 v4, v2, 7, v4
v_and_b32 v5, 7, v1
v_lshl_add_u32 v{vOW}, v5, 4, v4
s_mov_b32 s46, -1
s_mov_b32 s47, 0
s_mov_b32 {sSEG}, 0
''')
    def need():
        a(f's_sub_u32 s58, {sSEG}, 1\ns_add_u32 s59, {sSEG}, 1\ns_min_u32 s40, s59, {NSEG}')
    waitR = lambda: G.wait_flags(f'v{vFR}', f'v{vFV}', 's40', sleep=1)
    waitT = lambda: G.wait_flags(f'v{vFT}', f'v{vFTv}', 's58', sleep=1)
    def progress(val):
        l = a.label('L_c_pg')
        a(f's_cmp_eq_u32 {sW}, 0\ns_cbranch_scc0 {l}\nv_mov_b32 v4, {val}\nbuffer_store_dword v4, v{vZ}, {WS}, s72 offen sc1\n{l}:')
    def pdma(par):
        if G.diag & 2: return
        a(f's_add_u32 m0, s45, {16384 * par}\ns_nop 0')
        for k in range(4): a(f'buffer_load_dwordx4 v{vL16}, {WS}, s41 offen offset:{k * 1024} sc1 lds')
        a(f'ADV s41 s41 {L_PT}')
    d0, d1 = vr(OA, 4), vr(OA + 4, 4)
    def prod_parts(H, par):
        rd = [f'ds_read_b128 {vr(PB + 4 * k, 4)}, v{vL16} offset:{16384 * par + 1024 * k}' for k in range(16)]
        mf = [(k + 1, f'{MF32} {d1}, {vr(H + 4 * k, 4)}, {vr(PB + 4 * k, 4)}, {"0" if k == 0 else d1}') for k in range(8)]
        mf += [(9 + k // 2, f'{MF16} {d0}, {vr(H + 4 * k, 2)}, {vr(PB + 32 + 2 * k, 2)}, {"0" if k == 0 else d0}') for k in range(8)]
        mf += [(16, ('s_nop 3\n' if k == 0 else '') + f'{MF32} {(d0, d1)[k >> 1]}, {vr(H + 32 + 4 * (k & 1), 4)}, {vr(PB + 48 + 4 * k, 4)}, {(d0, d1)[k >> 1]}') for k in (2, 3, 0, 1)]
        o = []; have = 0
        for need, t in mf:
            if need > have: t = f's_waitcnt lgkmcnt({16 - need})\n' + t; have = need
            o.append(t)
        return rd + o[:G.psplit], o[G.psplit:]
    def prod_store():
        a(f"""buffer_store_dwordx4 {d1}, v{vOW}, {WS}, s36 offen offset:1024 sc1
buffer_store_dwordx4 {d0}, v{vOW}, {WS}, s36 offen sc1
ADV s36 s36 {L_XO}""")
    def products(H, par):
        for t in sum(prod_parts(H, par), []): a(t)
        a('s_nop 7')
        prod_store()
    def voload(u):
        if G.diag & 2: return
        a('s_add_u32 s59, s68, 4096')
        for i in range(8): a(f'buffer_load_dwordx4 {vr(YS(u) + 4 * i, 4)}, v{vL16}, {WS}, {"s68" if i < 4 else "s59"} offen offset:{(i & 3) * 1024} sc1')
        a(f'ADV s68 s68 {L_VO}')
    def eload(b):
        for p in range(4): a(f'buffer_load_dwordx4 v[{b + 4*p}:{b + 4*p + 3}], v{vE}, {WS}, s65 offen offset:{1024 * p} sc1')
    zregs = [BZ + 8 * p + i for p in range(2) for i in range(4)]
    def zload(_):
        for p in range(2): a(f'buffer_load_dwordx4 v[{BZ + 8*p}:{BZ + 8*p + 3}], v{vL16}, {WS}, s67 offen offset:{1024 * p} sc1')
    def lload(b):
        a(f'buffer_load_dwordx4 v[{b}:{b+3}], v{vL16}, {WS}, s66 offen sc1\nbuffer_load_dwordx4 v[{b+4}:{b+7}], v{vL16}, {WS}, s66 offen offset:1024 sc1')
    zero = lambda: [a(f'v_mov_b32 v{AC + i}, 0') for i in range(4)]
    zsave = lambda u: [a(f'v_accvgpr_write_b32 {vr(YS(u) + 32 + i)}, v{zregs[i]}') for i in range(8)]
    comb = lambda b: f'{SMF} v[{AC}:{AC+3}], v[{b}:{b+3}], v[{BZ}:{BZ+7}], v{vIDX}\n{SMF} v[{AC}:{AC+3}], v[{b+4}:{b+7}], v[{BZ+8}:{BZ+15}], v{vIDX}'
    flv = f'buffer_load_dword v{vFV}, v{vFL}, {WS}, 0 offen sc1'
    def umf(u, p, b):
        for q in range(2):
            a(f'{MF32} {vr(D1 + (2*p + q) * 4, 4)}, v[{b + 4*p}:{b + 4*p + 3}], {vr(YS(u) + (2*p+q)*4, 4)}, 0')
    def xprep():
        a(G.win('s69', 's70') + '\ns_add_u32 s71, s69, s77')
    def xchg(between, pre, during):
        xl = f'buffer_load_dwordx4 v[{X}:{X+3}], v{vL16}, {WS}, s69 offen sc1\nbuffer_load_dwordx4 v[{X+4}:{X+7}], v{vL16}, {WS}, s69 offen offset:1024 sc1'
        l = a.label('L_c_x')
        a(f'buffer_store_dwordx2 v[{AC}:{AC+1}], v{vL8}, {WS}, s71 offen sc1')
        between()
        if not G.xd: a('s_waitcnt vmcnt(0)')
        a(xl)
        pre()
        during()
        a('s_waitcnt vmcnt(0)')
        G.check(range(X, X + 8), f'v{vT}')
        a(f's_cbranch_vccz {l}')
        R.poll(G, lambda b: a(xl), lambda b: None, 2, 8, X, None, f'v{vT}', pipe=False)
        a(f'{l}:')
    def xarm():
        a(f'ADV s56 s70 {L_XM} 2\n' + G.win('s56', 's56') + f'\ns_add_u32 s56, s56, s77\nbuffer_store_dwordx2 v[26:27], v{vL8}, {WS}, s56 offen sc1\nADV s70 s70 {L_XM}')
    def arms():
        a(f'buffer_store_dword v26, v{vL4}, {WS}, s57 offen LOCAL')
        xarm()
    if not G.diag & 2:
        need(); waitR()
    voload(0)
    def main():
        a('L_c_loop:')
        for u in range(4):
            G.tick(0)
            xprep()
            zero()
            a(f'ADV s64 s64 {L_LOC}\ns_add_u32 s62, {sSEG}, 1\nv_mov_b32 v{vHV}, s62')
            if not G.pbar: a('s_waitcnt vmcnt(0)\ns_barrier')
            R.poll(G, eload, lambda b: None, 4, 16, EB, None, f'v{vT}', pipe=False)
            G.tick(1)
            zload(0); lload(LA)
            def pack(p):
                d = BZ + 8 * (p >> 1) + 4 + 2 * (p & 1)
                o = [f'v_cndmask_b32 v{D1 + 8*p + r}, v{D1 + 8*p + 4 + r}, v{D1 + 8*p + r}, s[46:47]' for r in range(4)]
                return o + [f'v_cvt_pk_bf16_f32 v{d}, v{D1 + 8*p}, v{D1 + 8*p + 1}', f'v_cvt_pk_bf16_f32 v{d + 1}, v{D1 + 8*p + 2}, v{D1 + 8*p + 3}']
            pk = sum((pack(p) for p in range(4)), [])
            for n in range(8):
                a(f'{MF32} {vr(D1 + 4 * n, 4)}, v[{EB + 4*(n>>1)}:{EB + 4*(n>>1) + 3}], {vr(YS(u) + 4 * n, 4)}, 0')
                if n >= 4:
                    for _ in range(2): a(pk.pop(0))
            for t in pk: a(t)
            a('s_waitcnt vmcnt(2)')
            G.check(zregs, f'v{vT}')
            a(f's_cbranch_vccz L_c_zok{u}')
            R.poll(G, lambda b: (zload(0), lload(LA)), lambda b: None, 4, 8, zregs, None, f'v{vT}', pipe=False)
            a(f'L_c_zok{u}:')
            G.tick(2)
            if G.lser:
                a(f's_mov_b32 {sSPIN}, {SPIN}\nL_c_lp{u}:\ns_waitcnt vmcnt(0)')
                a(comb(LA)); G.check(range(LA, LA + 8), f'v{vT}')
                a(f's_cbranch_vccz L_c_red{u}')
                lload(LA); a('s_nop 1'); zero()
                a(f's_sub_u32 {sSPIN}, {sSPIN}, 1\ns_cbranch_scc1 L_fail')
            else:
                lload(LB)
                a(f's_mov_b32 {sSPIN}, {SPIN}\nL_c_lp{u}:\ns_waitcnt vmcnt(2)')
                a(comb(LA)); G.check(range(LA, LA + 8), f'v{vT}')
                a(f's_cbranch_vccz L_c_red{u}')
                lload(LA); a('s_nop 1'); zero()
                a(f's_sub_u32 {sSPIN}, {sSPIN}, 1\ns_cbranch_scc1 L_fail\ns_waitcnt vmcnt(2)')
                a(comb(LB)); G.check(range(LB, LB + 8), f'v{vT}')
                a(f's_cbranch_vccz L_c_red{u}')
                lload(LB); a('s_nop 1'); zero()
            a(f'''s_branch L_c_lp{u}
L_c_red{u}:
s_nop 1
v_permlane32_swap_b32 v{AC}, v{AC+2}
v_permlane32_swap_b32 v{AC+1}, v{AC+3}
v_add_f32 v{AC}, v{AC}, v{AC+2}
v_add_f32 v{AC+1}, v{AC+1}, v{AC+3}''')
            pa, pb = prod_parts(YS(u + 2), u & 1)
            def between():
                G.tick(3)
                if G.pbar: a('s_barrier')
                for t in pa: a(t)
            def hint():
                a(f's_cmp_eq_u32 s75, 0\ns_cbranch_scc0 L_c_nh{u}\nbuffer_store_dword v{vHV}, v{vZ}, {WS}, s79 offen LOCAL\nL_c_nh{u}:')
            def during():
                for t in pb: a(t)
                zsave(u)
                a(f'ADV s65 s65 {L_LOC}\nADV s66 s66 {L_LOC}\nADV s67 s67 {L_LOC}\nADV s57 s64 {L_LOC} 2\ns_add_u32 {sSEG}, {sSEG}, 1')
            xchg(between, hint, during)
            for r in range(4): a(f'v_add_f32 v{X+r}, v{X+r}, v{X+4+r}')
            a(f'''s_nop 0
v_permlane32_swap_b32 v{X}, v{X+1}
v_permlane32_swap_b32 v{X+2}, v{X+3}
v_add_f32 v{X}, v{X}, v{X+1}
v_add_f32 v{X+2}, v{X+2}, v{X+3}
v_cvt_pk_bf16_f32 v{X}, v{X}, v{X+2}
v_min_u32 v{X}, -2, v{X}
buffer_store_dword v{X}, v{vMS}, {WS}, s64 offen LOCAL''')
            G.tick(4)
            a('s_barrier')
            need()
            a(f's_cmp_lt_u32 {sSEG}, 3\ns_cbranch_scc1 L_c_early{u}')
            if G.diag & 2: arms()
            else:
                a(f's_sub_u32 s42, {sSEG}, 3\nv_cmp_gt_u32 vcc, s40, v{vFV}\ns_cbranch_vccnz L_c_rw{u}\nL_c_rok{u}:')
                a(f'buffer_load_dword v{vFTv}, v{vFT}, {WS}, 0 offen sc1\nbuffer_load_dword v{vFV}, v{vFR}, {WS}, 0 offen sc1')
                progress('s42')
                if G.vof: voload(u + 1)
                prod_store(); arms()
                if not G.vof: voload(u + 1)
                G.tick(5)
                a(f's_waitcnt vmcnt(13)\nv_cmp_gt_u32 vcc, s58, v{vFTv}\ns_cbranch_vccnz L_c_tw{u}\nL_c_tok{u}:')
                pdma((u + 1) & 1)
                G.tick(6)
                if G.diag & 4:
                    for k, n in ((0, 16), (1, 12), (2, 8), (3, 4)):
                        a(f's_waitcnt vmcnt({n})'); G.tick(k)
                    a('s_waitcnt vmcnt(0)')
            G.tick(7)
            G.flush(8, vt=(4, 5))
            a(f'L_c_next{u}:')
            if u == 2: a(f's_cmp_lt_u32 {sSEG}, {NSEG - 1}\ns_cbranch_scc0 L_c_drain')
        a('s_branch L_c_loop')
        for u in range(4):
            a(f'L_c_early{u}:')
            arms()
            if not G.diag & 2:
                waitR(); voload(u + 1)
                if u == 1: waitT(); pdma(0)
            a(f's_branch L_c_next{u}')
            if not G.diag & 2:
                a(f'L_c_rw{u}:'); waitR()
                a(f's_branch L_c_rok{u}\nL_c_tw{u}:'); waitT()
                a(f's_branch L_c_tok{u}')
        a('L_c_drain:')
        if G.diag & 2:
            a('s_branch L_end'); return
        for seg in (61, 62, 63):
            if seg == 63:
                R.poll(G, zload, lambda b: None, 4, 8, zregs, None, f'v{vT}', pipe=False, sleep=1)
                zsave(3)
            if seg > 61:
                a(f's_mov_b32 s58, {seg + 1}')
                waitT(); pdma(seg & 1)
            a('s_waitcnt vmcnt(0)\ns_barrier')
            progress(seg)
            products(YS(seg), seg & 1)
        a('s_waitcnt vmcnt(0)\ns_barrier')
        progress(64)
        G.stamp(3)
        a('s_branch L_end')
    G.two_flavours('c', main)
```

```python
from gen import *

def head_slab_load(G, mats, vb, vres, park):
    a = G.a
    for u in range(192): assert (u * 171) >> 12 == u // 24
    a(f's_mul_i32 s58, {sIDX}, 384')
    for i in range(3):
        a(f"""v_add_u32 v4, {64 * i}, v1
v_mul_u32_u24 v5, 171, v4
v_lshrrev_b32 v5, 12, v5
v_mul_u32_u24 v6, 24, v5
v_sub_u32 v4, v4, v6
v_mul_u32_u24 v5, 12288, v5
v_lshl_add_u32 v5, v4, 4, v5
v_add_u32 v{vb + i}, s58, v5""")
    a(f"""v_lshrrev_b32 v4, 2, v3
v_lshl_add_u32 v4, v2, 3, v4
v_mul_u32_u24 v4, 384, v4
v_and_b32 v5, 3, v3
v_lshl_add_u32 v4, v5, 3, v4
s_lshr_b32 s56, {sW}, 1
s_lshl_b32 s56, s56, 1
s_add_u32 s56, s56, {sW}
s_lshl_b32 s56, s56, 6
s_lshl_b32 s57, {sW}, 5
s_add_u32 s57, s57, 128
v_add_u32 v{vb + 11}, s56, v4
v_add_u32 v{vb + 12}, s57, v4
s_mul_i32 s70, {sW}, 12288""")
    for i in range(4):
        a(f's_xor_b32 s56, {sW}, {i}\ns_mul_i32 s56, s56, 12288\nv_add_u32 v{vb + 3 + 2*i}, s56, v{vb + 11}\nv_add_u32 v{vb + 4 + 2*i}, s56, v{vb + 12}')
    ng = 5 * len(mats)
    def issue(gi):
        srd = mats[gi // 5][0]; g = gi % 5
        if g < 4: a(f's_mul_i32 s72, {sW}, {4 * 393216}\ns_add_u32 s72, s72, {g * 393216}')
        else: a(f's_mul_i32 s72, {sW}, 393216\ns_add_u32 s72, s72, {16 * 393216}')
        for k in range(4):
            for i in range(3): G.dma(f'v{vb+i}', srd, 's72', 's70', (gi % 3) * 49152 + k * 3072 + i * 1024)
            if k < 3: a(f's_add_u32 s72, s72, {8 * 12288}')
    parked = {}
    base = 0
    tk = lambda i: a(f's_memrealtime s[{80 + 2*i}:{81 + 2*i}]') if G.diag & 16 else None
    tk(0); issue(0); issue(1); tk(1)
    for gi in range(ng):
        if gi == 3: tk(2)
        a(f's_waitcnt vmcnt({12 if gi + 1 < ng else 0})')
        if gi == 3: tk(3)
        a('s_barrier')
        if gi == 3: tk(4)
        if gi + 2 < ng: issue(gi + 2)
        if gi == 3: tk(5)
        if gi == 4: tk(6)
        nb = (gi % 3) * 49152
        if nb != base:
            for r in range(vb + 3, vb + 13): a(f'v_add_u32 v{r}, {nb - base}, v{r}')
            base = nb
        dest = mats[gi // 5][1]; g = gi % 5
        for i in range(4):
            b = g + 4 * i if g < 4 else 16 + i
            for tl in range(3):
                kind, d = dest(b >> 1, tl)
                if kind == 'l': d = parked.setdefault(d, park + 8 * len(parked))
                ad = (vb + 3 + 2 * i if g < 4 else vb + 11) + (tl == 2)
                off = (0 if g < 4 else i * 12288) + (tl & 1) * 32
                for hf in range(2):
                    a(f'ds_read_b64_tr_b16 {vr(d + 4 * (b & 1) + 2 * hf, 2)}, v{ad} offset:{off + hf * 1536}')
        a('s_waitcnt lgkmcnt(0)')
    a('s_barrier')
    if G.diag & 16:
        tk(7); a(f's_mov_b32 {sSEG}, 0'); G.prof = 2; G.flush(8, vt=(4, 5)); G.prof = 1
    for o, r in parked.items():
        a(f'ds_write_b128 v{vres}, {vr(r, 4)} offset:{o}\nds_write_b128 v{vres}, {vr(r + 4, 4)} offset:{o + 1024}')
    a('s_waitcnt lgkmcnt(0)')

def mpoll_setup(G, vg4, vg2, vl4, vl2, ssel, ldsbase):
    a = G.a
    a(f'''
s_lshl_b32 s56, {sW}, 11
v_lshl_add_u32 v{vl4}, v1, 4, s56
v_mov_b32 v{vg4}, v{vl4}
v_add_u32 v{vl4}, {ldsbase}, v{vl4}
s_lshl_b32 s56, {sW}, 9
v_lshl_add_u32 v{vl2}, v1, 3, s56
v_add_u32 v{vg2}, 8192, v{vl2}
v_add_u32 v{vl2}, {ldsbase + 8192}, v{vl2}
''')

def poll(G, load, use, n, nreg, A, B, vt, pipe=True, sleep=0):
    a = G.a; l = a.label('L_poll')
    a(f's_mov_b32 {sSPIN}, {SPIN}')
    if not pipe:
        a(f'{l}:')
        load(A)
        a(f's_sub_u32 {sSPIN}, {sSPIN}, 1\ns_cbranch_scc1 L_fail\ns_waitcnt vmcnt(0)')
        use(A)
        G.check(A if isinstance(A, list) else range(A, A + nreg), vt)
        if sleep: a(f's_cbranch_vccz {l}_d\ns_sleep {sleep}\ns_branch {l}\n{l}_d:')
        else: a(f's_cbranch_vccnz {l}')
    else:
        load(A)
        a(f'{l}:')
        load(B)
        a(f's_waitcnt vmcnt({n})')
        use(A); G.check(range(A, A + nreg), vt)
        a(f's_cbranch_vccz {l}_d')
        load(A)
        a(f's_sub_u32 {sSPIN}, {sSPIN}, 1\ns_cbranch_scc1 L_fail\ns_waitcnt vmcnt({n})')
        use(B); G.check(range(B, B + nreg), vt)
        a(f's_cbranch_vccnz {l}')
        a(f'{l}_d:')

def idx_setup(G, v):
    G.a(f'v_mov_b32 v4, 0x4444\nv_mov_b32 v5, 0xeeee\nv_cmp_gt_u32 vcc, 8, v3\ns_nop 1\nv_cndmask_b32 v{v}, v5, v4, vcc')

def ttile_addr(G, vw, vr_):
    G.a(f"""v_lshrrev_b32 v4, 1, v2
v_lshlrev_b32 v4, 3, v4
v_xor_b32 v4, v4, v3
v_lshlrev_b32 v4, 3, v4
v_lshl_add_u32 {vw}, v2, 7, v4
v_lshrrev_b32 v4, 2, v3
v_lshl_add_u32 v4, v2, 2, v4
v_bfe_u32 v5, v3, 1, 1
v_lshlrev_b32 v5, 3, v5
v_xor_b32 v4, v4, v5
v_lshlrev_b32 v4, 3, v4
v_and_b32 v5, 3, v3
v_lshl_add_u32 {vr_}, v5, 7, v4""")

SMF = 'v_smfmac_f32_16x16x64_bf16'
MF32 = 'v_mfma_f32_16x16x32_bf16'
MF16 = 'v_mfma_f32_16x16x16_bf16'

class Proj:
    def __init__(self, G, AB, SBUF, vA, vres, vidx, nbuf=3):
        self.G, self.AB, self.SBUF, self.vA, self.vres, self.vidx, self.nbuf = G, AB, SBUF, vA, vres, vidx, nbuf

class LQ:
    def __init__(self, a): self.a = a; self.n = 0; self.tag = {}; self.done = 0
    def op(self, ins, tag=None):
        self.a(ins); self.n += 1
        if tag is not None: self.tag[tag] = self.n
    def need(self, *tags):
        k = max(self.tag[t] for t in tags if t in self.tag) if any(t in self.tag for t in tags) else 0
        if k > self.done:
            self.a(f's_waitcnt lgkmcnt({min(15, self.n - k)})'); self.done = k
    def drain(self):
        self.a('s_waitcnt lgkmcnt(0)'); self.done = self.n

def roleS(G):
    a = G.a
    a('L_roleS:')
    if G.disabled('S'): return
    (vZ, vIDX, vG4, vG2, vL4, vL2, vA, vRES, vTW, vTR, vPW, vL16, vMW, vMR, vES, vLS, vFL, vKH, vD0, vD1, vA1, vA2, vA3, vPR) = range(8, 32)
    SQ, SK = 16, 124
    vT = 7
    AB = 32
    AQ = 44
    AK = 56
    KT = 68
    KH = 80
    QH = 86
    X = 92
    SB = 108
    Y = 126
    POLA = 98
    W0 = 128
    order = [(0, 0, t) for t in range(3)] + [(0, 1, t) for t in range(3)] + [(1, 0, t) for t in range(3)]
    order += [(0, tau, t) for tau in range(2, 7) for t in range(3)]
    order += [(0, tau, t) for tau in (7, 8, 9) for t in range(2)] + [(0, tau, 2) for tau in (7, 8, 9)] + [(1, 1, t) for t in range(3)]
    order += [(1, tau, t) for tau in (7, 8, 9, 2, 3) for t in range(3)]
    order += [(1, tau, t) for tau in (4, 5, 6) for t in range(2)] + [(1, tau, 2) for tau in (4, 5, 6)]
    assert len(set(order)) == 60
    lds_set = [order[n] for n in (6, 10, 15, 19, 24, 28, 33, 37, 42, 46, 51, 55)]
    nl = len(lds_set); RESW = nl * 2048
    RES, MST, TT, PMT, PMM, STG = 0, 98304, 108544, 120832, 125440, 98304
    assert 4 * RESW <= MST
    loc = {}; nr = 0
    for key in sorted(order):
        if key in lds_set: loc[key] = ('l', lds_set.index(key) * 2048)
        else: loc[key] = ('r', W0 + 8 * nr); nr += 1
    assert W0 + 8 * nr <= 512
    a(f"""
s_mov_b32 {sIDX}, {sROLE}
s_lshl_b32 s66, {sIDX}, 2
s_add_u32 s66, s66, {sW}
s_lshl_b32 s66, s66, 7
s_add_u32 s66, s66, {FL + 128 * F_S}
v_mov_b32 v{vZ}, 0
v_lshlrev_b32 v{vL16}, 4, v1
""")
    G.set_flag('s66', 0, 'v4', f'v{vZ}')
    a(f"""
s_lshl_b32 s64, {sIDX}, 9
s_add_u32 s64, s64, {LE}
s_lshr_b32 s65, {sIDX}, 2
s_lshl_b32 s65, s65, 10
s_and_b32 s56, {sIDX}, 1
s_lshl_b32 s56, s56, 8
s_add_u32 s65, s65, s56
s_and_b32 s56, {sIDX}, 2
s_lshl_b32 s56, s56, 1
s_add_u32 s65, s65, s56
s_add_u32 s65, s65, {LL}
v_mov_b32 v4, -1
v_mov_b32 v5, -1
v_lshlrev_b32 v6, 3, v1
v_lshrrev_b32 v7, 5, v1
v_lshl_add_u32 v7, v7, 8, v6
s_and_b32 s59, {sW}, 1
s_lshl_b32 s59, s59, {L_LOC}
s_add_u32 s56, s59, s64
s_add_u32 s57, s59, s65
buffer_store_dwordx2 v[4:5], v6, {WS}, s56 offen sc1
buffer_store_dword v4, v7, {WS}, s57 offen sc1
""")
    G.arrive()
    G.srd(12, P_WQ, 640 * 12288); G.srd(16, P_WK, 640 * 12288)
    a(f's_mul_i32 s71, {sW}, {RESW}\nv_add_u32 v{vRES}, s71, v{vL16}\nv_mov_b32 v0, v{vL16}')
    head_slab_load(G, [(SA, lambda t, tl: loc[0, t, tl]), ('s[16:19]', lambda t, tl: loc[1, t, tl])][::-1 if G.kfirst else 1], 16, vRES, 32)
    a(f'v_mov_b32 v{vL16}, v0')
    G.await_all()
    a('s_barrier')
    idx_setup(G, vIDX)
    mpoll_setup(G, vG4, vG2, vL4, vL2, sSELM, MST)
    a(f"""
v_xor_b32 v{vA1}, 2048, v{vL4}
v_xor_b32 v{vA2}, 4096, v{vL4}
v_xor_b32 v{vA3}, 6144, v{vL4}
v_add_u32 v{vA}, {MST}, v{vL16}
""")
    a(f"""
v_and_b32 v4, 1, v2
v_lshlrev_b32 v4, 2, v4
v_and_b32 v5, 7, v3
v_sub_u32 v5, v5, v4
v_lshrrev_b32 v6, 2, v3
v_and_b32 v7, 3, v3
v_lshl_add_u32 v6, v6, 1, v7
v_lshrrev_b32 v7, 1, v7
v_lshl_add_u32 v6, v7, 4, v6
v_sub_u32 v6, v6, v4
v_mov_b32 v4, 0x3f80
v_mov_b32 v7, 0x3f800000
""")
    for dst, src in ((SQ, 5), (SK, 6)):
        for hh in range(2):
            a(f"""v_cmp_eq_u32 vcc, {2 * hh}, v{src}
v_cmp_eq_u32 s[56:57], {2 * hh + 1}, v{src}
s_nop 1
v_cndmask_b32 v{dst + hh}, 0, v4, vcc
v_cndmask_b32 v{dst + hh}, v{dst + hh}, v7, s[56:57]""")
    a(f"""
v_cmp_gt_u32 s[74:75], 8, v3
s_mul_i32 s56, {sW}, 1152
s_add_u32 s56, s56, {PMT}
v_lshl_add_u32 v4, v2, 5, v{vL16}
v_add_u32 v{vPW}, s56, v4
v_bfe_u32 v4, v1, 1, 2
v_mul_u32_u24 v4, 288, v4
v_and_b32 v5, 1, v1
v_lshl_add_u32 v4, v5, 7, v4
v_lshrrev_b32 v6, 3, v1
v_lshl_add_u32 v4, v6, 4, v4
v_add_u32 v{vPR}, {PMT}, v4
s_mul_i32 s56, {sW}, 576
s_add_u32 s56, s56, {PMM}
v_mul_u32_u24 v4, 144, v2
v_lshl_add_u32 v4, v3, 3, v4
v_add_u32 v{vMW}, s56, v4
v_and_b32 v4, 3, v1
v_mul_u32_u24 v4, 144, v4
v_lshl_add_u32 v4, v6, 3, v4
v_bfe_u32 v5, v1, 2, 1
v_lshl_add_u32 v4, v5, 6, v4
v_add_u32 v{vMR}, {PMM}, v4
""")
    a(f"""
v_lshrrev_b32 v4, 3, v1
v_bfe_u32 v5, v1, 1, 2
v_and_b32 v6, 1, v1
v_lshlrev_b32 v7, 7, v5
v_lshl_add_u32 v7, v4, 4, v7
v_lshl_add_u32 v{vES}, v6, 3, v7
v_lshl_add_u32 v7, v6, 3, v4
v_lshlrev_b32 v7, 4, v7
v_bfe_u32 v5, v1, 1, 1
v_lshl_add_u32 v7, v5, 3, v7
v_bfe_u32 v{vD0}, v1, 2, 1
v_lshl_add_u32 v{vLS}, v{vD0}, 9, v7
v_lshlrev_b32 v5, 2, v5
v_lshl_add_u32 v5, v6, 1, v5
v_cmp_eq_u32 s[76:77], 1, v{vD0}
v_cmp_eq_u32 vcc, v4, v5
s_nop 1
v_cndmask_b32 v{vD0}, 0, 1.0, vcc
v_add_u32 v5, 1, v5
v_cmp_eq_u32 vcc, v4, v5
s_nop 1
v_cndmask_b32 v{vD1}, 0, 1.0, vcc
""")
    a(f"""
s_cmp_eq_u32 {sW}, 0
s_cselect_b32 s56, 0, 0x40000000
v_add_u32 v{vES}, s56, v{vES}
v_add_u32 v{vLS}, s56, v{vLS}
v_min_u32 v4, 2, v1
s_mul_i32 s56, {sIDX}, 3
s_add_u32 s56, s56, {F_XW + 96 + FL // 128}
v_add_lshl_u32 v{vFL}, v4, s56, 7
s_lshr_b32 s56, {sW}, 1
s_lshl_b32 s57, s56, 1
s_add_u32 s57, s57, {sW}
s_add_u32 s56, s56, 2
s_and_b32 s58, {sW}, 1
s_lshl_b32 s58, s58, 3
v_add_u32 v{vKH}, s58, v{vL16}
s_mul_i32 s58, {sIDX}, 12288
s_add_u32 s58, s58, {QT + QKV_SZ}
s_lshl_b32 s67, s57, 11
s_add_u32 s67, s67, s58
s_lshl_b32 s68, s56, 11
s_add_u32 s68, s68, s58
s_mul_i32 s58, {sIDX}, 6144
s_add_u32 s58, s58, {KM}
s_lshl_b32 s69, s57, 10
s_add_u32 s69, s69, s58
s_lshl_b32 s70, s56, 10
s_add_u32 s70, s70, s58
s_lshr_b32 s56, {sIDX}, 3
s_lshl_b32 s79, s56, 7
s_add_u32 s79, s79, {HC}
s_lshl_b32 s71, s56, 14
s_add_u32 s71, s71, {LM}
s_mov_b32 s78, {f2u(C_SCALE):#x}
s_mov_b32 s62, {f2u(60.0):#x}
s_mov_b32 {sSEG}, 0
s_mov_b32 s73, 1
""")
    ktl = [f'buffer_load_dwordx4 v[{KT}:{KT+3}], v{vL16}, {WS}, s67 offen sc1',
           f'buffer_load_dwordx4 v[{KT+4}:{KT+7}], v{vL16}, {WS}, s67 offen offset:1024 sc1\nADV s67 s67 {L_Q}',
           f'buffer_load_dwordx2 v[{KT+8}:{KT+9}], v{vKH}, {WS}, s68 offen sc1',
           f'buffer_load_dwordx2 v[{KT+10}:{KT+11}], v{vKH}, {WS}, s68 offen offset:1024 sc1\nADV s68 s68 {L_Q}']
    if G.diag & 2: ktl = []
    else: G.wait_flags(f'v{vFL}', 'v4', 's73')
    for t in ktl: a(t)
    def main():
        a('L_s_loop:')
        G.tick(0)
        q = LQ(a)
        def wread(q, i):
            b = SB + (i % 2) * 8
            q.op(f'ds_read_b128 {vr(b, 4)}, v{vRES} offset:{i * 2048}')
            q.op(f'ds_read_b128 {vr(b + 4, 4)}, v{vRES} offset:{i * 2048 + 1024}', ('w', i))
        wread(q, 0); wread(q, 1)
        for i in range(24): a(f'v_mov_b32 v{AQ + i}, 0')
        q.drain()
        aseq = [2, 3, 4, 5, 6, 7, 8, 9, 2, 3, 4, 5, 6]
        slot1 = {t: (t - 2) % 3 for t in range(2, 10)}
        slot2 = dict(slot1); slot2.update({t: (8 + t - 2) % 3 for t in range(2, 7)})
        def ard(q, pos):
            t = aseq[pos]
            ad, off = ((vA1, vA2, vA3)[(t >> 1) - 1], (t & 1) * 1024) if t < 8 else (vA, t * 1024)
            q.op(f'ds_read_b128 {vr(AB + (pos % 3) * 4, 4)}, v{ad} offset:{off}', ('a', pos))
        def smf(q, n, own=POLA):
            mtx, tau, tl = order[n]
            kind, d = loc[mtx, tau, tl]
            if kind == 'l':
                i = d // 2048; d = SB + (i % 2) * 8; q.need(('w', i))
            if tau < 2: A = own + 4 * tau
            else:
                pos = tau - 2 if (mtx == 0 or tau >= 7) else 8 + tau - 2
                q.need(('a', pos)); A = AB + (pos % 3) * 4
            a(f'{SMF} {vr((AQ, AK)[mtx] + 4 * tl, 4)}, {vr(A, 4)}, {vr(d, 8)}, v{vIDX}')
            if kind == 'l' and i + 2 < nl: wread(q, i + 2)
        def mload(b):
            a(f"""buffer_load_dwordx4 v[{b}:{b+3}], v{vG4}, {WS}, s71 offen sc1
buffer_load_dwordx4 v[{b+4}:{b+7}], v{vG4}, {WS}, s71 offen offset:1024 sc1
buffer_load_dwordx2 v[{b+8}:{b+9}], v{vG2}, {WS}, s71 offen sc1""")
        def mwrite(b):
            a(f"""ds_write_b128 v{vL4}, v[{b}:{b+3}]
ds_write_b128 v{vL4}, v[{b+4}:{b+7}] offset:1024
ds_write_b64 v{vL2}, v[{b+8}:{b+9}]""")
        import copy
        def phase0(b, q0, fail):
            a(f'v_max3_u32 v{vT}, v{b+3}, v{b+7}, v{b+9}\nv_cmp_eq_u32 vcc, -1, v{vT}\ns_cbranch_vccnz {fail}')
            G.tick(1)
            wr = [f'ds_write_b128 v{vL4}, v[{b}:{b+3}]', f'ds_write_b128 v{vL4}, v[{b+4}:{b+7}] offset:1024', f'ds_write_b64 v{vL2}, v[{b+8}:{b+9}]']
            ck = [f'v_max3_u32 v{vT}, v{b}, v{b+1}, v{b+2}', f'v_max3_u32 v{vT}, v{vT}, v{b+4}, v{b+5}', f'v_max3_u32 v{vT}, v{vT}, v{b+6}, v{b+8}', f'v_cmp_eq_u32 vcc, -1, v{vT}']
            for n in range(9):
                smf(q0, n, own=b)
                if n < 3: q0.op(wr[n], 'mw')
                if n < 4: a(ck[n])
                if n == 4: a(f's_cbranch_vccnz {fail}_z')
                if n == G.sb1:
                    q0.need('mw'); a('s_barrier')
                    ard(q0, 0); ard(q0, 1); ard(q0, 2)
        def rezero(lab):
            a(f'{lab}_z:\ns_nop 7')
            for i in range(12): a(f'v_mov_b32 v{AQ + i}, 0')
        G.wait_flags(f'v{vZ}', 'v4', sSEG, sleep=0, soff='s79', first=lambda: G.set_flag('s66', sSEG, 'v5', f'v{vZ}', 'LOCAL'))
        G.tick(6)
        a(f's_mov_b32 {sSPIN}, {SPIN}')
        if G.mpipe:
            POLB = 80
            mload(POLA)
            a('s_branch L_s_poll')
            rezero('L_s_pollB')
            a('L_s_pollB:')
            mload(POLA)
            a(f's_sub_u32 {sSPIN}, {sSPIN}, 1\ns_cbranch_scc1 L_fail\ns_waitcnt vmcnt(3)')
            qb = copy.copy(q); qb.tag = dict(q.tag)
            phase0(POLB, qb, 'L_s_poll')
            a('s_branch L_s_main')
            rezero('L_s_poll')
            a('L_s_poll:')
            mload(POLB)
            a('s_waitcnt vmcnt(3)')
            phase0(POLA, q, 'L_s_pollB')
        else:
            a('s_branch L_s_poll')
            rezero('L_s_poll')
            a('L_s_poll:')
            mload(POLA)
            a(f's_sub_u32 {sSPIN}, {sSPIN}, 1\ns_cbranch_scc1 L_fail\ns_waitcnt vmcnt(0)')
            phase0(POLA, q, 'L_s_poll')
        a('L_s_main:')
        fill = {n: [] for n in range(60)}
        V = lambda s_: (lambda: a(s_))
        last_use = {}
        for n in range(9, 60):
            mtx, tau, tl = order[n]
            if tau < 2: continue
            pos = tau - 2 if (mtx == 0 or tau >= 7) else 8 + tau - 2
            last_use[pos] = n
        for pos in range(3, len(aseq)): fill[last_use[pos - 3]].append(lambda pos=pos: ard(q, pos))
        def cvt2(ACC, tl, dst):
            s_ = ACC + 4 * tl
            return [V(f'v_cvt_pk_bf16_f32 v{dst}, v{s_}, v{s_+1}'), V(f'v_cvt_pk_bf16_f32 v{dst+1}, v{s_+2}, v{s_+3}')]
        def tmf(ACC, tl, src, sel): return V(f'{MF16} {vr(ACC + 4 * tl, 4)}, v[{src}:{src+1}], v[{sel}:{sel+1}], 0')
        fill[12].append(V(f'buffer_load_dword v2, v{vFL}, {WS}, 0 offen sc1'))
        fill[30].append(V('s_waitcnt vmcnt(1)'))
        fill[31] += cvt2(AQ, 0, X)
        fill[32] += [V('s_nop 0'), tmf(AQ, 0, X, SQ)] + cvt2(AQ, 1, X + 2)
        fill[33] += [V('s_nop 0'), tmf(AQ, 1, X + 2, SQ)] + cvt2(AQ, 2, X + 4)
        fill[34] += [V('s_nop 0'), tmf(AQ, 2, X + 4, SQ)] + cvt2(AQ, 0, QH)
        fill[35] += cvt2(AQ, 1, QH + 2)
        fill[36] += [V('s_nop 0')] + [V(f'{MF32} {vr(AQ + 4*mt, 4)}, v[{KT + 4*mt}:{KT + 4*mt + 3}], v[{QH}:{QH+3}], 0') for mt in range(2)] + cvt2(AQ, 2, QH + 4)
        fill[38] += [V(f'{MF16} {vr(AQ + 4*mt, 4)}, v[{KT + 8 + 2*mt}:{KT + 9 + 2*mt}], v[{QH+4}:{QH+5}], {vr(AQ + 4*mt, 4)}') for mt in range(2)]
        fill[41] += [V(f'v_cndmask_b32 v{X + r}, v{AQ + 4 + r}, v{AQ + r}, s[74:75]') for r in range(4)]
        fill[41].append(lambda: q.op(f'ds_write_b128 v{vPW}, v[{X}:{X+3}]', 'pw'))
        def b2():
            q.need('pw'); a('s_barrier'); G.tick(2)
            for w in range(4): q.op(f'ds_read_b128 v[{X + 4*w}:{X + 4*w + 3}], v{vPR} offset:{1152 * w}', ('p', w))
        fill[G.b2].append(b2)
        add = lambda d, x, y: V(f'v_add_f32 v{d}, v{x}, v{y}')
        DP = ['quad_perm:[1,0,3,2]', 'quad_perm:[2,3,0,1]', 'row_half_mirror']
        dpt = lambda op, v, k: f'{op}_dpp {v}, {v}, {v} {DP[k]} row_mask:0xf bank_mask:0xf'
        dpp = lambda op, v, k: a(dpt(op, v, k))
        ex = lambda r: V(f'v_exp_f32 v{X+r}, v{X+r}')
        e0 = G.b2 + 5
        assert e0 + 6 <= 59
        fill[e0] += [lambda: q.need(('p', 1))] + [add(X + r, X + r, X + 4 + r) for r in range(4)]
        fill[e0 + 1] += [lambda: q.need(('p', 3))] + [add(X + 8 + r, X + 8 + r, X + 12 + r) for r in range(4)]
        fill[e0 + 2] += [add(X + r, X + r, X + 8 + r) for r in range(4)]
        fill[e0 + 3] += [V(f'v_max3_f32 v5, v{X}, v{X+1}, v{X+2}'), V(f'v_max_f32 v5, v5, v{X+3}')]
        fill[e0 + 4] += [V('s_nop 0'), V(dpt('v_max_f32', 'v5', 0))]
        fill[e0 + 5] += [V('s_nop 0'), V(dpt('v_max_f32', 'v5', 1))]
        fill[e0 + 6] += [V('s_nop 0'), V(dpt('v_max_f32', 'v5', 2))]
        fm = lambda r: V(f'v_fma_f32 v{X+r}, v{X+r}, s78, -v5')
        est = V(f'v_cvt_pk_bf16_f32 v{X+4}, v{X}, v{X+1}\nv_cvt_pk_bf16_f32 v{X+5}, v{X+2}, v{X+3}\nbuffer_store_dwordx2 v[{X+4}:{X+5}], v{vES}, {WS}, s64 offen LOCAL')
        mul5 = V('v_mul_f32 v5, s78, v5')
        if G.early:
            fill[e0 + 6] += [mul5] + [fm(r) for r in range(4)]
            mul5 = V('s_nop 0'); fm = lambda r: ex(r)
        fill[58] += cvt2(AK, 0, X + 8)
        for n in range(9, 60):
            smf(q, n)
            for f in fill[n]: f()
        G.tick(3)
        S0 = AQ + 8; d = vr(S0, 4)
        run = lambda fs: [f() for f in fs]
        run(cvt2(AK, 1, X + 10) + [tmf(AK, 0, X + 8, SK), mul5, tmf(AK, 1, X + 10, SK), fm(0), fm(1), fm(2)])
        if G.early:
            run(cvt2(AK, 2, Y) + [fm(3), V('s_nop 0'), tmf(AK, 2, Y, SK), est])
            G.tick(7)
            run(cvt2(AK, 0, KH) + cvt2(AK, 1, KH + 2))
            a(f's_nop 1\n{MF32} {d}, v[{KH}:{KH+3}], v[{QH}:{QH+3}], 0')
            run(cvt2(AK, 2, KH + 4))
            a(f's_cmp_eq_u32 {sW}, 0\ns_nop 2\n{MF16} {d}, v[{KH+4}:{KH+5}], v[{QH+4}:{QH+5}], {d}\ns_nop 0')
        else:
            run(cvt2(AK, 2, Y) + [fm(3), ex(0), tmf(AK, 2, Y, SK)] + cvt2(AK, 0, KH) + cvt2(AK, 1, KH + 2) + [ex(1), ex(2)])
            a(f'{MF32} {d}, v[{KH}:{KH+3}], v[{QH}:{QH+3}], 0')
            run([ex(3)] + cvt2(AK, 2, KH + 4))
            a(f"""v_cvt_pk_bf16_f32 v{X+4}, v{X}, v{X+1}
v_cvt_pk_bf16_f32 v{X+5}, v{X+2}, v{X+3}
s_cmp_eq_u32 {sW}, 0
{MF16} {d}, v[{KH+4}:{KH+5}], v[{QH+4}:{QH+5}], {d}
buffer_store_dwordx2 v[{X+4}:{X+5}], v{vES}, {WS}, s64 offen LOCAL""")
            G.tick(7)
        a(f"""v_add_f32 v6, v{X}, v{X+1}
v_add_f32 v4, v{X+2}, v{X+3}
v_add_f32 v6, v6, v4
s_nop 1
{dpt('v_add_f32', 'v6', 0)}
s_nop 0
ds_write_b64 v{vMW}, v[{S0}:{S0+1}]
{dpt('v_add_f32', 'v6', 1)}
s_nop 1
{dpt('v_add_f32', 'v6', 2)}
s_waitcnt lgkmcnt(0)
s_barrier
""")
        G.tick(4)
        Z = X + 8
        a(f"""s_cbranch_scc0 L_s_nolate
ds_read2_b64 v[{Z}:{Z+3}], v{vMR} offset0:0 offset1:72
ds_read2_b64 v[{Z+4}:{Z+7}], v{vMR} offset0:144 offset1:216
s_waitcnt lgkmcnt(1)
v_add_f32 v{Z}, v{Z}, v{Z+2}
v_add_f32 v{Z+1}, v{Z+1}, v{Z+3}
s_waitcnt lgkmcnt(0)
v_add_f32 v{Z+4}, v{Z+4}, v{Z+6}
v_add_f32 v{Z+5}, v{Z+5}, v{Z+7}
v_add_f32 v{Z}, v{Z}, v{Z+4}
v_add_f32 v{Z+1}, v{Z+1}, v{Z+5}
v_fma_f32 v{Z+2}, v{Z}, s78, -v5
v_fma_f32 v{Z+3}, v{Z+1}, s78, -v5
v_exp_f32 v{Z+4}, v{Z+2}
v_exp_f32 v{Z+5}, v{Z+3}
v_max_f32 v{Z+2}, v{Z+2}, v{Z+3}
v_add_f32 v{Z+6}, v{Z+4}, v{Z+5}
v_cmp_nge_f32 vcc, {'-4.0' if G.diag & 32 else 's62'}, v{Z+2}
v_cndmask_b32 v{Z+4}, v{Z+4}, v{vD0}, s[76:77]
{dpt('v_add_f32', f'v{Z+6}', 0)}
v_cndmask_b32 v{Z+5}, v{Z+5}, v{vD1}, s[76:77]
s_cbranch_vccnz L_s_exact
{dpt('v_add_f32', f'v{Z+6}', 1)}
v_add_f32 v{Z+6}, v{Z+6}, v6
L_s_norm:
v_rcp_f32 v{Z+6}, v{Z+6}
s_nop 0
v_mul_f32 v{Z+4}, v{Z+4}, v{Z+6}
v_mul_f32 v{Z+5}, v{Z+5}, v{Z+6}
v_cvt_pk_bf16_f32 v{Z}, v{Z+4}, v{Z+5}
v_min_u32 v{Z}, -2, v{Z}
buffer_store_dword v{Z}, v{vLS}, {WS}, s65 offen LOCAL
""")
        def exact():
            a(f"""L_s_exact:
v_max_f32 v{Z+2}, v{Z}, v{Z+1}
s_nop 1
{dpt('v_max_f32', f'v{Z+2}', 0)}
s_nop 1
{dpt('v_max_f32', f'v{Z+2}', 1)}
v_mul_f32 v{Z+2}, s78, v{Z+2}
v_max_f32 v{Z+2}, v{Z+2}, v5
v_fma_f32 v{Z+4}, v{Z}, s78, -v{Z+2}
v_fma_f32 v{Z+5}, v{Z+1}, s78, -v{Z+2}
v_sub_f32 v{Z+3}, v5, v{Z+2}
v_exp_f32 v{Z+4}, v{Z+4}
v_exp_f32 v{Z+5}, v{Z+5}
v_exp_f32 v{Z+3}, v{Z+3}
v_add_f32 v{Z+6}, v{Z+4}, v{Z+5}
v_mul_f32 v{Z}, v{vD0}, v{Z+3}
v_mul_f32 v{Z+1}, v{vD1}, v{Z+3}
{dpt('v_add_f32', f'v{Z+6}', 0)}
v_cndmask_b32 v{Z+4}, v{Z+4}, v{Z}, s[76:77]
v_cndmask_b32 v{Z+5}, v{Z+5}, v{Z+1}, s[76:77]
{dpt('v_add_f32', f'v{Z+6}', 1)}
v_fmac_f32 v{Z+6}, v6, v{Z+3}
s_branch L_s_norm""")
        G.tick(5)
        a(f"""L_s_nolate:
s_barrier
v_mov_b32 v{X}, -1
v_mov_b32 v{X+1}, -1
ADV s56 s64 {L_LOC} 2
ADV s57 s65 {L_LOC} 2
buffer_store_dwordx2 v[{X}:{X+1}], v{vES}, {WS}, s56 offen LOCAL
buffer_store_dword v{X}, v{vLS}, {WS}, s57 offen LOCAL
buffer_store_dwordx4 v[{KH}:{KH+3}], v{vL16}, {WS}, s69 offen LOCAL
buffer_store_dwordx2 v[{KH+4}:{KH+5}], v{vKH}, {WS}, s70 offen LOCAL
s_add_u32 s73, {sSEG}, 2
s_min_u32 s73, s73, {NSEG}
s_waitcnt vmcnt(5)
v_cmp_gt_u32 vcc, {0 if G.diag & 2 else 's73'}, v2
s_cbranch_vccnz L_s_kwait
L_s_kok:
""")
        for t in ktl: a(t)
        a(f"""ADV s69 s69 {L_KM}
ADV s70 s70 {L_KM}
ADV s64 s64 {L_LOC}
ADV s65 s65 {L_LOC}
ADV s71 s71 {L_LOC}
""")
        G.flush(8, vt=(4, 7))
        G.stamp(sSEG, vt=(4, 7))
        a(f's_add_u32 {sSEG}, {sSEG}, 1\ns_cmp_lt_u32 {sSEG}, {NSEG}\ns_cbranch_scc1 L_s_loop\ns_waitcnt vmcnt(0)')
        G.set_flag('s66', sSEG, 'v4', f'v{vZ}', 'LOCAL')
        G.stamp(3)
        a('s_branch L_end\nL_s_kwait:')
        G.wait_flags(f'v{vFL}', 'v2', 's73')
        a('s_branch L_s_kok')
        exact()
    G.two_flavours('s', main)

def roleV(G):
    a = G.a
    a('L_roleV:')
    if G.disabled('V'): return
    vT, vIDX, vG4, vG2, vL4, vL2, vA, vRES, vTW, vTW3, vL16, vZS, vA1, vA2, vA3 = range(8, 23)
    SEL = 0
    AB = 24
    AC = 56
    POL = 68
    X = 80
    SB = 88
    W0 = 104
    order = [(tau, t) for tau in range(2) for t in range(3)] + [(tau, t) for tau in range(2, 10) for t in range(2)] + [(tau, 2) for tau in range(2, 10)]
    lds_set = [order[n] for n in (5, 8, 11, 14, 17, 20, 23, 26, 29)]
    RESW = len(lds_set) * 2048
    RES, MST, TT = 0, 73728, 83968
    loc = {}; nr = 0
    wo = {}
    for t3 in range(3):
        for c in range(10): wo[t3, c] = W0 + 8 * nr; nr += 1
    for key in order:
        if key in lds_set: loc[key] = ('l', lds_set.index(key) * 2048)
        else: loc[key] = ('r', W0 + 8 * nr); nr += 1
    assert W0 + 8 * nr <= 512
    a(f'''
s_sub_u32 {sIDX}, {sROLE}, {R_V}
v_lshlrev_b32 v{vL16}, 4, v1
v_and_b32 v4, 31, v1
v_lshlrev_b32 v4, 4, v4
v_lshrrev_b32 v5, 5, v1
v_lshl_add_u32 v{vZS}, v5, 13, v4
s_mul_i32 s64, {sW}, 81920
s_lshr_b32 s56, {sIDX}, 2
s_lshl_b32 s56, s56, 10
s_add_u32 s64, s64, s56
s_and_b32 s56, {sIDX}, 1
s_lshl_b32 s56, s56, 9
s_add_u32 s64, s64, s56
s_and_b32 s56, {sIDX}, 2
s_lshl_b32 s56, s56, 2
s_add_u32 s64, s64, s56
s_add_u32 s64, s64, {LZ}
v_mov_b32 v4, -1
v_mov_b32 v5, -1
''')
    for extra in (0, 1 << L_LOC):
        for p in range(5):
            a(f's_add_u32 s56, s64, {extra + p * 16384}\nbuffer_store_dwordx2 v[4:5], v{vZS}, {WS}, s56 offen sc1')
    G.arrive()
    G.srd(12, P_WO, 32 * 245760); G.srd(16, P_WV, 640 * 12288)
    a(f'''s_mul_i32 s57, {sW}, 320
v_lshlrev_b32 v13, 4, v1
v_and_b32 v4, 1, v2
v_lshlrev_b32 v4, 5, v4
v_lshrrev_b32 v5, 3, v3
v_lshl_add_u32 v4, v5, 4, v4
v_lshrrev_b32 v5, 1, v2
v_lshl_add_u32 v4, v5, 2, v4
v_bfe_u32 v5, v3, 2, 1
v_add_u32 v4, v4, v5
v_mul_u32_u24 v4, 1280, v4
v_and_b32 v5, 3, v3
v_lshl_add_u32 v4, v5, 3, v4
v_add_u32 v29, s57, v4''')
    def consume(b):
        for c in range(10):
            for q2 in range(4):
                a(f'ds_read_b64_tr_b16 {vr(wo[b, c] + 2 * q2, 2)}, v29 offset:{(8 * (q2 >> 1) + 2 * (q2 & 1)) * 1280 + c * 32}')
    G.wo_load(64, 2, 'v29', consume)
    a(f's_mul_i32 s71, {sW}, {RESW}\nv_add_u32 v{vRES}, s71, v{vL16}\nv_mov_b32 v0, v{vZS}')
    head_slab_load(G, [('s[16:19]', lambda t, tl: loc[t, tl])], 19, vRES, 32)
    a(f'v_mov_b32 v{vZS}, v0')
    G.await_all()
    a('s_barrier')
    idx_setup(G, vIDX)
    mpoll_setup(G, vG4, vG2, vL4, vL2, sSELV, MST)
    a(f'''
v_add_u32 v{vA}, {MST}, v{vL16}
s_lshr_b32 s56, {sW}, 1
s_lshl_b32 s57, s56, 11
s_and_b32 s58, {sW}, 1
s_lshl_b32 s59, s58, 3
s_add_u32 s57, s57, s59
s_add_u32 s57, s57, {TT}
v_add_u32 v{vTW}, s57, v{vL16}
s_lshl_b32 s56, s56, 3
s_add_u32 s56, s56, {TT + 1024}
v_add_u32 v{vTW3}, s56, v{vL16}
v_lshrrev_b32 v4, 3, v3
v_cmp_eq_u32 s[76:77], s58, v4
s_lshr_b32 s56, {sIDX}, 3
s_lshl_b32 s79, s56, 7
s_add_u32 s79, s79, {HC}
s_lshl_b32 s71, s56, 14
s_add_u32 s71, s71, {LM}
v_mov_b32 v23, 0
s_mov_b32 {sSEG}, 0
v_and_b32 v4, 1, v2
v_lshlrev_b32 v4, 2, v4
v_sub_u32 v5, v3, v4
v_mov_b32 v6, 0x3f80
v_mov_b32 v7, 0x3f800000
''')
    for hh in range(4):
        k0 = 2 * (hh & 1) + 8 * (hh >> 1)
        a(f'''v_cmp_eq_u32 vcc, {k0}, v5
v_cmp_eq_u32 s[56:57], {k0 + 1}, v5
s_nop 1
v_cndmask_b32 v{SEL + hh}, 0, v6, vcc
v_cndmask_b32 v{SEL + hh}, v{SEL + hh}, v7, s[56:57]''')
    a(f'''s_lshl_b32 s56, {sIDX}, 2
s_add_u32 s56, s56, {sW}
s_mul_i32 s65, s56, 10240
s_add_u32 s65, s65, {VO + 2 * L_VO}
s_mul_i32 s66, s56, 3072
s_add_u32 s66, s66, {QT + QKV_SZ + L_Q}''')
    nl = len(lds_set)
    a(f'v_xor_b32 v{vA1}, 2048, v{vL4}\nv_xor_b32 v{vA2}, 4096, v{vL4}\nv_xor_b32 v{vA3}, 6144, v{vL4}')
    def main():
        a('L_v_loop:')
        G.tick(0)
        q = LQ(a)
        def wread(i):
            b = SB + (i % 2) * 8
            q.op(f'ds_read_b128 {vr(b, 4)}, v{vRES} offset:{i * 2048}')
            q.op(f'ds_read_b128 {vr(b + 4, 4)}, v{vRES} offset:{i * 2048 + 1024}', ('w', i))
        wread(0); wread(1)
        for i in range(12): a(f'v_mov_b32 v{AC + i}, 0')
        q.drain()
        def mload(b):
            a(f"""buffer_load_dwordx4 v[{b}:{b+3}], v{vG4}, {WS}, s71 offen sc1
buffer_load_dwordx4 v[{b+4}:{b+7}], v{vG4}, {WS}, s71 offen offset:1024 sc1
buffer_load_dwordx2 v[{b+8}:{b+9}], v{vG2}, {WS}, s71 offen sc1""")
        def mwrite(b):
            a(f"""ds_write_b128 v{vL4}, v[{b}:{b+3}]
ds_write_b128 v{vL4}, v[{b+4}:{b+7}] offset:1024
ds_write_b64 v{vL2}, v[{b+8}:{b+9}]""")
        G.wait_flags('v23', 'v4', sSEG, sleep=0, soff='s79')
        a(f's_mov_b32 {sSPIN}, {SPIN}\ns_branch L_v_poll\nL_v_poll_z:\ns_nop 7')
        for i in range(12): a(f'v_mov_b32 v{AC + i}, 0')
        a('L_v_poll:')
        mload(POL)
        b = POL
        a(f's_sub_u32 {sSPIN}, {sSPIN}, 1\ns_cbranch_scc1 L_fail\ns_waitcnt vmcnt(0)\nv_max3_u32 v{vT}, v{b+3}, v{b+7}, v{b+9}\nv_cmp_eq_u32 vcc, -1, v{vT}\ns_cbranch_vccnz L_v_poll')
        G.tick(1)
        sched = {}
        def at(n, f): sched.setdefault(n, []).append((lambda: a(f)) if isinstance(f, str) else f)
        cv = lambda d, s_: f'v_cvt_pk_bf16_f32 v{d}, v{s_}, v{s_+1}'
        sel = f'v[{SEL}:{SEL+3}]'
        wr = [f'ds_write_b128 v{vL4}, v[{b}:{b+3}]', f'ds_write_b128 v{vL4}, v[{b+4}:{b+7}] offset:1024', f'ds_write_b64 v{vL2}, v[{b+8}:{b+9}]']
        ck = [f'v_max3_u32 v{vT}, v{b}, v{b+1}, v{b+2}', f'v_max3_u32 v{vT}, v{vT}, v{b+4}, v{b+5}', f'v_max3_u32 v{vT}, v{vT}, v{b+6}, v{b+8}', f'v_cmp_eq_u32 vcc, -1, v{vT}']
        def ard(t):
            ad, off = ((vA1, vA2, vA3)[(t >> 1) - 1], (t & 1) * 1024) if t < 8 else (vA, t * 1024)
            q.op(f'ds_read_b128 {vr(AB + (t - 2) * 4, 4)}, v{ad} offset:{off}', ('a', t))
        for n in range(3): at(n, lambda n=n: q.op(wr[n], 'mw'))
        for n in range(4): at(n, ck[n])
        at(4, 's_cbranch_vccnz L_v_poll_z')
        at(4, lambda: (q.need('mw'), a('s_barrier'), ard(2), ard(3), ard(4)))
        for t in range(5, 10): at(2 * t - 4, lambda t=t: ard(t))
        grp = [(68, 72), (56, 60), (40, 44), (48, 52), (64, 36)]
        zer = lambda r: f'v_mov_b32 v{r}, 0'
        for i in range(8): at(9 + i, zer(68 + i))
        at(24, cv(X, AC)); at(24, cv(X + 1, AC + 2)); at(24, cv(X + 2, AC + 4)); at(24, cv(X + 3, AC + 6))
        at(25, f's_nop 0\n{MF32} v[{X+4}:{X+7}], v[{X}:{X+3}], {sel}, 0')
        for i in range(3): at(25 + i, zer(56 + i))
        at(28, cv(X, X + 4)); at(28, cv(X + 1, X + 6)); at(28, lambda: q.op(f'ds_write_b64 v{vTW}, v[{X}:{X+1}]', 't1'))
        def mid():
            for i in range(3, 8): a(zer(56 + i))
            a(zer(40) + '\n' + zer(41) + '\n' + zer(42))
            a(cv(4, AC + 8) + '\n' + cv(5, AC + 10) + '\n' + cv(6, AC + 8) + '\n' + cv(7, AC + 10))
            q.need('t1'); a('s_barrier')
            G.tick(2)
            a(f'{MF32} v[{X+4}:{X+7}], v[4:7], {sel}, 0')
            q.op(f'ds_read_b128 v[{AB}:{AB+3}], v{vA} offset:{TT - MST}', ('m', 0))
            q.op(f'ds_read_b128 v[{AB+4}:{AB+7}], v{vA} offset:{TT - MST + 2048}', ('m', 2))
            for i in range(3, 8): a(zer(40 + i))
            a('s_nop 0\n' + cv(X + 2, X + 4) + '\n' + cv(X + 3, X + 6) + '\ns_mov_b64 exec, s[76:77]')
            q.op(f'ds_write_b64 v{vTW3}, v[{X+2}:{X+3}]', 't2')
            a('s_mov_b64 exec, -1')
        at(29, mid)
        vm = {0: AB, 2: AB + 4, 1: AB + 8}
        o2 = [(p, t3) for p in range(3) for t3 in (0, 2)] + [(p, 1) for p in range(3)] + [(p, t3) for p in (3, 4) for t3 in range(3)]
        at(35, lambda: (q.need('t2'), a('s_barrier'), q.op(f'ds_read_b128 v[{AB+8}:{AB+11}], v{vA} offset:{TT - MST + 1024}', ('m', 1))))
        for i, r in enumerate(list(range(48, 56)) + list(range(64, 68)) + list(range(36, 40))): at(30 + i, zer(r))
        last = {p: 30 + 2 * k + 1 for k, (p, t3) in enumerate(o2)}
        n0 = 0
        for p in range(5):
            A0, A1 = grp[p]; T_ = (X, SB)[p & 1]; F = SB + 4 + (p & 1) * 4; d = SB + 12 + (p & 1) * 2
            n0 = max(last[p] + 3, n0 + 3)
            at(n0, cv(T_, A0)); at(n0, cv(T_ + 1, A0 + 2)); at(n0 + 1, cv(T_ + 2, A1)); at(n0 + 1, cv(T_ + 3, A1 + 2))
            at(n0 + 2, f's_nop 0\n{MF32} v[{F}:{F+3}], {sel}, v[{T_}:{T_+3}], 0')
            at(n0 + 5, cv(d, F)); at(n0 + 5, cv(d + 1, F + 2))
            at(n0 + 5, f's_add_u32 s56, s64, {p * 16384}\nbuffer_store_dwordx2 v[{d}:{d+1}], v{vZS}, {WS}, s56 offen LOCAL')
        for n in range(60):
            if n < 30:
                tau, tl = order[n]
                kind, d = loc[tau, tl]
                if kind == 'l':
                    i = d // 2048; d = SB + (i % 2) * 8; q.need(('w', i))
                if tau < 2: A = POL + 4 * tau
                else:
                    q.need(('a', tau)); A = AB + (tau - 2) * 4
                a(f'{SMF} {vr(AC + 4 * tl, 4)}, {vr(A, 4)}, {vr(d, 8)}, v{vIDX}')
                if kind == 'l' and i + 2 < nl: wread(i + 2)
            else:
                p, t3 = o2[(n - 30) >> 1]; qq = n & 1
                q.need(('m', t3))
                a(f'{SMF} {vr(grp[p][qq], 4)}, {vr(vm[t3], 4)}, {vr(wo[t3, 2 * p + qq], 8)}, v{vIDX}')
            for f in sched.pop(n, []): f()
        for n in range(60, 72):
            a('s_nop 2')
            for f in sched.pop(n, []): f()
            if not sched: break
        G.tick(3)
        a('v_mov_b32 v4, -1\nv_mov_b32 v5, -1')
        a(f'ADV s57 s64 {L_LOC} 2')
        for p in range(5):
            a(f's_add_u32 s56, s57, {p * 16384}\nbuffer_store_dwordx2 v[4:5], v{vZS}, {WS}, s56 offen LOCAL')
        G.flush(4, vt=(4, 5))
        G.stamp(sSEG, vt=(4, 5))
        a(f'''ADV s64 s64 {L_LOC}
ADV s71 s71 {L_LOC}
s_add_u32 {sSEG}, {sSEG}, 1
s_cmp_lt_u32 {sSEG}, {NSEG}
s_cbranch_scc1 L_v_loop''')
        G.stamp(3)
        a('s_branch L_end')
    G.two_flavours('v', main)


def roleT(G):
    a = G.a
    a('L_roleT:')
    if G.disabled('T'): return
    vZ, vL16, vFQ, vFS, vPM, vNI, vPT = 8, 9, 10, 11, 12, 13, 14
    DA, DB, DM = 16, 20, 24
    X = 28
    MB_ = 64
    FRG = 256
    a(f"""
s_sub_u32 {sIDX}, {sROLE}, {R_T}
s_lshl_b32 s66, {sIDX}, 2
s_add_u32 s66, s66, {sW}
s_lshr_b32 s64, s66, 1
s_and_b32 s65, {sW}, 1
s_lshl_b32 s66, s66, 7
s_add_u32 s66, s66, {FL + 128 * F_T}
v_mov_b32 v{vZ}, 0
""")
    G.set_flag('s66', 0, 'v4', f'v{vZ}')
    if G.probe:
        a(f'''
s_and_b32 s57, {sW}, 1
s_lshl_b32 s56, s57, 13
s_lshl_b32 s58, s64, 8
s_add_u32 s56, s56, s58
s_add_u32 s56, s56, {PG_PROBE}
s_getreg_b32 s58, hwreg(HW_REG_XCC_ID)
s_bfe_u32 s58, s58, 0x10002
s_xor_b32 s57, s57, s58
s_lshl_b32 s57, s57, 2
s_mov_b32 s58, 65535
s_mov_b32 s59, 0
s_waitcnt vmcnt(0)
L_t_probe:
s_memtime s[68:69]
s_waitcnt lgkmcnt(0)
buffer_store_dword v{vZ}, v{vZ}, {WS}, s56 offen sc1
s_waitcnt vmcnt(0)
s_memtime s[70:71]
s_waitcnt lgkmcnt(0)
s_sub_u32 s67, s70, s68
s_min_u32 s58, s58, s67
s_add_u32 s59, s59, 1
s_cmp_lt_u32 s59, 5
s_cbranch_scc1 L_t_probe
s_sub_u32 s58, 65535, s58
v_mov_b32 v4, s58
s_mov_b64 exec, 1
buffer_atomic_umax v4, v{vZ}, {DBG}, s57 offen offset:16
s_mov_b64 exec, -1
''')
    G.arrive()
    if G.diag & 2:
        a('s_branch L_end'); return
    G.await_all()
    a(f"""
v_lshlrev_b32 v{vL16}, 4, v1
v_min_u32 v4, 5, v1
v_add_u32 v5, 93, v4
v_cmp_gt_u32 vcc, 3, v4
s_mul_i32 s56, s64, 3
s_add_u32 s56, s56, {F_XW + FL // 128}
v_cndmask_b32 v4, v5, v4, vcc
v_add_lshl_u32 v{vFQ}, v4, s56, 7
v_and_b32 v4, 3, v1
s_lshl_b32 s56, s64, 2
s_add_u32 s56, s56, {F_S + FL // 128}
v_add_lshl_u32 v{vFS}, v4, s56, 7
v_lshrrev_b32 v4, 1, v2
v_lshl_add_u32 v4, v4, 4, v3
v_lshlrev_b32 v4, 4, v4
v_and_b32 v5, 1, v2
v_lshl_add_u32 v{vPM}, v5, 2, v4
v_mov_b32 v{vNI}, 0xff800000
s_mul_i32 s67, s64, 12288
s_add_u32 s67, s67, {QT}
s_lshl_b32 s74, s65, 10
s_mul_i32 s68, s64, 6144
s_add_u32 s68, s68, {KM}
s_and_b32 s59, s64, 7
s_lshl_b32 s69, s59, 10
s_lshr_b32 s56, s59, 1
s_lshl_b32 s56, s56, 10
s_and_b32 s57, s59, 1
s_lshl_b32 s58, s57, 3
s_add_u32 s56, s56, s58
s_add_u32 s56, s56, 8192
s_cmp_eq_u32 s65, 0
s_cselect_b32 s69, s56, s69
s_lshl_b32 s70, s65, 11
s_lshr_b32 s56, s59, 2
s_lshl_b32 s56, s56, 10
s_add_u32 s70, s70, s56
s_lshl_b32 s57, s57, 9
s_add_u32 s70, s70, s57
s_bfe_u32 s56, s59, 0x10001
s_lshl_b32 s56, s56, 3
s_add_u32 s70, s70, s56
s_add_u32 s70, s70, 12288
s_lshr_b32 s56, s64, 3
s_lshl_b32 s56, s56, 14
s_add_u32 s56, s56, {PT}
s_add_u32 s69, s69, s56
s_add_u32 s70, s70, s56
s_mov_b32 s78, {f2u(C_SCALE):#x}
v_lshlrev_b32 v4, 2, v2
s_lshl_b32 s56, s65, 4
v_add_u32 v6, s56, v3
""")
    for r in range(4):
        a(f'v_add_u32 v5, {r}, v4\nv_cmp_le_u32 s[{24 + 2*r}:{25 + 2*r}], v5, v6\nv_add_u32 v5, {16 + r}, v4\nv_cmp_le_u32 s[{32 + 2*r}:{33 + 2*r}], v5, v6')
    a(f's_mov_b32 {sSEG}, 0\ns_mov_b32 s73, 1')
    fr = lambda buf, kind, eb: FRG + 72 * buf + (kind * 6 + eb) * 4
    def qkload(buf):
        l = a.label('L_t_skip')
        for kind in range(3):
            if kind == 2: a(f's_cmp_eq_u32 s65, 0\ns_cbranch_scc1 {l}')
            for j in range(3):
                if kind == 0: a(f's_add_u32 s56, s67, s74\ns_add_u32 s56, s56, {j * 4096}')
                else: a(f's_add_u32 s56, s67, {QKV_SZ + j * 4096 + (kind - 1) * 1024}')
                for i in range(2):
                    a(f'buffer_load_dwordx4 {vr(fr(buf, kind, 2 * j + i), 4)}, v{vL16}, {WS}, s56 offen offset:{i * 2048} sc1')
        a(f'{l}:\nADV s67 s67 {L_Q}')
    G.wait_flags(f'v{vFQ}', 'v4', 's73')
    qkload(0)
    def main():
        a('L_t_loop:')
        for buf in range(2):
            G.tick(0)
            a(f's_add_u32 s73, {sSEG}, 2\ns_min_u32 s73, s73, {NSEG}\ns_waitcnt vmcnt(0)')
            G.set_flag('s66', sSEG, 'v4', f'v{vZ}', 'LOCAL')
            G.wait_flags(f'v{vFQ}', 'v4', 's73')
            qkload(1 - buf)
            a(f's_add_u32 s73, {sSEG}, 1')
            G.tick(1)
            for eb in range(6):
                for D, kind in ((DA, 1), (DB, 2)):
                    a(f'{MF32} {vr(D, 4)}, {vr(fr(buf, kind, eb), 4)}, {vr(fr(buf, 0, eb), 4)}, {"0" if eb == 0 else vr(D, 4)}')
            G.wait_flags(f'v{vFS}', 'v4', 's73', sleep=1)
            G.tick(2)
            a('s_add_u32 s56, s68, 4096')
            for i in range(6):
                a(f'buffer_load_dwordx4 {vr(MB_ + 4 * i, 4)}, v{vL16}, {WS}, {"s68" if i < 4 else "s56"} offen offset:{(i & 3) * 1024} sc1')
            for r in range(4):
                a(f'v_cndmask_b32 v{DA + r}, v{vNI}, v{DA + r}, s[{24 + 2*r}:{25 + 2*r}]\nv_cndmask_b32 v{DB + r}, v{vNI}, v{DB + r}, s[{32 + 2*r}:{33 + 2*r}]')
            M = X
            a(f"""v_max3_f32 v{M}, v{DA}, v{DA+1}, v{DA+2}
v_max3_f32 v{M}, v{M}, v{DA+3}, v{DB}
v_max3_f32 v{M}, v{M}, v{DB+1}, v{DB+2}
v_max_f32 v{M}, v{M}, v{DB+3}
""")
            for eb in range(6):
                a(f's_waitcnt vmcnt({5 - eb})\n{MF32} {vr(DM, 4)}, {vr(MB_ + 4 * eb, 4)}, {vr(fr(buf, 0, eb), 4)}, {"0" if eb == 0 else vr(DM, 4)}')
            a(f's_nop 7\nv_max3_f32 v{M}, v{M}, v{DM}, v{DM+1}')
            def allred(op, A):
                for sw in ('v_permlane16_swap_b32', 'v_permlane32_swap_b32'):
                    a(f'v_mov_b32 v{X+2}, v{A}\ns_nop 1\n{sw} v{A}, v{X+2}\n{op} v{A}, v{A}, v{X+2}')
            allred('v_max_f32', M)
            a(f'v_mul_f32 v{M}, s78, v{M}')
            vals = [DA + r for r in range(4)] + [DB + r for r in range(4)] + [DM, DM + 1]
            for v in vals: a(f'v_fma_f32 v{v}, v{v}, s78, -v{M}')
            for v in vals: a(f'v_exp_f32 v{v}, v{v}')
            L = X + 1
            a(f'v_add_f32 v{L}, v{vals[0]}, v{vals[1]}')
            for v in vals[2:]: a(f'v_add_f32 v{L}, v{L}, v{v}')
            allred('v_add_f32', L)
            a(f'v_rcp_f32 v{L}, v{L}\ns_cmp_eq_u32 s65, 0')
            for v in vals: a(f'v_mul_f32 v{v}, v{v}, v{L}')
            O1 = 32
            l = a.label('L_t_st')
            for i in range(5): a(f'v_cvt_pk_bf16_f32 v{O1 + i}, v{vals[2*i]}, v{vals[2*i+1]}')
            a(f"""buffer_store_dword v{O1+4}, v{vPM}, {WS}, s70 offen LOCAL
s_cbranch_scc1 {l}
buffer_store_dwordx4 v[{O1}:{O1+3}], v{vL16}, {WS}, s69 offen LOCAL
s_branch {l}_e
{l}:
buffer_store_dwordx2 v[{O1}:{O1+1}], v{vL16}, {WS}, s69 offen LOCAL
{l}_e:
ADV s68 s68 {L_KM}
ADV s69 s69 {L_PT}
ADV s70 s70 {L_PT}
""")
            G.tick(3)
            G.flush(4); G.stamp(sSEG)
            a(f's_add_u32 {sSEG}, {sSEG}, 1')
        a(f's_cmp_lt_u32 {sSEG}, {NSEG}\ns_cbranch_scc1 L_t_loop\ns_waitcnt vmcnt(0)')
        G.set_flag('s66', sSEG, 'v4', f'v{vZ}', 'LOCAL')
        G.stamp(3)
        a('s_branch L_end')
    G.two_flavours('t', main)

def roleO(G):
    a = G.a
    a(f'L_roleO:\ns_lshl_b32 s56, {sROLE}, 2\ns_add_u32 s56, s56, {sW}\ns_cmp_eq_u32 s56, {4 * R_O}\ns_cselect_b32 s56, 0, 0x40000000\nv_mov_b32 v12, s56\ns_mov_b32 s72, {FL + 128 * F_O}')
    G.set_flag('s72', 0, 'v4', 'v12')
    G.arrive()
    a(f's_sub_u32 {sIDX}, {sROLE}, {R_O}\ns_cmp_lt_u32 {sIDX}, {0 if G.diag & 2 else 10}\ns_cbranch_scc0 L_end')
    G.srd(12, P_X, 2048 * 1280); G.srd(20, P_OUT, 2048 * 1280)
    G.await_all()
    vXR, vOUT, vFB, vFL = 8, 9, 10, 11
    B = 16
    a(f"""
v_and_b32 v4, 31, v1
v_lshlrev_b32 v4, 4, v4
v_lshrrev_b32 v5, 5, v1
v_lshl_add_u32 v{vXR}, v5, 13, v4
v_and_b32 v6, 7, v1
v_bfe_u32 v7, v1, 3, 2
v_mul_u32_u24 v{vOUT}, 1280, v6
v_lshl_add_u32 v{vOUT}, v7, 3, v{vOUT}
v_lshl_add_u32 v{vOUT}, v5, 5, v{vOUT}
v_lshlrev_b32 v{vFB}, 10, v5
v_lshl_add_u32 v{vFB}, v7, 7, v{vFB}
v_lshl_add_u32 v{vFB}, v6, 3, v{vFB}
s_lshl_b32 s64, {sIDX}, 15
s_lshl_b32 s56, {sW}, 9
s_add_u32 s64, s64, s56
s_add_u32 s64, s64, {XO}
s_lshl_b32 s65, {sIDX}, 12
s_lshr_b32 s57, {sW}, 1
s_lshl_b32 s56, s57, 9
s_add_u32 s65, s65, s56
s_and_b32 s56, {sW}, 1
s_lshl_b32 s56, s56, 6
s_add_u32 s65, s65, s56
s_add_u32 s65, s65, {FB}
s_mul_i32 s66, {sW}, 10240
s_lshl_b32 s56, {sIDX}, 7
s_add_u32 s66, s66, s56
v_and_b32 v4, 3, v1
v_mul_u32_u24 v5, 10, v4
s_add_u32 s56, {sIDX}, {PG_CP // 128}
v_add_lshl_u32 v5, v5, s56, 7
v_add_u32 v5, {sSELM}, v5
s_lshl_b32 s56, {sIDX}, 3
s_add_u32 s56, s56, s57
v_lshl_add_u32 v4, v4, 1, s56
v_mul_u32_u24 v6, 205, v4
v_lshrrev_b32 v6, 11, v6
v_mul_u32_u24 v7, 10, v6
v_sub_u32 v7, v4, v7
v_and_b32 v7, 3, v7
v_lshl_add_u32 v6, v6, 2, v7
v_add_u32 v6, {F_FD + FL // 128}, v6
v_lshlrev_b32 v6, 7, v6
v_cmp_gt_u32 vcc, 4, v1
s_mov_b32 {sSEG}, 1
s_nop 0
v_cndmask_b32 v{vFL}, v6, v5, vcc
L_o_loop:
buffer_load_dwordx2 v[{B+32}:{B+33}], v{vOUT}, {SA}, s66 offen
buffer_load_dwordx2 v[{B+34}:{B+35}], v{vOUT}, {SA}, s66 offen offset:64
""")
    G.wait_flags(f'v{vFL}', 'v4', sSEG, sleep=G.fsl)
    G.set_flag('s72', sSEG, 'v4', 'v12')
    for h in range(2):
        for xx in range(2):
            a(f's_add_u32 s56, s64, {h * 16384 + xx * 4096}')
            for k in range(2):
                r = B + h * 16 + (xx * 2 + k) * 4
                a(f'buffer_load_dwordx4 v[{r}:{r+3}], v{vXR}, {WS}, s56 offen offset:{k * 2048} sc1')
        a(f'buffer_load_dwordx2 v[{B+36+2*h}:{B+37+2*h}], v{vFB}, {WS}, s65 offen offset:{h * 2048} sc1')
    for h in range(2):
        r = B + h * 16; T_ = B + 40
        a(f's_waitcnt vmcnt({5 if h == 0 else 1})')
        for i, src in enumerate((B + 32 + 2*h, B + 33 + 2*h, B + 36 + 2*h, B + 37 + 2*h)):
            a(f'v_lshlrev_b32 v{T_ + 2*i}, 16, v{src}\nv_and_b32 v{T_ + 2*i + 1}, 0xffff0000, v{src}')
        for i in range(4):
            a(f'v_add_f32 v{r+i}, v{r+i}, v{r+4+i}\nv_add_f32 v{r+8+i}, v{r+8+i}, v{r+12+i}\nv_add_f32 v{T_+i}, v{T_+i}, v{T_+4+i}\nv_add_f32 v{r+i}, v{r+i}, v{r+8+i}\nv_add_f32 v{r+i}, v{r+i}, v{T_+i}')
        a(f'v_cvt_pk_bf16_f32 v{r+4}, v{r}, v{r+1}\nv_cvt_pk_bf16_f32 v{r+5}, v{r+2}, v{r+3}\nbuffer_store_dwordx2 v[{r+4}:{r+5}], v{vOUT}, {SC}, s66 offen offset:{64 * h}')
    a(f'ADV s64 s64 {L_XO}\nADV s65 s65 {L_FB}\ns_add_u32 s66, s66, 40960\ns_add_u32 {sSEG}, {sSEG}, 1\ns_cmp_le_u32 {sSEG}, {NSEG}\ns_cbranch_scc1 L_o_loop')
    G.stamp(3)
    a('s_branch L_end')

def emit(G):
    from roleC import roleC
    roleS(G); roleC(G); roleV(G); roleT(G); roleO(G)
```

```python
import sys, math
from asmlib import Asm, vr

NAME = 'parallel_sum__memory_aug_recurrent_mem_tr__glu_gated_geglu__prompt'
KN = NAME + '_kernel'
MB = 1 << 20
import os
XM, L_XM = 0, 18
PG_PROBE = 196608
PG_CP = 212992
LOC, L_LOC = 20 * MB, 19
O1 = int(os.environ.get('O1', 0)); O2 = int(os.environ.get('O2', 0))
LM, LE, LL, LZ = LOC + O1, LOC + 65536 + O1, LOC + 81920 + O1, LOC + 131072
HC = LOC + 98304 + O1
FL    = 18 * MB + O2
XN    = 22 * MB
FB, L_FB = 25 * MB, 40960
PT, L_PT = LOC + 458752, L_LOC
HT, L_HT = 33 * MB, 98304
KM, L_KM = 40 * MB, 18
XO, L_XO = 54 * MB, 327680
QT, L_Q = 84 * MB, 393216
QKV_SZ = 24 * MB
VO, L_VO = 157 * MB, 1310720
VNEAR = int(os.environ.get('VNEAR', 0))
if VNEAR:
    VO, L_VO, QT, XO = 128 * MB, 22, 54 * MB, 196 * MB
PROF  = 240 * MB
GATE = int(os.environ.get('GATE', 13))
WS_SIZE = 256 * MB
F_XW, F_OT, F_FD, F_T, F_S, F_O = 0, 384, 512, 576, 640, 768
R_S, R_C, R_V, R_T, R_O, R_FD, R_OT, R_XW = 0, 32, 72, 104, 120, 132, 140, 172
def role_table():
    t = [[] for _ in range(8)]
    for x in range(4):
        t[x] += [R_S + 8 * x + j for j in range(8)] + [R_V + 8 * x + j for j in range(8)] + [R_T + 4 * x + j for j in range(4)]
        t[x] += [R_C + 10 * x + j for j in range(10)] + [R_O + 2 * x + j for j in range(2)]
    for x in range(4):
        t[4 + x] += [R_OT + 8 * x + j for j in range(8)]
    t[4] += [R_FD + j for j in range(8)]
    xw = list(range(R_XW, 256)) + [R_O + 8 + j for j in range(4)]
    x = 0
    while xw:
        while len(t[4 + x]) >= 32: x = (x + 1) % 4
        t[4 + x] += xw[:4]; xw = xw[4:]; x = (x + 1) % 4
    flat = sum(t, [])
    assert sorted(flat) == list(range(256)) and all(len(r) == 32 for r in t)
    return flat
NSEG = 64
SPIN = 400000
WS, DBG, SA, SB, SC = 's[4:7]', 's[8:11]', 's[12:15]', 's[16:19]', 's[20:23]'
P_X, P_MEM, P_WQ, P_WK, P_WV, P_WO, P_G, P_U, P_D, P_OUT = 24, 26, 28, 30, 32, 34, 40, 42, 44, 46
sROLE, sW, sIDX, sSEG = 's52', 's53', 's54', 's55'
sSELM = sSELV = sSELE = sSELL = 's60'
sSPIN = 's96'
sSLOW = 's3'
C_SCALE = 192 ** -0.5 * math.log2(math.e)
import struct
def f2u(f): return struct.unpack('<I', struct.pack('<f', f))[0]

class VQ:
    def __init__(self, G): self.G = G; self.n = 0; self.tag = {}
    def op(self, ins, tag=None, n=1):
        self.G.a(ins); self.n += n
        if tag is not None: self.tag[tag] = self.n
    def need(self, tag):
        if tag in self.tag: self.G.a(f's_waitcnt vmcnt({min(63, self.n - self.tag[tag])})')

class Gen:
    def __init__(self, enable=('S','C','V','T','O','FD','OT','XW'), sel=0, place=1, prof=0, probe=1, diag=0, slp=1, rt=0, zpos=0, hs=14, hc=1, pf=0, hp=1, sb1=5, slow=0, xd=0, lser=1, psplit=20, vof=1, tch=0, nt=0, late=0, mpipe=1, b2=47, early=0, kfirst=1, cpf=1, pbar=0, fsl=4):
        self.a = Asm(); self.cold = []; self.enable = set(enable); self.sel = sel; self.place = place; self.prof = prof; self.probe = probe; self.diag = diag; self.slp = slp; self.rt = rt; self.zpos = zpos; self.hs = hs; self.hc = hc; self.pf = pf; self.hp = hp; self.sb1 = sb1; self.slow = slow; self.xd = xd; self.lser = lser; self.psplit = psplit; self.vof = vof; self.tch = tch; self.nt = nt; self.late = late; self.mpipe = mpipe; self.b2 = b2; self.early = early; self.kfirst = kfirst; self.cpf = cpf; self.pbar = pbar; self.fsl = fsl

    def two_flavours(self, name, body):
        import re
        a = self.a
        a(f's_cmp_eq_u32 {sSLOW}, 0\ns_cbranch_scc0 L_{name}_slow')
        keep = a.lines; a.lines = []
        body()
        txt = a.lines; a.lines = keep
        labels = [l[:-1] for l in txt if l.endswith(':')]
        a.lines += [l.replace(' LOCAL', '') for l in txt]
        pat = re.compile(r'\b(' + '|'.join(map(re.escape, labels)) + r')\b')
        self.cold += [f'L_{name}_slow:'] + [pat.sub(lambda m: m.group(1) + '_w', l).replace(' LOCAL', ' sc1') for l in txt]

    def loop2(self, body):
        keep = self.a.lines; self.a.lines = []
        body(); self.a.lines = keep
        body()

    def win(self, dst, src, add=0):
        return (f's_add_u32 {dst}, {src}, {add}\ns_lshr_b32 s97, {dst}, 8\ns_xor_b32 s97, s97, {sSELM}\ns_and_b32 s97, s97, 8192\ns_add_u32 {dst}, {dst}, s97')

    def srd(self, dst, ptr, size):
        a = self.a
        a(f's_mov_b32 s{dst}, s{ptr}\ns_mov_b32 s{dst+1}, s{ptr+1}\ns_mov_b32 s{dst+2}, {size}\ns_mov_b32 s{dst+3}, 0x20000')

    def prologue(self):
        a = self.a
        a(f'''
s_cmp_ge_u32 s2, 256
s_cbranch_scc1 L_end
s_load_dwordx16 s[24:39], s[0:1], 0
s_load_dwordx8 s[40:47], s[0:1], 64
s_load_dwordx4 s[48:51], s[0:1], 96
v_and_b32 v1, 63, v0
v_lshrrev_b32 v4, 6, v0
v_lshrrev_b32 v2, 4, v1
v_readfirstlane_b32 {sW}, v4
v_and_b32 v3, 15, v1
s_getreg_b32 s56, hwreg(HW_REG_XCC_ID)
''')
        if self.cpf:
            a(f'''s_getpc_b64 s[58:59]
L_pc0:
s_lshr_b32 s57, s2, 3
s_lshl_b32 s57, s57, 5
v_and_b32 v5, 31, v0
v_add_lshl_u32 v5, v5, s57, 7
v_min_u32 v5, L_hot_end - L_pc0, v5
global_load_dword v253, v5, s[58:59]''')
        a('s_waitcnt lgkmcnt(0)')
        self.srd(4, 50, WS_SIZE); self.srd(8, 48, 256)
        a(f's_mov_b32 {sSELM}, {self.sel}')
        if self.place:
            a(f'''
s_and_b32 s56, s56, 7
s_cmp_eq_u32 {sW}, 0
s_cselect_b32 s57, 0, 0x1000
s_mul_i32 s58, s56, 24
s_add_u32 s57, s57, s58
v_mov_b32 v5, 1
v_mov_b32 v6, s57
s_mov_b64 exec, 1
buffer_atomic_add v5, v6, {DBG}, 0 offen offset:64 sc0
''')
            nt = 0
            a('s_mov_b64 exec, -1\ns_mov_b32 s63, 0')
            a(f'''
s_waitcnt vmcnt({nt})
s_cmp_eq_u32 {sW}, 0
s_cbranch_scc0 L_noticket
s_mov_b64 exec, 1
s_branch L_ticket2
L_ticket:
v_mov_b32 v5, 1
s_mul_i32 s57, s56, 24
v_mov_b32 v6, s57
buffer_atomic_add v5, v6, {DBG}, 0 offen offset:64 sc0
s_waitcnt vmcnt(0)
L_ticket2:
v_readfirstlane_b32 s57, v5
s_nop 3
s_cmp_lt_u32 s57, 32
s_cbranch_scc1 L_gotticket
v_mov_b32 v5, 1
v_mov_b32 v6, 0
buffer_store_dword v5, v6, {DBG}, 0 offen offset:24 sc1
s_add_u32 s56, s56, 1
s_and_b32 s56, s56, 7
s_branch L_ticket
L_gotticket:
s_lshl_b32 s58, s56, 5
s_add_u32 s57, s57, s58
s_getpc_b64 s[58:59]
L_pc:
s_and_b32 s56, s57, 0xfc
s_add_u32 s56, s56, role_tab - L_pc
s_load_dword s56, s[58:59], s56
s_and_b32 s57, s57, 3
s_lshl_b32 s57, s57, 3
s_waitcnt lgkmcnt(0)
s_lshr_b32 s57, s56, s57
v_mov_b32 v5, s57
v_mov_b32 v6, 0
ds_write_b32 v6, v5
s_waitcnt lgkmcnt(0)
s_mov_b64 exec, -1
L_noticket:
s_barrier
v_mov_b32 v6, 0
ds_read_b32 v5, v6
s_waitcnt lgkmcnt(0)
v_readfirstlane_b32 {sROLE}, v5
s_nop 3
s_and_b32 {sROLE}, {sROLE}, 255
s_barrier
''')
        else:
            a(f's_mov_b32 {sROLE}, s2')
        a(f'''
''')
        self.stamp(0)
        a(f'''
s_sub_u32 s56, {sROLE}, {R_O}
s_cmp_lt_u32 s56, 20
s_cbranch_scc1 L_ln
s_sub_u32 s56, {sROLE}, {R_XW - 20}
s_sub_u32 s57, {sROLE}, {R_XW}
s_cmp_lt_u32 s57, 24
s_cbranch_scc1 L_ln
s_sub_u32 s56, {sROLE}, {R_XW + 72 - 44}
s_cmp_ge_u32 {sROLE}, {R_XW + 72}
s_cbranch_scc1 L_ln
s_sub_u32 s57, {sROLE}, {R_C}
s_mul_i32 s56, s57, 205
s_lshr_b32 s56, s56, 10
s_mul_i32 s58, s56, 5
s_add_u32 s56, s56, 56
s_cmp_lt_u32 s57, 40
s_cselect_b32 s57, s57, 1
s_cmp_eq_u32 s57, s58
s_cbranch_scc1 L_ln
L_dispatch:
s_cmp_lt_u32 {sROLE}, {R_C}
s_cbranch_scc1 L_roleS
s_cmp_lt_u32 {sROLE}, {R_V}
s_cbranch_scc1 L_roleC
s_cmp_lt_u32 {sROLE}, {R_T}
s_cbranch_scc1 L_roleV
s_cmp_lt_u32 {sROLE}, {R_O}
s_cbranch_scc1 L_roleT
s_cmp_lt_u32 {sROLE}, {R_FD}
s_cbranch_scc1 L_roleO
s_cmp_lt_u32 {sROLE}, {R_OT}
s_cbranch_scc1 L_roleFD
s_cmp_lt_u32 {sROLE}, {R_XW}
s_cbranch_scc1 L_roleOT
s_branch L_roleXW
''')
        for c in range(40): assert (c * 205) >> 10 == c // 5

    def touch(self):
        a = self.a; n = 0
        if not self.tch: return 0
        st = self.tch
        a(f's_mov_b32 s63, 1\ns_lshl_b32 s61, s2, 2\ns_add_u32 s61, s61, {sW}\nv_mul_u32_u24 v254, {st}, v1')
        for ptr, size in ((P_WV, 7864320), (P_WK, 7864320), (P_WO, 7864320), (P_WQ, 7864320), (P_G, 1966080), (P_U, 1966080), (P_D, 1966080)):
            per = size // 1024
            self.srd(12, ptr, size)
            a(f's_mul_i32 s62, s61, {per}')
            o = 0
            while o < per:
                k = min(64, (per - o) // st)
                a(f's_mov_b32 exec_lo, {(1 << min(k, 32)) - 1:#x}\ns_mov_b32 exec_hi, {(1 << max(k - 32, 0)) - 1:#x}')
                if o: a(f's_add_u32 s62, s62, {64 * st}')
                a(f'buffer_load_dword v255, v254, {SA}, s62 offen')
                o += 64 * st; n += 1
        a('s_mov_b64 exec, -1')
        return n

    def arrive(self):
        a = self.a; l = a.label('L_arr')
        a(f'''
s_waitcnt vmcnt(0)
s_barrier
s_cmp_eq_u32 {sW}, 3
s_cbranch_scc0 {l}
s_mov_b64 exec, 1
v_mov_b32 v4, 1
v_mov_b32 v5, 8
buffer_atomic_add v4, v5, {DBG}, 0 offen sc0
s_waitcnt vmcnt(0)
v_cmp_eq_u32 vcc, 255, v4
s_cbranch_vccz {l}_x
buffer_load_dwordx3 v[4:6], v5, {DBG}, 0 offen offset:8 sc1
s_waitcnt vmcnt(0)
v_cmp_lt_u32 vcc, v4, v5
v_mov_b32 v4, 0x2001
v_lshlrev_b32 v6, 1, v6
v_cndmask_b32 v4, 1, v4, vcc
v_or_b32 v4, v4, v6
v_mov_b32 v5, 252
buffer_store_dword v4, v5, {DBG}, 0 offen sc1
{l}_x:
s_mov_b64 exec, -1
{l}:
s_cmp_eq_u32 s63, 0
s_cbranch_scc0 {l}_t
''')
        self.touch()
        a(f'{l}_t:')
    def await_all(self, stamps=True):
        a = self.a; l = a.label('L_aw')
        if stamps: self.stamp(1)
        a(f'''
s_mov_b32 {sSPIN}, {SPIN}
v_mov_b32 v5, 252
{l}:
buffer_load_dword v4, v5, {DBG}, 0 offen sc1
s_sub_u32 {sSPIN}, {sSPIN}, 1
s_cbranch_scc1 L_fail
s_waitcnt vmcnt(0)
v_cmp_eq_u32 vcc, 0, v4
s_cbranch_vccz {l}_d
s_sleep 16
s_branch {l}
{l}_d:
v_readfirstlane_b32 s61, v4
s_nop 3
s_and_b32 {sSELM}, s61, 8192
s_and_b32 {sSLOW}, s61, 2''')
        if self.slow or not self.place: a(f's_mov_b32 {sSLOW}, 1')
        if stamps: self.stamp(2)
    def wait_flags(self, voff, vtmp, sneed, sleep=2, soff='0', first=None):
        a = self.a; l = a.label('L_wf')
        if first:
            a(f'buffer_load_dword {vtmp}, {voff}, {WS}, {soff} offen sc1\ns_waitcnt vmcnt(0)')
            first()
            a(f'v_cmp_gt_u32 vcc, {sneed}, {vtmp}\ns_cbranch_vccz {l}_d')
        a(f'''
s_mov_b32 {sSPIN}, {SPIN}
{l}:
buffer_load_dword {vtmp}, {voff}, {WS}, {soff} offen sc1
s_sub_u32 {sSPIN}, {sSPIN}, 1
s_cbranch_scc1 L_fail
s_waitcnt vmcnt(0)
v_cmp_gt_u32 vcc, {sneed}, {vtmp}
''' + (f's_cbranch_vccz {l}_d\ns_sleep {min(127, sleep * self.slp)}\ns_branch {l}\n{l}_d:' if sleep else f's_cbranch_vccnz {l}\n{l}_d:'))
    def set_flag(self, sflag, val, vtmp, vzero, fl='sc1'):
        self.a(f'v_mov_b32 {vtmp}, {val}\nbuffer_store_dword {vtmp}, {vzero}, {WS}, {sflag} offen {fl}')

    def stamp(self, slot, vt=(6, 7), sub=0, nsub=1):
        if not self.prof or (self.prof == 2 and isinstance(slot, str)) or (self.prof == 3 and slot not in (0, 3)): return
        a = self.a
        a(f's_memrealtime s[98:99]\ns_lshl_b32 s100, {sROLE}, 2\ns_add_u32 s100, s100, {sW}\ns_lshl_b32 s100, s100, 12')
        if isinstance(slot, str): a(f's_mul_i32 s101, {slot}, {4 * nsub}\ns_add_u32 s100, s100, s101\ns_add_u32 s100, s100, {PROF + 64 + 4 * sub}')
        else: a(f's_add_u32 s100, s100, {PROF + 4 * slot}')
        a(f's_waitcnt lgkmcnt(0)\nv_mov_b32 v{vt[0]}, s98\nv_mov_b32 v{vt[1]}, 0\nbuffer_store_dword v{vt[0]}, v{vt[1]}, {WS}, s100 offen')

    def tick(self, i):
        if self.prof == 2: self.a(f'{"s_memrealtime" if self.rt else "s_memtime"} s[{80 + 2 * i}:{81 + 2 * i}]')
    def flush(self, n, vt=(6, 7)):
        if self.prof != 2: return
        a = self.a
        a(f's_lshl_b32 s100, {sROLE}, 2\ns_add_u32 s100, s100, {sW}\ns_lshl_b32 s100, s100, 12\ns_lshl_b32 s101, {sSEG}, 5\ns_add_u32 s100, s100, s101\ns_add_u32 s100, s100, {PROF + 1024}')
        a(f's_waitcnt lgkmcnt(0)\nv_mov_b32 v{vt[1]}, 0')
        for i in range(n):
            a(f'v_mov_b32 v{vt[0]}, s{80 + 2 * i}\nbuffer_store_dword v{vt[0]}, v{vt[1]}, {WS}, s100 offen offset:{4 * i}')

    def check(self, regs, vt):
        a = self.a; r = list(regs)
        a(f'v_max3_u32 {vt}, {vr(r[0])}, {vr(r[1])}, {vr(r[2])}')
        i = 3
        while i + 1 < len(r):
            a(f'v_max3_u32 {vt}, {vt}, {vr(r[i])}, {vr(r[i+1])}'); i += 2
        if i < len(r):
            a(f'v_max_u32 {vt}, {vt}, {vr(r[i])}')
        a(f'v_cmp_eq_u32 vcc, -1, {vt}')

    def stream_load(self, nblocks, ninstr, ring, issue, consume):
        a = self.a
        n = 0; pos = {}
        def iss(b):
            nonlocal n
            issue(b); n += ninstr; pos[b] = n
        for b in range(min(ring, nblocks)): iss(b)
        for b in range(nblocks):
            assert n - pos[b] <= 63
            a(f's_waitcnt vmcnt({n - pos[b]})')
            n += consume(b) or 0
            a('s_waitcnt lgkmcnt(0)')
            if b + ring < nblocks: iss(b + ring)

    def wo_load(self, rows, ring, vaddr, consume):
        a = self.a
        nb = 192 // rows; bs = rows * 1280; ni = bs // 4096
        a(f's_mul_i32 s72, {sIDX}, 245760\ns_mul_i32 s70, {sW}, {bs // 4}\ns_add_u32 s72, s72, s70')
        def issue(b):
            for i in range(ni):
                if i % 4 == 0: a(f's_add_u32 m0, s70, {(b % ring) * bs + i * 1024}\ns_add_u32 s73, s72, {b * bs + i * 1024}')
                a(f'buffer_load_dwordx4 v13, {SA}, s73 offen offset:{(i % 4) * 1024} lds')
        for b in range(ring - 1): issue(b)
        base = 0
        for b in range(nb):
            a(f's_waitcnt vmcnt({ni * (min(nb - 1, b + ring - 2) - b)})\ns_barrier')
            if b + ring - 1 < nb: issue(b + ring - 1)
            if (b % ring) * bs != base:
                a(f'v_add_u32 {vaddr}, {(b % ring) * bs - base}, {vaddr}'); base = (b % ring) * bs
            consume(b)
            a('s_waitcnt lgkmcnt(0)')
        a('s_barrier')

    def dma(self, voff, srd, soff, sbase, ldsoff, sc1=False):
        self.a(f's_add_u32 m0, {sbase}, {ldsoff}\ns_nop 0\nbuffer_load_dwordx4 {voff}, {srd}, {soff} offen {"sc1 " if sc1 else ("nt " if self.nt else "")}lds')

    def ln(self):
        a = self.a
        a('L_ln:')
        self.srd(12, P_X, 2048 * 1280)
        a(f"""
s_lshl_b32 s56, s56, 2
s_add_u32 s56, s56, {sW}
v_and_b32 v4, 7, v1
v_lshrrev_b32 v5, 3, v1
v_mul_u32_u24 v6, 1280, v4
v_lshl_add_u32 v6, v5, 4, v6
v_lshrrev_b32 v7, 2, v5
v_lshlrev_b32 v7, 11, v7
v_and_b32 v5, 3, v5
v_lshl_add_u32 v7, v5, 8, v7
v_lshl_add_u32 v7, v4, 4, v7
s_mov_b32 s58, 0x3acccccd
s_mul_i32 s57, s56, 10240
""")
        R0, R1, F = 16, 56, 96
        for j in range(10): a(f'buffer_load_dwordx4 v[{R0+4*j}:{R0+4*j+3}], v6, {SA}, s57 offen offset:{128*j}')
        nt = self.touch()
        a(f"""
s_lshr_b32 s59, s56, 2
s_mul_i32 s59, s59, 40960
s_bfe_u32 s64, s56, 0x10001
s_lshl_b32 s64, s64, 10
s_add_u32 s59, s59, s64
s_and_b32 s64, s56, 1
s_lshl_b32 s64, s64, 7
s_add_u32 s59, s59, s64
s_add_u32 s59, s59, {XN}
""")
        for j in range(40):
            if j % 4 == 0: a(f's_waitcnt vmcnt({nt + 9 - j // 4})')
            a(f'v_lshlrev_b32 v{F+2*j}, 16, v{R0+j}\nv_and_b32 v{F+2*j+1}, 0xffff0000, v{R0+j}')
        def red(v, t):
            a(f's_nop 1\nv_add_f32_dpp {v}, {v}, {v} row_ror:8 row_mask:0xf bank_mask:0xf')
            for sw in ('v_permlane16_swap_b32', 'v_permlane32_swap_b32'):
                a(f'v_mov_b32 {t}, {v}\ns_nop 1\n{sw} {v}, {t}\nv_add_f32 {v}, {v}, {t}')
        a(f'v_add_f32 v10, v{F}, v{F+1}')
        for j in range(2, 80): a(f'v_add_f32 v10, v10, v{F+j}')
        red('v10', 'v11')
        a(f'v_mul_f32 v10, s58, v10\nv_sub_f32 v12, v{F}, v10\nv_mul_f32 v13, v12, v12')
        for j in range(1, 80): a(f'v_sub_f32 v12, v{F+j}, v10\nv_fmac_f32 v13, v12, v12')
        red('v13', 'v11')
        a("""
v_mul_f32 v13, s58, v13
v_cvt_pk_bf16_f32 v10, v10, v13
v_and_b32 v13, 0xffff0000, v10
v_lshlrev_b32 v10, 16, v10
v_add_f32 v13, 0x3727c5ac, v13
v_cvt_pk_bf16_f32 v13, v13, v13
v_lshlrev_b32 v13, 16, v13
v_sqrt_f32 v13, v13
s_nop 0
v_cvt_pk_bf16_f32 v13, v13, v13
v_lshlrev_b32 v13, 16, v13
v_rcp_f32 v13, v13
""")
        for j in range(40):
            x, y = F + 2 * j, F + 2 * j + 1
            a(f"""v_sub_f32 v{x}, v{x}, v10
v_sub_f32 v{y}, v{y}, v10
v_cvt_pk_bf16_f32 v{R0+j}, v{x}, v{y}
v_lshlrev_b32 v{x}, 16, v{R0+j}
v_and_b32 v{y}, 0xffff0000, v{R0+j}
v_mul_f32 v{x}, v{x}, v13
v_mul_f32 v{y}, v{y}, v13
v_cvt_pk_bf16_f32 v{R0+j}, v{x}, v{y}""")
            if j % 4 == 3: a(f'buffer_store_dwordx4 v[{R0+j-3}:{R0+j}], v7, {WS}, s59 offen sc1\ns_add_u32 s59, s59, 4096')
        a('s_nop 1\ns_branch L_dispatch')

    def disabled(self, name):
        if name in self.enable: return False
        self.arrive()
        self.a('s_branch L_end')
        return True

    def roleXW(self):
        a = self.a
        a('L_roleXW:')
        if self.disabled('XW'): return
        W0 = 192
        wf = lambda kk, t: W0 + (kk * 4 + t) * 4
        ACC = 64
        acc = lambda mt, t: ACC + (mt * 4 + t) * 4
        XB = 32
        a(f'''
s_sub_u32 {sIDX}, {sROLE}, {R_XW}
s_lshl_b32 s64, {sIDX}, 2
s_add_u32 s64, s64, {sW}
s_lshl_b32 s66, s64, 7
s_add_u32 s66, s66, {FL + 128 * F_XW}
v_mov_b32 v8, 0
''')
        self.set_flag('s66', 0, 'v4', 'v8')
        self.arrive()
        a(f'''
s_cmp_lt_u32 s64, 288
s_cbranch_scc0 L_xw_ffn
s_mov_b32 s69, 0
s_mov_b32 s65, 12288
s_mov_b32 s68, {L_Q}
s_cmp_lt_u32 s64, 96
s_cselect_b32 s12, s{P_WQ}, s{P_WK}
s_cselect_b32 s13, s{P_WQ+1}, s{P_WK+1}
s_cselect_b32 s56, 0, 96
s_mov_b32 s67, {QT}
s_cselect_b32 s67, s67, {QT + QKV_SZ}
s_cmp_lt_u32 s64, 192
s_cselect_b32 s12, s12, s{P_WV}
s_cselect_b32 s13, s13, s{P_WV+1}
s_cselect_b32 s56, s56, 192
s_cselect_b32 s67, s67, {QT + 2 * QKV_SZ}
s_mov_b32 s14, {640 * 12288}
s_mov_b32 s15, 0x20000
s_mov_b32 s16, s12
s_mov_b32 s17, s13
s_mov_b32 s18, s14
s_mov_b32 s19, 0x20000
s_sub_u32 s56, s64, s56
s_lshl_b32 s57, s56, 12
s_add_u32 s67, s67, s57
s_lshl_b32 s57, s56, 7
v_lshrrev_b32 v4, 3, v1
v_mul_u32_u24 v4, 12288, v4
v_and_b32 v5, 7, v1
v_lshl_add_u32 v4, v5, 4, v4
v_add_u32 v10, s57, v4
v_add_u32 v11, {8 * 12288}, v10
v_and_b32 v4, 1, v2
v_lshlrev_b32 v4, 11, v4
v_lshrrev_b32 v5, 1, v2
v_lshl_add_u32 v4, v5, 10, v4
v_lshrrev_b32 v5, 2, v3
v_lshl_add_u32 v4, v5, 7, v4
s_mov_b32 s57, 512
s_mov_b32 s58, 64
s_branch L_xw_go
L_xw_ffn:
s_mov_b32 s69, 1
s_mov_b32 s65, 3072
s_mov_b32 s68, {L_HT}
''')
        self.srd(12, P_G, 640 * 3072); self.srd(16, P_U, 640 * 3072)
        a(f'''
s_sub_u32 s56, s64, 288
s_lshl_b32 s67, s56, 11
s_add_u32 s67, s67, {HT}
s_lshl_b32 s57, s56, 6
v_lshrrev_b32 v4, 2, v1
v_mul_u32_u24 v4, 3072, v4
v_and_b32 v5, 3, v1
v_lshl_add_u32 v4, v5, 4, v4
v_add_u32 v10, s57, v4
v_mov_b32 v11, v10
v_lshrrev_b32 v4, 2, v3
v_lshl_add_u32 v4, v2, 3, v4
v_lshlrev_b32 v4, 6, v4
s_mov_b32 s57, 256
s_mov_b32 s58, 2048
L_xw_go:
s_mul_i32 s70, {sW}, 40960
s_lshl_b32 s71, s65, 4
s_mov_b32 s72, 0
v_and_b32 v5, 3, v3
v_lshl_add_u32 v4, v5, 3, v4
v_add_u32 v20, s70, v4
v_add_u32 v21, s57, v20
v_add_u32 v22, s58, v20
v_add_u32 v23, s58, v21
''')
        if self.late:
            a(f's_sub_u32 s56, s64, {(0, 0, 96, 192)[self.late]}\ns_cmp_lt_u32 s56, {(0, 288, 192, 96)[self.late]}\ns_cbranch_scc1 L_xw_now')
            self.await_all(stamps=False)
            a('L_xw_now:')
        RING = 10
        def issue(b):
            o = (b % RING) * 4096
            self.dma('v10', SA, 's72', 's70', o); self.dma('v11', SB, 's72', 's70', o + 2048)
            a('s_add_u32 s72, s72, s71')
            self.dma('v10', SA, 's72', 's70', o + 1024); self.dma('v11', SB, 's72', 's70', o + 3072)
            a('s_add_u32 s72, s72, s71')
        def consume(b):
            o = (b % RING) * 4096
            for t in range(4):
                for hf in range(2):
                    a(f'ds_read_b64_tr_b16 {vr(wf(b, t) + 2 * hf, 2)}, v{20 + 2 * (t >> 1) + hf} offset:{o + (t & 1) * 32}')
        def xdma1(i, src='s72', dst='s73'):
            return (f's_add_u32 s75, {src}, {i * 1024}\ns_add_u32 m0, {dst}, {i * 1024}\ns_nop 0\n'
                    f'buffer_load_dwordx4 v13, {WS}, s75 offen sc1 lds')
        xadv = 's_add_u32 s72, s72, 40960\ns_add_u32 s73, s73, 40960\ns_cmp_lt_u32 s73, 122880\ns_cselect_b32 s73, s73, s70'
        self.stream_load(20, 4, RING, issue, consume)
        self.await_all()
        a(f'''s_barrier
v_lshlrev_b32 v13, 4, v1
s_mul_i32 s70, {sW}, 10240
s_add_u32 s72, s70, {XN}
s_mov_b32 s73, s70
s_mov_b32 s74, 0
s_mov_b32 {sSEG}, 0
''')
        for _ in range(2):
            for i in range(10): a(xdma1(i))
            a(xadv)
        k1 = 2 * math.sqrt(2 / math.pi) * math.log2(math.e)
        a(f's_mov_b32 s76, {f2u(-k1 * 0.044715):#x}\ns_mov_b32 s77, {f2u(-k1):#x}\nv_mov_b32 v15, s77')
        a(f'v_add_u32 v16, 0x40000000, v13\ns_sub_u32 s67, s67, s68\nv_mov_b32 v17, {FL + 128 * F_O}\nv_mov_b32 v18, 0\ns_waitcnt vmcnt(10)\ns_barrier')
        a('s_cmp_eq_u32 s69, 0\ns_cbranch_scc0 L_xf_loop')
        acc2 = lambda par, mt, t: 64 + par * 32 + (mt * 4 + t) * 4
        OUT, TMP = 128, 144
        def epilogue(ffn, par):
            o = []
            if not ffn:
                for mt in range(2):
                    for p in range(2):
                        d = OUT + (mt * 2 + p) * 4
                        for q in range(2):
                            s_ = acc2(par, mt, 2 * p + q)
                            o += [('v', f'v_cvt_pk_bf16_f32 v{d + 2*q}, v{s_}, v{s_+1}'), ('v', f'v_cvt_pk_bf16_f32 v{d + 2*q + 1}, v{s_+2}, v{s_+3}')]
                        o.append(('m', f'buffer_store_dwordx4 v[{d}:{d+3}], v16, {WS}, s67 offen offset:{p * 2048 + mt * 1024} sc1'))
            else:
                for mt in range(2):
                    G_ = [acc2(par, mt, q) + r for q in range(2) for r in range(4)]
                    U_ = [acc2(par, mt, 2 + q) + r for q in range(2) for r in range(4)]
                    T_ = [TMP + i for i in range(8)]
                    o += [('v', f'v_mul_f32 v{t}, v{g}, v{g}') for g, t in zip(G_, T_)]
                    o += [('v', f'v_fma_f32 v{t}, v{t}, s76, v15') for t in T_]
                    o += [('v', f'v_mul_f32 v{t}, v{t}, v{g}') for g, t in zip(G_, T_)]
                    o += [('t', f'v_exp_f32 v{t}, v{t}') for t in T_]
                    o += [('v', f'v_mul_f32 v{g}, v{g}, v{u}') for g, u in zip(G_, U_)]
                    o += [('v', f'v_add_f32 v{t}, 1.0, v{t}') for t in T_]
                    o += [('t', f'v_rcp_f32 v{t}, v{t}') for t in T_]
                    o += [('v', f'v_mul_f32 v{g}, v{g}, v{t}') for g, t in zip(G_, T_)]
                    d = OUT + mt * 4
                    o += [('v', f'v_cvt_pk_bf16_f32 v{d + i}, v{G_[2*i]}, v{G_[2*i+1]}') for i in range(4)]
                    o.append(('m', f'buffer_store_dwordx4 v[{d}:{d+3}], v16, {WS}, s67 offen offset:{mt * 1024} sc1'))
            return o
        for ffn in (0, 1):
            nm = 'L_xf' if ffn else 'L_xw'
            vq = VQ(self)
            def body():
                for par in range(2):
                    self.tick(0)
                    l = a.label('L_xw_go')
                    a(f's_sub_u32 s79, {sSEG}, {GATE}\ns_max_i32 s79, s79, 0')
                    vq.need('fl')
                    a(f'v_cmp_gt_u32 vcc, s79, v18\ns_cbranch_vccz {l}')
                    self.wait_flags('v17', 'v18', 's79', sleep=8)
                    a(f'{l}:\nv_add_u32 v14, s74, v13')
                    def rd(kk):
                        b = XB + (kk % 3) * 8
                        a(f'ds_read_b128 {vr(b, 4)}, v14 offset:{kk * 2048}\nds_read_b128 {vr(b + 4, 4)}, v14 offset:{kk * 2048 + 1024}')
                    rd(0); rd(1)
                    ep = epilogue(ffn, 1 - par)
                    n = 0
                    for kk in range(20):
                        if kk + 2 < 20: rd(kk + 2)
                        a(f's_waitcnt lgkmcnt({min(4, 2 * (19 - kk))})')
                        b = XB + (kk % 3) * 8
                        for mt in range(2):
                            for t in range(4):
                                c = vr(acc2(par, mt, t), 4)
                                a(f'v_mfma_f32_16x16x32_bf16 {c}, {vr(wf(kk, t), 4)}, {vr(b + 4 * mt, 4)}, {"0" if kk == 0 else c}')
                                n += 1
                                if n >= 3:
                                    budget = 2
                                    while ep and budget > 0:
                                        kind, txt = ep[0]
                                        if kind == 't' and budget < 2: break
                                        ep.pop(0)
                                        if kind == 'm': vq.op(txt, 'st'); budget = 0
                                        else: a(txt); budget -= 2 if kind == 't' else 1
                                if kk >= 10 and mt == 0 and t == 3: vq.op(xdma1(kk - 10), 'dma')
                        if kk == (17 if ffn else 7):
                            assert not ep
                            vq.need('st')
                            vq.op(f'v_mov_b32 v4, {sSEG}\nbuffer_store_dword v4, v8, {WS}, s66 offen sc1')
                        if kk == 8: vq.op(f'buffer_load_dword v18, v17, {WS}, 0 offen sc1', 'fl')
                        if kk == 9:
                            self.tick(1)
                            vq.need('dma'); a('s_barrier')
                            self.tick(2)
                    assert not ep
                    a(xadv)
                    self.tick(3)
                    self.tick(4)
                    if self.prof == 2: self.flush(5); vq.n += 5
                    if self.prof == 1: self.stamp(sSEG); vq.n += 1
                    a(f'''v_mov_b32 v16, v13
s_add_u32 s67, s67, s68
s_add_u32 s74, s74, 40960
s_cmp_lt_u32 s74, 122880
s_cselect_b32 s74, s74, 0
s_add_u32 {sSEG}, {sSEG}, 1''')
            a(f'{nm}_loop:')
            self.loop2(body)
            a(f's_cmp_lt_u32 {sSEG}, {NSEG}\ns_cbranch_scc1 {nm}_loop\ns_nop 7')
            for kind, txt in epilogue(ffn, 1): a(txt + ('\ns_nop 0' if kind == 't' else ''))
            a('s_waitcnt vmcnt(0)')
            self.set_flag('s66', NSEG, 'v4', 'v8')
            self.stamp(3)
            a('s_branch L_end')

    def slab_voff(self, vb, n, ppr, pitch, magic, shift, scol):
        a = self.a
        for u in range(64 * n): assert (u * magic) >> shift == u // ppr, (u, ppr)
        for i in range(n):
            a(f'''v_add_u32 v4, {64 * i}, v1
v_mul_u32_u24 v5, {magic}, v4
v_lshrrev_b32 v5, {shift}, v5
v_mul_u32_u24 v6, {ppr}, v5
v_sub_u32 v4, v4, v6
v_mul_u32_u24 v5, {pitch}, v5
v_lshl_add_u32 v4, v4, 4, v5
v_add_u32 v{vb + i}, {scol}, v4''')

    def roleOT(self):
        a = self.a
        a('L_roleOT:')
        if self.disabled('OT'): return
        W0 = 256
        wf = lambda eb, c: W0 + (c * 6 + eb) * 4
        VB = 64
        vf = lambda buf, eb, mt: VB + buf * 48 + (eb * 2 + mt) * 4
        a(f'''
s_sub_u32 {sIDX}, {sROLE}, {R_OT}
s_lshl_b32 s66, {sW}, 5
s_add_u32 s66, s66, {sIDX}
s_lshl_b32 s66, s66, 7
s_add_u32 s66, s66, {FL + 128 * F_OT}
v_mov_b32 v8, 0
''')
        self.set_flag('s66', 0, 'v4', 'v8')
        self.arrive()
        self.srd(12, P_WO, 32 * 245760)
        a(f'''v_lshlrev_b32 v13, 4, v1
s_mul_i32 s57, {sW}, 320
v_lshrrev_b32 v4, 2, v3
v_lshl_add_u32 v4, v2, 2, v4
v_mul_u32_u24 v4, 1280, v4
v_and_b32 v5, 3, v3
v_lshl_add_u32 v4, v5, 3, v4
v_add_u32 v12, s57, v4''')
        def consume(b):
            for c in range(10):
                for hf in range(2):
                    a(f'ds_read_b64_tr_b16 {vr(wf(b, c) + 2 * hf, 2)}, v12 offset:{hf * 20480 + c * 32}')
        self.wo_load(32, 4, 'v12', consume)
        self.await_all()
        a(f'''
v_lshlrev_b32 v13, 4, v1
v_min_u32 v4, 2, v1
s_mul_i32 s56, {sIDX}, 3
s_add_u32 s56, s56, {F_XW + 192 + FL // 128}
v_add_lshl_u32 v15, v4, s56, 7
s_mul_i32 s72, {sIDX}, 12288
s_add_u32 s72, s72, {QT + 2 * QKV_SZ}
s_mul_i32 s67, {sW}, {10 * (16384 if VNEAR else 8192)}
s_and_b32 s56, {sIDX}, 7
s_lshl_b32 s56, s56, 10
s_add_u32 s67, s67, s56
s_lshr_b32 s56, {sIDX}, 3
s_mul_i32 s56, s56, {MB if VNEAR else 327680}
s_add_u32 s67, s67, s56
s_add_u32 s67, s67, {VO}
{'FIXW s67' if VNEAR else ''}
{'s_xor_b32 s67, s67, 8192' if VNEAR == 2 else ''}
s_mov_b32 {sSEG}, 0
s_mov_b32 s73, 1
''')
        def vload1(buf, f):
            return f's_add_u32 s75, s72, {(f >> 2) * 4096}\nbuffer_load_dwordx4 {vr(VB + buf * 48 + f * 4, 4)}, v13, {WS}, s75 offen offset:{(f & 3) * 1024} sc1'
        self.wait_flags('v15', 'v4', 's73')
        for f in range(12): a(vload1(0, f))
        a(f'ADV s72 s72 {L_Q}\ns_waitcnt vmcnt(0)')
        vq = VQ(self)
        def body():
            for buf in range(2):
                self.tick(0)
                l = a.label('L_ot')
                a(f's_add_u32 s73, {sSEG}, 2\ns_min_u32 s73, s73, {NSEG}\ns_mov_b32 s74, s67')
                vq.need('v')
                vq.op(f'buffer_load_dword v17, v15, {WS}, 0 offen sc1', 'fl')
                self.tick(1)
                for c in range(11):
                    n = 0
                    fin = []
                    if c > 0:
                        A = 32 + ((c - 1) & 1) * 8; d = 48 + ((c - 1) & 1) * 4
                        fin = [f'v_cvt_pk_bf16_f32 v{d+i}, v{A+2*i}, v{A+2*i+1}' for i in range(4)]
                        st = f'buffer_store_dwordx4 v[{d}:{d+3}], v13, {WS}, s74 offen sc1\ns_add_u32 s74, s74, {16384 if VNEAR else 8192}'
                    if c < 10:
                        A = 32 + (c & 1) * 8
                        for eb in range(6):
                            for mt in range(2):
                                dd = vr(A + 4 * mt, 4)
                                a(f'v_mfma_f32_16x16x32_bf16 {dd}, {vr(vf(buf, eb, mt), 4)}, {vr(wf(eb, c), 4)}, {"0" if eb == 0 else dd}')
                                n += 1
                                if 3 <= n < 7 and fin: a(fin[n - 3])
                                if n == 7 and fin: vq.op(st, 'st')
                                if n == 12 and c == 2:
                                    vq.need('fl')
                                    a(f'v_cmp_gt_u32 vcc, s73, v17\nv_mov_b32 v4, {sSEG}\ns_cmp_eq_u64 vcc, 0\ns_cselect_b32 s76, 0, 0x40000000\nv_add_u32 v16, s76, v13')
                                    vq.op(f'buffer_store_dword v4, v8, {WS}, s66 offen sc1')
                                if n in (1, 5, 10) and 3 <= c < 7: vq.op(vload1(1 - buf, 3 * (c - 3) + (1, 5, 10).index(n)).replace('v13', 'v16'), 'v')
                    else:
                        a('s_nop 7')
                        for f in fin: a(f)
                        vq.op(st)
                self.tick(2)
                if self.prof == 2: self.flush(3); vq.n += 3
                if self.prof == 1: self.stamp(sSEG); vq.n += 1
                a(f's_add_u32 {sSEG}, {sSEG}, 1\ns_cmp_eq_u32 s76, 0\ns_cbranch_scc1 {l}')
                self.wait_flags('v15', 'v4', 's73', sleep=1, first=lambda: self.set_flag('s66', sSEG, 'v5', 'v8'))
                for f in range(12): a(vload1(1 - buf, f))
                a(f's_waitcnt vmcnt(0)\n{l}:\nADV s72 s72 {L_Q}\nADV s67 s67 {L_VO}')
        a('L_ot_loop:')
        self.loop2(body)
        a(f's_cmp_lt_u32 {sSEG}, {NSEG}\ns_cbranch_scc1 L_ot_loop\ns_waitcnt vmcnt(0)')
        self.set_flag('s66', NSEG, 'v4', 'v8')
        self.stamp(3)
        a('s_branch L_end')

    def roleFD(self):
        a = self.a
        a('L_roleFD:')
        if self.disabled('FD'): return
        W0 = 256
        wf = lambda kb, c: W0 + (kb * 5 + c) * 4
        HB = 64
        ACC = 24
        a(f'''
s_sub_u32 {sIDX}, {sROLE}, {R_FD}
s_lshl_b32 s66, {sIDX}, 2
s_add_u32 s66, s66, {sW}
s_lshl_b32 s66, s66, 7
s_add_u32 s66, s66, {FL + 128 * F_FD}
v_mov_b32 v8, 0
''')
        self.set_flag('s66', 0, 'v4', 'v8')
        self.arrive()
        self.srd(12, P_D, 1536 * 1280)
        a(f's_mul_i32 s57, {sIDX}, 160\ns_mul_i32 s72, {sW}, {384 * 1280}\ns_mul_i32 s70, {sW}, 40960')
        self.slab_voff(16, 5, 10, 1280, 205, 11, 's57')
        a('''v_lshrrev_b32 v4, 2, v3
v_lshl_add_u32 v4, v2, 2, v4
v_mul_u32_u24 v4, 160, v4
v_and_b32 v5, 3, v3
v_lshl_add_u32 v4, v5, 3, v4
v_add_u32 v12, s70, v4''')
        if self.late: self.await_all(stamps=False)
        RING = 8
        def issue(b):
            for i in range(5): self.dma(f'v{16+i}', SA, 's72', 's70', (b % RING) * 5120 + i * 1024)
            a('s_add_u32 s72, s72, 40960')
        def consume(b):
            for c in range(5):
                for hf in range(2):
                    a(f'ds_read_b64_tr_b16 {vr(wf(b, c) + 2 * hf, 2)}, v12 offset:{(b % RING) * 5120 + hf * 2560 + c * 32}')
        self.stream_load(12, 5, RING, issue, consume)
        self.await_all()
        a('s_barrier')
        a(f'''
v_lshlrev_b32 v13, 4, v1
v_lshlrev_b32 v10, 3, v1
s_mul_i32 s70, {sW}, 10240
v_add_u32 v14, s70, v13
s_lshl_b32 s70, {sW}, 10
v_add_u32 v9, s70, v13
v_min_u32 v4, 11, v1
s_mul_i32 s56, {sW}, 12
s_add_u32 s56, s56, {F_XW + 288 + FL // 128}
v_add_lshl_u32 v15, v4, s56, 7
s_mul_i32 s72, {sW}, 24576
s_add_u32 s72, s72, {HT}
s_mul_i32 s67, {sIDX}, 5120
s_lshl_b32 s56, {sW}, 9
s_add_u32 s67, s67, s56
s_add_u32 s67, s67, {FB}
s_mov_b32 {sSEG}, 0
s_mov_b32 s73, 1
''')
        def hload1(buf, f):
            return f's_add_u32 s75, s72, {(f >> 2) * 4096}\nbuffer_load_dwordx4 {vr(HB + buf * 96 + f * 4, 4)}, v13, {WS}, s75 offen offset:{(f & 3) * 1024} sc1'
        self.wait_flags('v15', 'v4', 's73')
        for f in range(24): a(hload1(0, f))
        a(f'ADV s72 s72 {L_HT}\nv_mov_b32 v22, 0\ns_waitcnt vmcnt(0)')
        a('L_fd_loop:')
        for buf in range(2):
            self.tick(0)
            l = a.label('L_fd_ok')
            a(f's_add_u32 s73, {sSEG}, 2\ns_min_u32 s73, s73, {NSEG}\ns_waitcnt vmcnt(2)\nv_cmp_gt_u32 vcc, s73, v22\ns_cbranch_vccz {l}')
            self.wait_flags('v15', 'v4', 's73')
            a(f'{l}:')
            self.tick(1)
            n = 0
            for kb in range(12):
                for c in range(5):
                    for tt in range(2):
                        d = vr(ACC + (c * 2 + tt) * 4, 4)
                        a(f'v_mfma_f32_16x16x32_bf16 {d}, {vr(wf(kb, c), 4)}, {vr(HB + buf * 96 + (kb * 2 + tt) * 4, 4)}, {"0" if kb == 0 else d}')
                        if n % 4 == 1 and n // 4 < 24: a(hload1(1 - buf, n // 4))
                        if n == 62:
                            a('s_waitcnt vmcnt(16)')
                            self.set_flag('s66', sSEG, 'v4', 'v8')
                        if n == 110: a(f'buffer_load_dword v22, v15, {WS}, 0 offen sc1')
                        n += 1
            a(f'ADV s72 s72 {L_HT}')
            self.tick(2)
            a('s_nop 7')
            lb = buf * 40960
            for t in range(10): a(f'ds_write_b128 v14, {vr(ACC + t * 4, 4)} offset:{lb + t * 1024}')
            a('s_waitcnt lgkmcnt(0)\ns_barrier')
            lab = a.label('L_fd_skip')
            for j in range(3):
                if j == 2: a(f's_cmp_lt_u32 {sW}, 2\ns_cbranch_scc0 {lab}')
                for w in range(4):
                    off = lb + w * 10240 + j * 4096
                    if off > 65535 - 16:
                        a(f'v_add_u32 v11, {off}, v9\nds_read_b128 {vr(ACC + w * 4, 4)}, v11')
                    else:
                        a(f'ds_read_b128 {vr(ACC + w * 4, 4)}, v9 offset:{off}')
                a('s_waitcnt lgkmcnt(0)')
                for r in range(4):
                    a(f'v_add_f32 v{ACC+r}, v{ACC+r}, v{ACC+4+r}\nv_add_f32 v{ACC+8+r}, v{ACC+8+r}, v{ACC+12+r}\nv_add_f32 v{ACC+r}, v{ACC+r}, v{ACC+8+r}')
                a(f'v_cvt_pk_bf16_f32 v{16+2*j}, v{ACC}, v{ACC+1}\nv_cvt_pk_bf16_f32 v{17+2*j}, v{ACC+2}, v{ACC+3}')
                a(f'buffer_store_dwordx2 v[{16+2*j}:{17+2*j}], v10, {WS}, s67 offen offset:{j * 2048 if j < 2 else 0} sc1' if j < 2 else
                  f's_add_u32 s75, s67, 4096\nbuffer_store_dwordx2 v[{16+2*j}:{17+2*j}], v10, {WS}, s75 offen sc1')
            a(f'{lab}:')
            self.tick(3)
            if self.prof == 2: self.flush(4); a('s_waitcnt vmcnt(0)')
            a(f'ADV s67 s67 {L_FB}\ns_add_u32 {sSEG}, {sSEG}, 1')
        a(f's_cmp_lt_u32 {sSEG}, {NSEG}\ns_cbranch_scc1 L_fd_loop\ns_waitcnt vmcnt(0)')
        self.set_flag('s66', NSEG, 'v4', 'v8')
        self.stamp(3)
        a('s_branch L_end')

    def build(self):
        a = self.a
        self.prologue(); self.ln()
        import roles2
        roles2.emit(self)
        self.roleFD(); self.roleOT(); self.roleXW()
        a(f'''L_fail:
s_waitcnt vmcnt(0) lgkmcnt(0)
s_mov_b64 exec, 1
v_mov_b32 v4, {sROLE}
v_add_u32 v4, 1, v4
v_mov_b32 v5, 12
buffer_store_dword v4, v5, {DBG}, 0 offen
L_end:
s_endpgm
L_hot_end:''')
        a.lines += self.cold
        a('.p2align 2\n.type role_tab,@object\n.size role_tab, 256\nrole_tab:')
        rt = role_table()
        for i in range(0, 256, 16): a('.byte ' + ', '.join(str(r) for r in rt[i:i+16]))
        hdr = open(f'cdna_kernels/{NAME}.s.ref').read().split('; Override')[0]
        return (hdr + '; @launch grid=(256,1,1) block=(256,1,1) lds=163840\n'
                f'.amdgcn_target "amdgcn-amd-amdhsa--gfx950"\n.text\n.globl {KN}\n.p2align 8\n.type {KN},@function\n{KN}:\n'
                + a.text() + f'''.section .rodata,"a"
.p2align 6
.amdhsa_kernel {KN}
  .amdhsa_next_free_vgpr 512
  .amdhsa_next_free_sgpr 102
  .amdhsa_accum_offset 256
  .amdhsa_group_segment_fixed_size 0
  .amdhsa_kernarg_size 112
  .amdhsa_user_sgpr_count 2
  .amdhsa_user_sgpr_kernarg_segment_ptr 1
  .amdhsa_system_sgpr_workgroup_id_x 1
  .amdhsa_float_denorm_mode_32 3
  .amdhsa_float_denorm_mode_16_64 3
.end_amdhsa_kernel
''')

if __name__ == '__main__':
    kw = eval('dict(%s)' % (sys.argv[2] if len(sys.argv) > 2 else ''))
    open(sys.argv[1], 'w').write(Gen(**kw).build())
```

```python
from gen import *

def head_slab_load(G, mats, vb, vres, park):
    a = G.a
    for u in range(192): assert (u * 171) >> 12 == u // 24
    a(f's_mul_i32 s58, {sIDX}, 384')
    for i in range(3):
        a(f"""v_add_u32 v4, {64 * i}, v1
v_mul_u32_u24 v5, 171, v4
v_lshrrev_b32 v5, 12, v5
v_mul_u32_u24 v6, 24, v5
v_sub_u32 v4, v4, v6
v_mul_u32_u24 v5, 12288, v5
v_lshl_add_u32 v5, v4, 4, v5
v_add_u32 v{vb + i}, s58, v5""")
    a(f"""v_lshrrev_b32 v4, 2, v3
v_lshl_add_u32 v4, v2, 3, v4
v_mul_u32_u24 v4, 384, v4
v_and_b32 v5, 3, v3
v_lshl_add_u32 v4, v5, 3, v4
s_lshr_b32 s56, {sW}, 1
s_lshl_b32 s56, s56, 1
s_add_u32 s56, s56, {sW}
s_lshl_b32 s56, s56, 6
s_lshl_b32 s57, {sW}, 5
s_add_u32 s57, s57, 128
v_add_u32 v{vb + 11}, s56, v4
v_add_u32 v{vb + 12}, s57, v4
s_mul_i32 s70, {sW}, 12288""")
    for i in range(4):
        a(f's_xor_b32 s56, {sW}, {i}\ns_mul_i32 s56, s56, 12288\nv_add_u32 v{vb + 3 + 2*i}, s56, v{vb + 11}\nv_add_u32 v{vb + 4 + 2*i}, s56, v{vb + 12}')
    ng = 5 * len(mats)
    def issue(gi):
        srd = mats[gi // 5][0]; g = gi % 5
        if g < 4: a(f's_mul_i32 s72, {sW}, {4 * 393216}\ns_add_u32 s72, s72, {g * 393216}')
        else: a(f's_mul_i32 s72, {sW}, 393216\ns_add_u32 s72, s72, {16 * 393216}')
        for k in range(4):
            for i in range(3): G.dma(f'v{vb+i}', srd, 's72', 's70', (gi % 3) * 49152 + k * 3072 + i * 1024)
            if k < 3: a(f's_add_u32 s72, s72, {8 * 12288}')
    parked = {}
    base = 0
    tk = lambda i: a(f's_memrealtime s[{80 + 2*i}:{81 + 2*i}]') if G.diag & 16 else None
    tk(0); issue(0); issue(1); tk(1)
    for gi in range(ng):
        if gi == 3: tk(2)
        a(f's_waitcnt vmcnt({12 if gi + 1 < ng else 0})')
        if gi == 3: tk(3)
        a('s_barrier')
        if gi == 3: tk(4)
        if gi + 2 < ng: issue(gi + 2)
        if gi == 3: tk(5)
        if gi == 4: tk(6)
        nb = (gi % 3) * 49152
        if nb != base:
            for r in range(vb + 3, vb + 13): a(f'v_add_u32 v{r}, {nb - base}, v{r}')
            base = nb
        dest = mats[gi // 5][1]; g = gi % 5
        for i in range(4):
            b = g + 4 * i if g < 4 else 16 + i
            for tl in range(3):
                kind, d = dest(b >> 1, tl)
                if kind == 'l': d = parked.setdefault(d, park + 8 * len(parked))
                ad = (vb + 3 + 2 * i if g < 4 else vb + 11) + (tl == 2)
                off = (0 if g < 4 else i * 12288) + (tl & 1) * 32
                for hf in range(2):
                    a(f'ds_read_b64_tr_b16 {vr(d + 4 * (b & 1) + 2 * hf, 2)}, v{ad} offset:{off + hf * 1536}')
        a('s_waitcnt lgkmcnt(0)')
    a('s_barrier')
    if G.diag & 16:
        tk(7); a(f's_mov_b32 {sSEG}, 0'); G.prof = 2; G.flush(8, vt=(4, 5)); G.prof = 1
    for o, r in parked.items():
        a(f'ds_write_b128 v{vres}, {vr(r, 4)} offset:{o}\nds_write_b128 v{vres}, {vr(r + 4, 4)} offset:{o + 1024}')
    a('s_waitcnt lgkmcnt(0)')

def mpoll_setup(G, vg4, vg2, vl4, vl2, ssel, ldsbase):
    a = G.a
    a(f'''
s_lshl_b32 s56, {sW}, 11
v_lshl_add_u32 v{vl4}, v1, 4, s56
v_mov_b32 v{vg4}, v{vl4}
v_add_u32 v{vl4}, {ldsbase}, v{vl4}
s_lshl_b32 s56, {sW}, 9
v_lshl_add_u32 v{vl2}, v1, 3, s56
v_add_u32 v{vg2}, 8192, v{vl2}
v_add_u32 v{vl2}, {ldsbase + 8192}, v{vl2}
''')

def poll(G, load, use, n, nreg, A, B, vt, pipe=True, sleep=0):
    a = G.a; l = a.label('L_poll')
    a(f's_mov_b32 {sSPIN}, {SPIN}')
    if not pipe:
        a(f'{l}:')
        load(A)
        a(f's_sub_u32 {sSPIN}, {sSPIN}, 1\ns_cbranch_scc1 L_fail\ns_waitcnt vmcnt(0)')
        use(A)
        G.check(A if isinstance(A, list) else range(A, A + nreg), vt)
        if sleep: a(f's_cbranch_vccz {l}_d\ns_sleep {sleep}\ns_branch {l}\n{l}_d:')
        else: a(f's_cbranch_vccnz {l}')
    else:
        load(A)
        a(f'{l}:')
        load(B)
        a(f's_waitcnt vmcnt({n})')
        use(A); G.check(range(A, A + nreg), vt)
        a(f's_cbranch_vccz {l}_d')
        load(A)
        a(f's_sub_u32 {sSPIN}, {sSPIN}, 1\ns_cbranch_scc1 L_fail\ns_waitcnt vmcnt({n})')
        use(B); G.check(range(B, B + nreg), vt)
        a(f's_cbranch_vccnz {l}')
        a(f'{l}_d:')

def idx_setup(G, v):
    G.a(f'v_mov_b32 v4, 0x4444\nv_mov_b32 v5, 0xeeee\nv_cmp_gt_u32 vcc, 8, v3\ns_nop 1\nv_cndmask_b32 v{v}, v5, v4, vcc')

def ttile_addr(G, vw, vr_):
    G.a(f"""v_lshrrev_b32 v4, 1, v2
v_lshlrev_b32 v4, 3, v4
v_xor_b32 v4, v4, v3
v_lshlrev_b32 v4, 3, v4
v_lshl_add_u32 {vw}, v2, 7, v4
v_lshrrev_b32 v4, 2, v3
v_lshl_add_u32 v4, v2, 2, v4
v_bfe_u32 v5, v3, 1, 1
v_lshlrev_b32 v5, 3, v5
v_xor_b32 v4, v4, v5
v_lshlrev_b32 v4, 3, v4
v_and_b32 v5, 3, v3
v_lshl_add_u32 {vr_}, v5, 7, v4""")

SMF = 'v_smfmac_f32_16x16x64_bf16'
MF32 = 'v_mfma_f32_16x16x32_bf16'
MF16 = 'v_mfma_f32_16x16x16_bf16'

class Proj:
    def __init__(self, G, AB, SBUF, vA, vres, vidx, nbuf=3):
        self.G, self.AB, self.SBUF, self.vA, self.vres, self.vidx, self.nbuf = G, AB, SBUF, vA, vres, vidx, nbuf

class LQ:
    def __init__(self, a): self.a = a; self.n = 0; self.tag = {}; self.done = 0
    def op(self, ins, tag=None):
        self.a(ins); self.n += 1
        if tag is not None: self.tag[tag] = self.n
    def need(self, *tags):
        k = max(self.tag[t] for t in tags if t in self.tag) if any(t in self.tag for t in tags) else 0
        if k > self.done:
            self.a(f's_waitcnt lgkmcnt({min(15, self.n - k)})'); self.done = k
    def drain(self):
        self.a('s_waitcnt lgkmcnt(0)'); self.done = self.n

def roleS(G):
    a = G.a
    a('L_roleS:')
    if G.disabled('S'): return
    (vZ, vIDX, vG4, vG2, vL4, vL2, vA, vRES, vTW, vTR, vPW, vL16, vMW, vMR, vES, vLS, vFL, vKH, vD0, vD1, vA1, vA2, vA3, vPR) = range(8, 32)
    SQ, SK = 16, 124
    vT = 7
    AB = 32
    AQ = 44
    AK = 56
    KT = 68
    KH = 80
    QH = 86
    X = 92
    SB = 108
    Y = 126
    POLA = 98
    W0 = 128
    order = [(0, 0, t) for t in range(3)] + [(0, 1, t) for t in range(3)] + [(1, 0, t) for t in range(3)]
    order += [(0, tau, t) for tau in range(2, 7) for t in range(3)]
    order += [(0, tau, t) for tau in (7, 8, 9) for t in range(2)] + [(0, tau, 2) for tau in (7, 8, 9)] + [(1, 1, t) for t in range(3)]
    order += [(1, tau, t) for tau in (7, 8, 9, 2, 3) for t in range(3)]
    order += [(1, tau, t) for tau in (4, 5, 6) for t in range(2)] + [(1, tau, 2) for tau in (4, 5, 6)]
    assert len(set(order)) == 60
    lds_set = [order[n] for n in (6, 10, 15, 19, 24, 28, 33, 37, 42, 46, 51, 55)]
    nl = len(lds_set); RESW = nl * 2048
    RES, MST, TT, PMT, PMM, STG = 0, 98304, 108544, 120832, 125440, 98304
    assert 4 * RESW <= MST
    loc = {}; nr = 0
    for key in sorted(order):
        if key in lds_set: loc[key] = ('l', lds_set.index(key) * 2048)
        else: loc[key] = ('r', W0 + 8 * nr); nr += 1
    assert W0 + 8 * nr <= 512
    a(f"""
s_mov_b32 {sIDX}, {sROLE}
s_lshl_b32 s66, {sIDX}, 2
s_add_u32 s66, s66, {sW}
s_lshl_b32 s66, s66, 7
s_add_u32 s66, s66, {FL + 128 * F_S}
v_mov_b32 v{vZ}, 0
v_lshlrev_b32 v{vL16}, 4, v1
""")
    G.set_flag('s66', 0, 'v4', f'v{vZ}')
    a(f"""
s_lshl_b32 s64, {sIDX}, 9
s_add_u32 s64, s64, {LE}
s_lshr_b32 s65, {sIDX}, 2
s_lshl_b32 s65, s65, 10
s_and_b32 s56, {sIDX}, 1
s_lshl_b32 s56, s56, 8
s_add_u32 s65, s65, s56
s_and_b32 s56, {sIDX}, 2
s_lshl_b32 s56, s56, 1
s_add_u32 s65, s65, s56
s_add_u32 s65, s65, {LL}
v_mov_b32 v4, -1
v_mov_b32 v5, -1
v_lshlrev_b32 v6, 3, v1
v_lshrrev_b32 v7, 5, v1
v_lshl_add_u32 v7, v7, 8, v6
s_and_b32 s59, {sW}, 1
s_lshl_b32 s59, s59, {L_LOC}
s_add_u32 s56, s59, s64
s_add_u32 s57, s59, s65
buffer_store_dwordx2 v[4:5], v6, {WS}, s56 offen sc1
buffer_store_dword v4, v7, {WS}, s57 offen sc1
""")
    G.arrive()
    G.srd(12, P_WQ, 640 * 12288); G.srd(16, P_WK, 640 * 12288)
    a(f's_mul_i32 s71, {sW}, {RESW}\nv_add_u32 v{vRES}, s71, v{vL16}\nv_mov_b32 v0, v{vL16}')
    head_slab_load(G, [(SA, lambda t, tl: loc[0, t, tl]), ('s[16:19]', lambda t, tl: loc[1, t, tl])][::-1 if G.kfirst else 1], 16, vRES, 32)
    a(f'v_mov_b32 v{vL16}, v0')
    G.dstamp(10)
    G.await_all()
    a('s_barrier')
    idx_setup(G, vIDX)
    mpoll_setup(G, vG4, vG2, vL4, vL2, sSELM, MST)
    a(f"""
v_xor_b32 v{vA1}, 2048, v{vL4}
v_xor_b32 v{vA2}, 4096, v{vL4}
v_xor_b32 v{vA3}, 6144, v{vL4}
v_add_u32 v{vA}, {MST}, v{vL16}
""")
    a(f"""
v_and_b32 v4, 1, v2
v_lshlrev_b32 v4, 2, v4
v_and_b32 v5, 7, v3
v_sub_u32 v5, v5, v4
v_lshrrev_b32 v6, 2, v3
v_and_b32 v7, 3, v3
v_lshl_add_u32 v6, v6, 1, v7
v_lshrrev_b32 v7, 1, v7
v_lshl_add_u32 v6, v7, 4, v6
v_sub_u32 v6, v6, v4
v_mov_b32 v4, 0x3f80
v_mov_b32 v7, 0x3f800000
""")
    for dst, src in ((SQ, 5), (SK, 6)):
        for hh in range(2):
            a(f"""v_cmp_eq_u32 vcc, {2 * hh}, v{src}
v_cmp_eq_u32 s[56:57], {2 * hh + 1}, v{src}
s_nop 1
v_cndmask_b32 v{dst + hh}, 0, v4, vcc
v_cndmask_b32 v{dst + hh}, v{dst + hh}, v7, s[56:57]""")
    a(f"""
v_cmp_gt_u32 s[74:75], 8, v3
s_mul_i32 s56, {sW}, 1152
s_add_u32 s56, s56, {PMT}
v_lshl_add_u32 v4, v2, 5, v{vL16}
v_add_u32 v{vPW}, s56, v4
v_bfe_u32 v4, v1, 1, 2
v_mul_u32_u24 v4, 288, v4
v_and_b32 v5, 1, v1
v_lshl_add_u32 v4, v5, 7, v4
v_lshrrev_b32 v6, 3, v1
v_lshl_add_u32 v4, v6, 4, v4
v_add_u32 v{vPR}, {PMT}, v4
s_mul_i32 s56, {sW}, 576
s_add_u32 s56, s56, {PMM}
v_mul_u32_u24 v4, 144, v2
v_lshl_add_u32 v4, v3, 3, v4
v_add_u32 v{vMW}, s56, v4
v_and_b32 v4, 3, v1
v_mul_u32_u24 v4, 144, v4
v_lshl_add_u32 v4, v6, 3, v4
v_bfe_u32 v5, v1, 2, 1
v_lshl_add_u32 v4, v5, 6, v4
v_add_u32 v{vMR}, {PMM}, v4
""")
    a(f"""
v_lshrrev_b32 v4, 3, v1
v_bfe_u32 v5, v1, 1, 2
v_and_b32 v6, 1, v1
v_lshlrev_b32 v7, 7, v5
v_lshl_add_u32 v7, v4, 4, v7
v_lshl_add_u32 v{vES}, v6, 3, v7
v_lshl_add_u32 v7, v6, 3, v4
v_lshlrev_b32 v7, 4, v7
v_bfe_u32 v5, v1, 1, 1
v_lshl_add_u32 v7, v5, 3, v7
v_bfe_u32 v{vD0}, v1, 2, 1
v_lshl_add_u32 v{vLS}, v{vD0}, 9, v7
v_lshlrev_b32 v5, 2, v5
v_lshl_add_u32 v5, v6, 1, v5
v_cmp_eq_u32 s[76:77], 1, v{vD0}
v_cmp_eq_u32 vcc, v4, v5
s_nop 1
v_cndmask_b32 v{vD0}, 0, 1.0, vcc
v_add_u32 v5, 1, v5
v_cmp_eq_u32 vcc, v4, v5
s_nop 1
v_cndmask_b32 v{vD1}, 0, 1.0, vcc
""")
    a(f"""
s_cmp_eq_u32 {sW}, 0
s_cselect_b32 s56, 0, 0x40000000
v_add_u32 v{vES}, s56, v{vES}
v_add_u32 v{vLS}, s56, v{vLS}
v_min_u32 v4, 2, v1
s_mul_i32 s56, {sIDX}, 3
s_add_u32 s56, s56, {F_XW + 96 + FL // 128}
v_add_lshl_u32 v{vFL}, v4, s56, 7
s_lshr_b32 s56, {sW}, 1
s_lshl_b32 s57, s56, 1
s_add_u32 s57, s57, {sW}
s_add_u32 s56, s56, 2
s_and_b32 s58, {sW}, 1
s_lshl_b32 s58, s58, 3
v_add_u32 v{vKH}, s58, v{vL16}
s_mul_i32 s58, {sIDX}, 12288
s_add_u32 s58, s58, {QT + QKV_SZ}
s_lshl_b32 s67, s57, 11
s_add_u32 s67, s67, s58
s_lshl_b32 s68, s56, 11
s_add_u32 s68, s68, s58
s_mul_i32 s58, {sIDX}, 6144
s_add_u32 s58, s58, {KM}
s_lshl_b32 s69, s57, 10
s_add_u32 s69, s69, s58
s_lshl_b32 s70, s56, 10
s_add_u32 s70, s70, s58
s_lshr_b32 s56, {sIDX}, 3
s_lshl_b32 s79, s56, 7
s_add_u32 s79, s79, {HC}
s_lshl_b32 s71, s56, 14
s_add_u32 s71, s71, {LM}
s_mov_b32 s78, {f2u(C_SCALE):#x}
s_mov_b32 s62, {f2u(60.0):#x}
s_mov_b32 {sSEG}, 0
s_mov_b32 s73, 1
""")
    ktl = [f'buffer_load_dwordx4 v[{KT}:{KT+3}], v{vL16}, {WS}, s67 offen sc1',
           f'buffer_load_dwordx4 v[{KT+4}:{KT+7}], v{vL16}, {WS}, s67 offen offset:1024 sc1\nADV s67 s67 {L_Q}',
           f'buffer_load_dwordx2 v[{KT+8}:{KT+9}], v{vKH}, {WS}, s68 offen sc1',
           f'buffer_load_dwordx2 v[{KT+10}:{KT+11}], v{vKH}, {WS}, s68 offen offset:1024 sc1\nADV s68 s68 {L_Q}']
    if G.diag & 2: ktl = []
    else: G.wait_flags(f'v{vFL}', 'v4', 's73')
    for t in ktl: a(t)
    def main():
        a('L_s_loop:')
        G.tick(0)
        q = LQ(a)
        def wread(q, i):
            b = SB + (i % 2) * 8
            q.op(f'ds_read_b128 {vr(b, 4)}, v{vRES} offset:{i * 2048}')
            q.op(f'ds_read_b128 {vr(b + 4, 4)}, v{vRES} offset:{i * 2048 + 1024}', ('w', i))
        wread(q, 0); wread(q, 1)
        for i in range(24): a(f'v_mov_b32 v{AQ + i}, 0')
        q.drain()
        aseq = [2, 3, 4, 5, 6, 7, 8, 9, 2, 3, 4, 5, 6]
        slot1 = {t: (t - 2) % 3 for t in range(2, 10)}
        slot2 = dict(slot1); slot2.update({t: (8 + t - 2) % 3 for t in range(2, 7)})
        def ard(q, pos):
            t = aseq[pos]
            ad, off = ((vA1, vA2, vA3)[(t >> 1) - 1], (t & 1) * 1024) if t < 8 else (vA, t * 1024)
            q.op(f'ds_read_b128 {vr(AB + (pos % 3) * 4, 4)}, v{ad} offset:{off}', ('a', pos))
        def smf(q, n, own=POLA):
            mtx, tau, tl = order[n]
            kind, d = loc[mtx, tau, tl]
            if kind == 'l':
                i = d // 2048; d = SB + (i % 2) * 8; q.need(('w', i))
            if tau < 2: A = own + 4 * tau
            else:
                pos = tau - 2 if (mtx == 0 or tau >= 7) else 8 + tau - 2
                q.need(('a', pos)); A = AB + (pos % 3) * 4
            a(f'{SMF} {vr((AQ, AK)[mtx] + 4 * tl, 4)}, {vr(A, 4)}, {vr(d, 8)}, v{vIDX}')
            if kind == 'l' and i + 2 < nl: wread(q, i + 2)
        def mload(b):
            a(f"""buffer_load_dwordx4 v[{b}:{b+3}], v{vG4}, {WS}, s71 offen sc1
buffer_load_dwordx4 v[{b+4}:{b+7}], v{vG4}, {WS}, s71 offen offset:1024 sc1
buffer_load_dwordx2 v[{b+8}:{b+9}], v{vG2}, {WS}, s71 offen sc1""")
        def mwrite(b):
            a(f"""ds_write_b128 v{vL4}, v[{b}:{b+3}]
ds_write_b128 v{vL4}, v[{b+4}:{b+7}] offset:1024
ds_write_b64 v{vL2}, v[{b+8}:{b+9}]""")
        import copy
        def phase0(b, q0, fail):
            a(f'v_max3_u32 v{vT}, v{b+3}, v{b+7}, v{b+9}\nv_cmp_eq_u32 vcc, -1, v{vT}\ns_cbranch_vccnz {fail}')
            G.tick(1)
            wr = [f'ds_write_b128 v{vL4}, v[{b}:{b+3}]', f'ds_write_b128 v{vL4}, v[{b+4}:{b+7}] offset:1024', f'ds_write_b64 v{vL2}, v[{b+8}:{b+9}]']
            ck = [f'v_max3_u32 v{vT}, v{b}, v{b+1}, v{b+2}', f'v_max3_u32 v{vT}, v{vT}, v{b+4}, v{b+5}', f'v_max3_u32 v{vT}, v{vT}, v{b+6}, v{b+8}', f'v_cmp_eq_u32 vcc, -1, v{vT}']
            for n in range(9):
                smf(q0, n, own=b)
                if n < 3: q0.op(wr[n], 'mw')
                if n < 4: a(ck[n])
                if n == 4: a(f's_cbranch_vccnz {fail}_z')
                if n == G.sb1:
                    q0.need('mw'); a('s_barrier')
                    ard(q0, 0); ard(q0, 1); ard(q0, 2)
        def rezero(lab):
            a(f'{lab}_z:\ns_nop 7')
            for i in range(12): a(f'v_mov_b32 v{AQ + i}, 0')
        G.wait_flags(f'v{vZ}', 'v4', sSEG, sleep=0, soff='s79', first=lambda: G.set_flag('s66', sSEG, 'v5', f'v{vZ}', 'LOCAL'))
        G.tick(6)
        a(f's_mov_b32 {sSPIN}, {SPIN}')
        if G.mpipe:
            POLB = 80
            mload(POLA)
            a('s_branch L_s_poll')
            rezero('L_s_pollB')
            a('L_s_pollB:')
            mload(POLA)
            a(f's_sub_u32 {sSPIN}, {sSPIN}, 1\ns_cbranch_scc1 L_fail\ns_waitcnt vmcnt(3)')
            qb = copy.copy(q); qb.tag = dict(q.tag)
            phase0(POLB, qb, 'L_s_poll')
            a('s_branch L_s_main')
            rezero('L_s_poll')
            a('L_s_poll:')
            mload(POLB)
            a('s_waitcnt vmcnt(3)')
            phase0(POLA, q, 'L_s_pollB')
        else:
            a('s_branch L_s_poll')
            rezero('L_s_poll')
            a('L_s_poll:')
            mload(POLA)
            a(f's_sub_u32 {sSPIN}, {sSPIN}, 1\ns_cbranch_scc1 L_fail\ns_waitcnt vmcnt(0)')
            phase0(POLA, q, 'L_s_poll')
        a('L_s_main:')
        fill = {n: [] for n in range(60)}
        V = lambda s_: (lambda: a(s_))
        last_use = {}
        for n in range(9, 60):
            mtx, tau, tl = order[n]
            if tau < 2: continue
            pos = tau - 2 if (mtx == 0 or tau >= 7) else 8 + tau - 2
            last_use[pos] = n
        for pos in range(3, len(aseq)): fill[last_use[pos - 3]].append(lambda pos=pos: ard(q, pos))
        def cvt2(ACC, tl, dst):
            s_ = ACC + 4 * tl
            return [V(f'v_cvt_pk_bf16_f32 v{dst}, v{s_}, v{s_+1}'), V(f'v_cvt_pk_bf16_f32 v{dst+1}, v{s_+2}, v{s_+3}')]
        def tmf(ACC, tl, src, sel): return V(f'{MF16} {vr(ACC + 4 * tl, 4)}, v[{src}:{src+1}], v[{sel}:{sel+1}], 0')
        fill[12].append(V(f'buffer_load_dword v2, v{vFL}, {WS}, 0 offen sc1'))
        fill[30].append(V('s_waitcnt vmcnt(1)'))
        fill[31] += cvt2(AQ, 0, X)
        fill[32] += [V('s_nop 0'), tmf(AQ, 0, X, SQ)] + cvt2(AQ, 1, X + 2)
        fill[33] += [V('s_nop 0'), tmf(AQ, 1, X + 2, SQ)] + cvt2(AQ, 2, X + 4)
        fill[34] += [V('s_nop 0'), tmf(AQ, 2, X + 4, SQ)] + cvt2(AQ, 0, QH)
        fill[35] += cvt2(AQ, 1, QH + 2)
        fill[36] += [V('s_nop 0')] + [V(f'{MF32} {vr(AQ + 4*mt, 4)}, v[{KT + 4*mt}:{KT + 4*mt + 3}], v[{QH}:{QH+3}], 0') for mt in range(2)] + cvt2(AQ, 2, QH + 4)
        fill[38] += [V(f'{MF16} {vr(AQ + 4*mt, 4)}, v[{KT + 8 + 2*mt}:{KT + 9 + 2*mt}], v[{QH+4}:{QH+5}], {vr(AQ + 4*mt, 4)}') for mt in range(2)]
        fill[41] += [V(f'v_cndmask_b32 v{X + r}, v{AQ + 4 + r}, v{AQ + r}, s[74:75]') for r in range(4)]
        fill[41].append(lambda: q.op(f'ds_write_b128 v{vPW}, v[{X}:{X+3}]', 'pw'))
        def b2():
            q.need('pw'); a('s_barrier'); G.tick(2)
            for w in range(4): q.op(f'ds_read_b128 v[{X + 4*w}:{X + 4*w + 3}], v{vPR} offset:{1152 * w}', ('p', w))
        fill[G.b2].append(b2)
        add = lambda d, x, y: V(f'v_add_f32 v{d}, v{x}, v{y}')
        DP = ['quad_perm:[1,0,3,2]', 'quad_perm:[2,3,0,1]', 'row_half_mirror']
        dpt = lambda op, v, k: f'{op}_dpp {v}, {v}, {v} {DP[k]} row_mask:0xf bank_mask:0xf'
        dpp = lambda op, v, k: a(dpt(op, v, k))
        ex = lambda r: V(f'v_exp_f32 v{X+r}, v{X+r}')
        e0 = G.b2 + 5
        assert e0 + 6 <= 59
        fill[e0] += [lambda: q.need(('p', 1))] + [add(X + r, X + r, X + 4 + r) for r in range(4)]
        fill[e0 + 1] += [lambda: q.need(('p', 3))] + [add(X + 8 + r, X + 8 + r, X + 12 + r) for r in range(4)]
        fill[e0 + 2] += [add(X + r, X + r, X + 8 + r) for r in range(4)]
        fill[e0 + 3] += [V(f'v_max3_f32 v5, v{X}, v{X+1}, v{X+2}'), V(f'v_max_f32 v5, v5, v{X+3}')]
        fill[e0 + 4] += [V('s_nop 0'), V(dpt('v_max_f32', 'v5', 0))]
        fill[e0 + 5] += [V('s_nop 0'), V(dpt('v_max_f32', 'v5', 1))]
        fill[e0 + 6] += [V('s_nop 0'), V(dpt('v_max_f32', 'v5', 2))]
        fm = lambda r: V(f'v_fma_f32 v{X+r}, v{X+r}, s78, -v5')
        est = V(f'v_cvt_pk_bf16_f32 v{X+4}, v{X}, v{X+1}\nv_cvt_pk_bf16_f32 v{X+5}, v{X+2}, v{X+3}\nbuffer_store_dwordx2 v[{X+4}:{X+5}], v{vES}, {WS}, s64 offen LOCAL')
        mul5 = V('v_mul_f32 v5, s78, v5')
        if G.early:
            fill[e0 + 6] += [mul5] + [fm(r) for r in range(4)]
            mul5 = V('s_nop 0'); fm = lambda r: ex(r)
        fill[58] += cvt2(AK, 0, X + 8)
        for n in range(9, 60):
            smf(q, n)
            for f in fill[n]: f()
        G.tick(3)
        S0 = AQ + 8; d = vr(S0, 4)
        run = lambda fs: [f() for f in fs]
        run(cvt2(AK, 1, X + 10) + [tmf(AK, 0, X + 8, SK), mul5, tmf(AK, 1, X + 10, SK), fm(0), fm(1), fm(2)])
        if G.early:
            run(cvt2(AK, 2, Y) + [fm(3), V('s_nop 0'), tmf(AK, 2, Y, SK), est])
            G.tick(7)
            run(cvt2(AK, 0, KH) + cvt2(AK, 1, KH + 2))
            a(f's_nop 1\n{MF32} {d}, v[{KH}:{KH+3}], v[{QH}:{QH+3}], 0')
            run(cvt2(AK, 2, KH + 4))
            a(f's_cmp_eq_u32 {sW}, 0\ns_nop 2\n{MF16} {d}, v[{KH+4}:{KH+5}], v[{QH+4}:{QH+5}], {d}\ns_nop 0')
        else:
            run(cvt2(AK, 2, Y) + [fm(3), ex(0), tmf(AK, 2, Y, SK)] + cvt2(AK, 0, KH) + cvt2(AK, 1, KH + 2) + [ex(1), ex(2)])
            a(f'{MF32} {d}, v[{KH}:{KH+3}], v[{QH}:{QH+3}], 0')
            run([ex(3)] + cvt2(AK, 2, KH + 4))
            a(f"""v_cvt_pk_bf16_f32 v{X+4}, v{X}, v{X+1}
v_cvt_pk_bf16_f32 v{X+5}, v{X+2}, v{X+3}
s_cmp_eq_u32 {sW}, 0
{MF16} {d}, v[{KH+4}:{KH+5}], v[{QH+4}:{QH+5}], {d}
buffer_store_dwordx2 v[{X+4}:{X+5}], v{vES}, {WS}, s64 offen LOCAL""")
            G.tick(7)
        a(f"""v_add_f32 v6, v{X}, v{X+1}
v_add_f32 v4, v{X+2}, v{X+3}
v_add_f32 v6, v6, v4
s_nop 1
{dpt('v_add_f32', 'v6', 0)}
s_nop 0
ds_write_b64 v{vMW}, v[{S0}:{S0+1}]
{dpt('v_add_f32', 'v6', 1)}
s_nop 1
{dpt('v_add_f32', 'v6', 2)}
s_waitcnt lgkmcnt(0)
s_barrier
""")
        G.tick(4)
        Z = X + 8
        a(f"""s_cbranch_scc0 L_s_nolate
ds_read2_b64 v[{Z}:{Z+3}], v{vMR} offset0:0 offset1:72
ds_read2_b64 v[{Z+4}:{Z+7}], v{vMR} offset0:144 offset1:216
s_waitcnt lgkmcnt(1)
v_add_f32 v{Z}, v{Z}, v{Z+2}
v_add_f32 v{Z+1}, v{Z+1}, v{Z+3}
s_waitcnt lgkmcnt(0)
v_add_f32 v{Z+4}, v{Z+4}, v{Z+6}
v_add_f32 v{Z+5}, v{Z+5}, v{Z+7}
v_add_f32 v{Z}, v{Z}, v{Z+4}
v_add_f32 v{Z+1}, v{Z+1}, v{Z+5}
v_fma_f32 v{Z+2}, v{Z}, s78, -v5
v_fma_f32 v{Z+3}, v{Z+1}, s78, -v5
v_exp_f32 v{Z+4}, v{Z+2}
v_exp_f32 v{Z+5}, v{Z+3}
v_max_f32 v{Z+2}, v{Z+2}, v{Z+3}
v_add_f32 v{Z+6}, v{Z+4}, v{Z+5}
v_cmp_nge_f32 vcc, {'-4.0' if G.diag & 32 else 's62'}, v{Z+2}
v_cndmask_b32 v{Z+4}, v{Z+4}, v{vD0}, s[76:77]
{dpt('v_add_f32', f'v{Z+6}', 0)}
v_cndmask_b32 v{Z+5}, v{Z+5}, v{vD1}, s[76:77]
s_cbranch_vccnz L_s_exact
{dpt('v_add_f32', f'v{Z+6}', 1)}
v_add_f32 v{Z+6}, v{Z+6}, v6
L_s_norm:
v_rcp_f32 v{Z+6}, v{Z+6}
s_nop 0
v_mul_f32 v{Z+4}, v{Z+4}, v{Z+6}
v_mul_f32 v{Z+5}, v{Z+5}, v{Z+6}
v_cvt_pk_bf16_f32 v{Z}, v{Z+4}, v{Z+5}
v_min_u32 v{Z}, -2, v{Z}
buffer_store_dword v{Z}, v{vLS}, {WS}, s65 offen LOCAL
""")
        def exact():
            a(f"""L_s_exact:
v_max_f32 v{Z+2}, v{Z}, v{Z+1}
s_nop 1
{dpt('v_max_f32', f'v{Z+2}', 0)}
s_nop 1
{dpt('v_max_f32', f'v{Z+2}', 1)}
v_mul_f32 v{Z+2}, s78, v{Z+2}
v_max_f32 v{Z+2}, v{Z+2}, v5
v_fma_f32 v{Z+4}, v{Z}, s78, -v{Z+2}
v_fma_f32 v{Z+5}, v{Z+1}, s78, -v{Z+2}
v_sub_f32 v{Z+3}, v5, v{Z+2}
v_exp_f32 v{Z+4}, v{Z+4}
v_exp_f32 v{Z+5}, v{Z+5}
v_exp_f32 v{Z+3}, v{Z+3}
v_add_f32 v{Z+6}, v{Z+4}, v{Z+5}
v_mul_f32 v{Z}, v{vD0}, v{Z+3}
v_mul_f32 v{Z+1}, v{vD1}, v{Z+3}
{dpt('v_add_f32', f'v{Z+6}', 0)}
v_cndmask_b32 v{Z+4}, v{Z+4}, v{Z}, s[76:77]
v_cndmask_b32 v{Z+5}, v{Z+5}, v{Z+1}, s[76:77]
{dpt('v_add_f32', f'v{Z+6}', 1)}
v_fmac_f32 v{Z+6}, v6, v{Z+3}
s_branch L_s_norm""")
        G.tick(5)
        a(f"""L_s_nolate:
s_barrier
v_mov_b32 v{X}, -1
v_mov_b32 v{X+1}, -1
ADV s56 s64 {L_LOC} 2
ADV s57 s65 {L_LOC} 2
buffer_store_dwordx2 v[{X}:{X+1}], v{vES}, {WS}, s56 offen LOCAL
buffer_store_dword v{X}, v{vLS}, {WS}, s57 offen LOCAL
buffer_store_dwordx4 v[{KH}:{KH+3}], v{vL16}, {WS}, s69 offen LOCAL
buffer_store_dwordx2 v[{KH+4}:{KH+5}], v{vKH}, {WS}, s70 offen LOCAL
s_add_u32 s73, {sSEG}, 2
s_min_u32 s73, s73, {NSEG}
s_waitcnt vmcnt(5)
v_cmp_gt_u32 vcc, {0 if G.diag & 2 else 's73'}, v2
s_cbranch_vccnz L_s_kwait
L_s_kok:
""")
        for t in ktl: a(t)
        a(f"""ADV s69 s69 {L_KM}
ADV s70 s70 {L_KM}
ADV s64 s64 {L_LOC}
ADV s65 s65 {L_LOC}
ADV s71 s71 {L_LOC}
""")
        G.flush(8, vt=(4, 7))
        G.stamp(sSEG, vt=(4, 7))
        if G.prof == 4:
            for k, sl in ((1, 11), (8, 12), (63, 13)):
                l = a.label('L_ds')
                a(f's_lshl_b32 s56, {sSEG}, 8\ns_add_u32 s56, s56, {sROLE}\ns_add_u32 s56, s56, {sW}\ns_cmp_eq_u32 s56, {k << 8}\ns_cbranch_scc0 {l}')
                G.dstamp(sl); a(f'{l}:')
        a(f's_add_u32 {sSEG}, {sSEG}, 1\ns_cmp_lt_u32 {sSEG}, {NSEG}\ns_cbranch_scc1 L_s_loop\ns_waitcnt vmcnt(0)')
        G.set_flag('s66', sSEG, 'v4', f'v{vZ}', 'LOCAL')
        G.stamp(3)
        a('s_branch L_end\nL_s_kwait:')
        G.wait_flags(f'v{vFL}', 'v2', 's73')
        a('s_branch L_s_kok')
        exact()
    G.two_flavours('s', main)

def roleV(G):
    a = G.a
    a('L_roleV:')
    if G.disabled('V'): return
    vT, vIDX, vG4, vG2, vL4, vL2, vA, vRES, vTW, vTW3, vL16, vZS, vA1, vA2, vA3 = range(8, 23)
    SEL = 0
    AB = 24
    AC = 56
    POL = 68
    X = 80
    SB = 88
    W0 = 104
    order = [(tau, t) for tau in range(2) for t in range(3)] + [(tau, t) for tau in range(2, 10) for t in range(2)] + [(tau, 2) for tau in range(2, 10)]
    lds_set = [order[n] for n in (5, 8, 11, 14, 17, 20, 23, 26, 29)]
    RESW = len(lds_set) * 2048
    RES, MST, TT = 0, 73728, 83968
    loc = {}; nr = 0
    wo = {}
    for t3 in range(3):
        for c in range(10): wo[t3, c] = W0 + 8 * nr; nr += 1
    for key in order:
        if key in lds_set: loc[key] = ('l', lds_set.index(key) * 2048)
        else: loc[key] = ('r', W0 + 8 * nr); nr += 1
    assert W0 + 8 * nr <= 512
    a(f'''
s_sub_u32 {sIDX}, {sROLE}, {R_V}
v_lshlrev_b32 v{vL16}, 4, v1
v_and_b32 v4, 31, v1
v_lshlrev_b32 v4, 4, v4
v_lshrrev_b32 v5, 5, v1
v_lshl_add_u32 v{vZS}, v5, 13, v4
s_mul_i32 s64, {sW}, 81920
s_lshr_b32 s56, {sIDX}, 2
s_lshl_b32 s56, s56, 10
s_add_u32 s64, s64, s56
s_and_b32 s56, {sIDX}, 1
s_lshl_b32 s56, s56, 9
s_add_u32 s64, s64, s56
s_and_b32 s56, {sIDX}, 2
s_lshl_b32 s56, s56, 2
s_add_u32 s64, s64, s56
s_add_u32 s64, s64, {LZ}
v_mov_b32 v4, -1
v_mov_b32 v5, -1
''')
    for extra in (0, 1 << L_LOC):
        for p in range(5):
            a(f's_add_u32 s56, s64, {extra + p * 16384}\nbuffer_store_dwordx2 v[4:5], v{vZS}, {WS}, s56 offen sc1')
    G.arrive()
    G.srd(12, P_WO, 32 * 245760); G.srd(16, P_WV, 640 * 12288)
    a(f'''s_mul_i32 s57, {sW}, 320
v_lshlrev_b32 v13, 4, v1
v_and_b32 v4, 1, v2
v_lshlrev_b32 v4, 5, v4
v_lshrrev_b32 v5, 3, v3
v_lshl_add_u32 v4, v5, 4, v4
v_lshrrev_b32 v5, 1, v2
v_lshl_add_u32 v4, v5, 2, v4
v_bfe_u32 v5, v3, 2, 1
v_add_u32 v4, v4, v5
v_mul_u32_u24 v4, 1280, v4
v_and_b32 v5, 3, v3
v_lshl_add_u32 v4, v5, 3, v4
v_add_u32 v29, s57, v4''')
    def consume(b):
        for c in range(10):
            for q2 in range(4):
                a(f'ds_read_b64_tr_b16 {vr(wo[b, c] + 2 * q2, 2)}, v29 offset:{(8 * (q2 >> 1) + 2 * (q2 & 1)) * 1280 + c * 32}')
    G.wo_load(64, 2, 'v29', consume)
    a(f's_mul_i32 s71, {sW}, {RESW}\nv_add_u32 v{vRES}, s71, v{vL16}\nv_mov_b32 v0, v{vZS}')
    head_slab_load(G, [('s[16:19]', lambda t, tl: loc[t, tl])], 19, vRES, 32)
    a(f'v_mov_b32 v{vZS}, v0')
    G.await_all()
    a('s_barrier')
    idx_setup(G, vIDX)
    mpoll_setup(G, vG4, vG2, vL4, vL2, sSELV, MST)
    a(f'''
v_add_u32 v{vA}, {MST}, v{vL16}
s_lshr_b32 s56, {sW}, 1
s_lshl_b32 s57, s56, 11
s_and_b32 s58, {sW}, 1
s_lshl_b32 s59, s58, 3
s_add_u32 s57, s57, s59
s_add_u32 s57, s57, {TT}
v_add_u32 v{vTW}, s57, v{vL16}
s_lshl_b32 s56, s56, 3
s_add_u32 s56, s56, {TT + 1024}
v_add_u32 v{vTW3}, s56, v{vL16}
v_lshrrev_b32 v4, 3, v3
v_cmp_eq_u32 s[76:77], s58, v4
s_lshr_b32 s56, {sIDX}, 3
s_lshl_b32 s79, s56, 7
s_add_u32 s79, s79, {HC}
s_lshl_b32 s71, s56, 14
s_add_u32 s71, s71, {LM}
v_mov_b32 v23, 0
s_mov_b32 {sSEG}, 0
v_and_b32 v4, 1, v2
v_lshlrev_b32 v4, 2, v4
v_sub_u32 v5, v3, v4
v_mov_b32 v6, 0x3f80
v_mov_b32 v7, 0x3f800000
''')
    for hh in range(4):
        k0 = 2 * (hh & 1) + 8 * (hh >> 1)
        a(f'''v_cmp_eq_u32 vcc, {k0}, v5
v_cmp_eq_u32 s[56:57], {k0 + 1}, v5
s_nop 1
v_cndmask_b32 v{SEL + hh}, 0, v6, vcc
v_cndmask_b32 v{SEL + hh}, v{SEL + hh}, v7, s[56:57]''')
    a(f'''s_lshl_b32 s56, {sIDX}, 2
s_add_u32 s56, s56, {sW}
s_mul_i32 s65, s56, 10240
s_add_u32 s65, s65, {VO + 2 * L_VO}
s_mul_i32 s66, s56, 3072
s_add_u32 s66, s66, {QT + QKV_SZ + L_Q}''')
    nl = len(lds_set)
    a(f'v_xor_b32 v{vA1}, 2048, v{vL4}\nv_xor_b32 v{vA2}, 4096, v{vL4}\nv_xor_b32 v{vA3}, 6144, v{vL4}')
    def main():
        a('L_v_loop:')
        G.tick(0)
        q = LQ(a)
        def wread(i):
            b = SB + (i % 2) * 8
            q.op(f'ds_read_b128 {vr(b, 4)}, v{vRES} offset:{i * 2048}')
            q.op(f'ds_read_b128 {vr(b + 4, 4)}, v{vRES} offset:{i * 2048 + 1024}', ('w', i))
        wread(0); wread(1)
        for i in range(12): a(f'v_mov_b32 v{AC + i}, 0')
        q.drain()
        def mload(b):
            a(f"""buffer_load_dwordx4 v[{b}:{b+3}], v{vG4}, {WS}, s71 offen sc1
buffer_load_dwordx4 v[{b+4}:{b+7}], v{vG4}, {WS}, s71 offen offset:1024 sc1
buffer_load_dwordx2 v[{b+8}:{b+9}], v{vG2}, {WS}, s71 offen sc1""")
        def mwrite(b):
            a(f"""ds_write_b128 v{vL4}, v[{b}:{b+3}]
ds_write_b128 v{vL4}, v[{b+4}:{b+7}] offset:1024
ds_write_b64 v{vL2}, v[{b+8}:{b+9}]""")
        G.wait_flags('v23', 'v4', sSEG, sleep=0, soff='s79')
        a(f's_mov_b32 {sSPIN}, {SPIN}\ns_branch L_v_poll\nL_v_poll_z:\ns_nop 7')
        for i in range(12): a(f'v_mov_b32 v{AC + i}, 0')
        a('L_v_poll:')
        mload(POL)
        b = POL
        a(f's_sub_u32 {sSPIN}, {sSPIN}, 1\ns_cbranch_scc1 L_fail\ns_waitcnt vmcnt(0)\nv_max3_u32 v{vT}, v{b+3}, v{b+7}, v{b+9}\nv_cmp_eq_u32 vcc, -1, v{vT}\ns_cbranch_vccnz L_v_poll')
        G.tick(1)
        sched = {}
        def at(n, f): sched.setdefault(n, []).append((lambda: a(f)) if isinstance(f, str) else f)
        cv = lambda d, s_: f'v_cvt_pk_bf16_f32 v{d}, v{s_}, v{s_+1}'
        sel = f'v[{SEL}:{SEL+3}]'
        wr = [f'ds_write_b128 v{vL4}, v[{b}:{b+3}]', f'ds_write_b128 v{vL4}, v[{b+4}:{b+7}] offset:1024', f'ds_write_b64 v{vL2}, v[{b+8}:{b+9}]']
        ck = [f'v_max3_u32 v{vT}, v{b}, v{b+1}, v{b+2}', f'v_max3_u32 v{vT}, v{vT}, v{b+4}, v{b+5}', f'v_max3_u32 v{vT}, v{vT}, v{b+6}, v{b+8}', f'v_cmp_eq_u32 vcc, -1, v{vT}']
        def ard(t):
            ad, off = ((vA1, vA2, vA3)[(t >> 1) - 1], (t & 1) * 1024) if t < 8 else (vA, t * 1024)
            q.op(f'ds_read_b128 {vr(AB + (t - 2) * 4, 4)}, v{ad} offset:{off}', ('a', t))
        for n in range(3): at(n, lambda n=n: q.op(wr[n], 'mw'))
        for n in range(4): at(n, ck[n])
        at(4, 's_cbranch_vccnz L_v_poll_z')
        at(4, lambda: (q.need('mw'), a('s_barrier'), ard(2), ard(3), ard(4)))
        for t in range(5, 10): at(2 * t - 4, lambda t=t: ard(t))
        grp = [(68, 72), (56, 60), (40, 44), (48, 52), (64, 36)]
        zer = lambda r: f'v_mov_b32 v{r}, 0'
        for i in range(8): at(9 + i, zer(68 + i))
        at(24, cv(X, AC)); at(24, cv(X + 1, AC + 2)); at(24, cv(X + 2, AC + 4)); at(24, cv(X + 3, AC + 6))
        at(25, f's_nop 0\n{MF32} v[{X+4}:{X+7}], v[{X}:{X+3}], {sel}, 0')
        for i in range(3): at(25 + i, zer(56 + i))
        at(28, cv(X, X + 4)); at(28, cv(X + 1, X + 6)); at(28, lambda: q.op(f'ds_write_b64 v{vTW}, v[{X}:{X+1}]', 't1'))
        def mid():
            for i in range(3, 8): a(zer(56 + i))
            a(zer(40) + '\n' + zer(41) + '\n' + zer(42))
            a(cv(4, AC + 8) + '\n' + cv(5, AC + 10) + '\n' + cv(6, AC + 8) + '\n' + cv(7, AC + 10))
            q.need('t1'); a('s_barrier')
            G.tick(2)
            a(f'{MF32} v[{X+4}:{X+7}], v[4:7], {sel}, 0')
            q.op(f'ds_read_b128 v[{AB}:{AB+3}], v{vA} offset:{TT - MST}', ('m', 0))
            q.op(f'ds_read_b128 v[{AB+4}:{AB+7}], v{vA} offset:{TT - MST + 2048}', ('m', 2))
            for i in range(3, 8): a(zer(40 + i))
            a('s_nop 0\n' + cv(X + 2, X + 4) + '\n' + cv(X + 3, X + 6) + '\ns_mov_b64 exec, s[76:77]')
            q.op(f'ds_write_b64 v{vTW3}, v[{X+2}:{X+3}]', 't2')
            a('s_mov_b64 exec, -1')
        at(29, mid)
        vm = {0: AB, 2: AB + 4, 1: AB + 8}
        o2 = [(p, t3) for p in range(3) for t3 in (0, 2)] + [(p, 1) for p in range(3)] + [(p, t3) for p in (3, 4) for t3 in range(3)]
        at(35, lambda: (q.need('t2'), a('s_barrier'), q.op(f'ds_read_b128 v[{AB+8}:{AB+11}], v{vA} offset:{TT - MST + 1024}', ('m', 1))))
        for i, r in enumerate(list(range(48, 56)) + list(range(64, 68)) + list(range(36, 40))): at(30 + i, zer(r))
        last = {p: 30 + 2 * k + 1 for k, (p, t3) in enumerate(o2)}
        n0 = 0
        for p in range(5):
            A0, A1 = grp[p]; T_ = (X, SB)[p & 1]; F = SB + 4 + (p & 1) * 4; d = SB + 12 + (p & 1) * 2
            n0 = max(last[p] + 3, n0 + 3)
            at(n0, cv(T_, A0)); at(n0, cv(T_ + 1, A0 + 2)); at(n0 + 1, cv(T_ + 2, A1)); at(n0 + 1, cv(T_ + 3, A1 + 2))
            at(n0 + 2, f's_nop 0\n{MF32} v[{F}:{F+3}], {sel}, v[{T_}:{T_+3}], 0')
            at(n0 + 5, cv(d, F)); at(n0 + 5, cv(d + 1, F + 2))
            at(n0 + 5, f's_add_u32 s56, s64, {p * 16384}\nbuffer_store_dwordx2 v[{d}:{d+1}], v{vZS}, {WS}, s56 offen LOCAL')
        for n in range(60):
            if n < 30:
                tau, tl = order[n]
                kind, d = loc[tau, tl]
                if kind == 'l':
                    i = d // 2048; d = SB + (i % 2) * 8; q.need(('w', i))
                if tau < 2: A = POL + 4 * tau
                else:
                    q.need(('a', tau)); A = AB + (tau - 2) * 4
                a(f'{SMF} {vr(AC + 4 * tl, 4)}, {vr(A, 4)}, {vr(d, 8)}, v{vIDX}')
                if kind == 'l' and i + 2 < nl: wread(i + 2)
            else:
                p, t3 = o2[(n - 30) >> 1]; qq = n & 1
                q.need(('m', t3))
                a(f'{SMF} {vr(grp[p][qq], 4)}, {vr(vm[t3], 4)}, {vr(wo[t3, 2 * p + qq], 8)}, v{vIDX}')
            for f in sched.pop(n, []): f()
        for n in range(60, 72):
            a('s_nop 2')
            for f in sched.pop(n, []): f()
            if not sched: break
        G.tick(3)
        a('v_mov_b32 v4, -1\nv_mov_b32 v5, -1')
        a(f'ADV s57 s64 {L_LOC} 2')
        for p in range(5):
            a(f's_add_u32 s56, s57, {p * 16384}\nbuffer_store_dwordx2 v[4:5], v{vZS}, {WS}, s56 offen LOCAL')
        G.flush(4, vt=(4, 5))
        G.stamp(sSEG, vt=(4, 5))
        a(f'''ADV s64 s64 {L_LOC}
ADV s71 s71 {L_LOC}
s_add_u32 {sSEG}, {sSEG}, 1
s_cmp_lt_u32 {sSEG}, {NSEG}
s_cbranch_scc1 L_v_loop''')
        G.stamp(3)
        a('s_branch L_end')
    G.two_flavours('v', main)


def roleT(G):
    a = G.a
    a('L_roleT:')
    if G.disabled('T'): return
    vZ, vL16, vFQ, vFS, vPM, vNI, vPT = 8, 9, 10, 11, 12, 13, 14
    DA, DB, DM = 16, 20, 24
    X = 28
    MB_ = 64
    FRG = 256
    a(f"""
s_sub_u32 {sIDX}, {sROLE}, {R_T}
s_lshl_b32 s66, {sIDX}, 2
s_add_u32 s66, s66, {sW}
s_lshr_b32 s64, s66, 1
s_and_b32 s65, {sW}, 1
s_lshl_b32 s66, s66, 7
s_add_u32 s66, s66, {FL + 128 * F_T}
v_mov_b32 v{vZ}, 0
""")
    G.set_flag('s66', 0, 'v4', f'v{vZ}')
    if G.probe:
        a(f'''
s_and_b32 s57, {sW}, 1
s_lshl_b32 s56, s57, 13
s_lshl_b32 s58, s64, 8
s_add_u32 s56, s56, s58
s_add_u32 s56, s56, {PG_PROBE}
s_getreg_b32 s58, hwreg(HW_REG_XCC_ID)
s_bfe_u32 s58, s58, 0x10002
s_xor_b32 s57, s57, s58
s_lshl_b32 s57, s57, 2
s_mov_b32 s58, 65535
s_mov_b32 s59, 0
s_waitcnt vmcnt(0)
L_t_probe:
s_memtime s[68:69]
s_waitcnt lgkmcnt(0)
buffer_store_dword v{vZ}, v{vZ}, {WS}, s56 offen sc1
s_waitcnt vmcnt(0)
s_memtime s[70:71]
s_waitcnt lgkmcnt(0)
s_sub_u32 s67, s70, s68
s_min_u32 s58, s58, s67
s_add_u32 s59, s59, 1
s_cmp_lt_u32 s59, 5
s_cbranch_scc1 L_t_probe
s_sub_u32 s58, 65535, s58
v_mov_b32 v4, s58
s_mov_b64 exec, 1
buffer_atomic_umax v4, v{vZ}, {DBG}, s57 offen offset:16
s_mov_b64 exec, -1
''')
    G.arrive()
    if G.diag & 2:
        a('s_branch L_end'); return
    G.await_all()
    a(f"""
v_lshlrev_b32 v{vL16}, 4, v1
v_min_u32 v4, 5, v1
v_add_u32 v5, 93, v4
v_cmp_gt_u32 vcc, 3, v4
s_mul_i32 s56, s64, 3
s_add_u32 s56, s56, {F_XW + FL // 128}
v_cndmask_b32 v4, v5, v4, vcc
v_add_lshl_u32 v{vFQ}, v4, s56, 7
v_and_b32 v4, 3, v1
s_lshl_b32 s56, s64, 2
s_add_u32 s56, s56, {F_S + FL // 128}
v_add_lshl_u32 v{vFS}, v4, s56, 7
v_lshrrev_b32 v4, 1, v2
v_lshl_add_u32 v4, v4, 4, v3
v_lshlrev_b32 v4, 4, v4
v_and_b32 v5, 1, v2
v_lshl_add_u32 v{vPM}, v5, 2, v4
v_mov_b32 v{vNI}, 0xff800000
s_mul_i32 s67, s64, 12288
s_add_u32 s67, s67, {QT}
s_lshl_b32 s74, s65, 10
s_mul_i32 s68, s64, 6144
s_add_u32 s68, s68, {KM}
s_and_b32 s59, s64, 7
s_lshl_b32 s69, s59, 10
s_lshr_b32 s56, s59, 1
s_lshl_b32 s56, s56, 10
s_and_b32 s57, s59, 1
s_lshl_b32 s58, s57, 3
s_add_u32 s56, s56, s58
s_add_u32 s56, s56, 8192
s_cmp_eq_u32 s65, 0
s_cselect_b32 s69, s56, s69
s_lshl_b32 s70, s65, 11
s_lshr_b32 s56, s59, 2
s_lshl_b32 s56, s56, 10
s_add_u32 s70, s70, s56
s_lshl_b32 s57, s57, 9
s_add_u32 s70, s70, s57
s_bfe_u32 s56, s59, 0x10001
s_lshl_b32 s56, s56, 3
s_add_u32 s70, s70, s56
s_add_u32 s70, s70, 12288
s_lshr_b32 s56, s64, 3
s_lshl_b32 s56, s56, 14
s_add_u32 s56, s56, {PT}
s_add_u32 s69, s69, s56
s_add_u32 s70, s70, s56
s_mov_b32 s78, {f2u(C_SCALE):#x}
v_lshlrev_b32 v4, 2, v2
s_lshl_b32 s56, s65, 4
v_add_u32 v6, s56, v3
""")
    for r in range(4):
        a(f'v_add_u32 v5, {r}, v4\nv_cmp_le_u32 s[{24 + 2*r}:{25 + 2*r}], v5, v6\nv_add_u32 v5, {16 + r}, v4\nv_cmp_le_u32 s[{32 + 2*r}:{33 + 2*r}], v5, v6')
    a(f's_mov_b32 {sSEG}, 0\ns_mov_b32 s73, 1')
    fr = lambda buf, kind, eb: FRG + 72 * buf + (kind * 6 + eb) * 4
    def qkload(buf):
        l = a.label('L_t_skip')
        for kind in range(3):
            if kind == 2: a(f's_cmp_eq_u32 s65, 0\ns_cbranch_scc1 {l}')
            for j in range(3):
                if kind == 0: a(f's_add_u32 s56, s67, s74\ns_add_u32 s56, s56, {j * 4096}')
                else: a(f's_add_u32 s56, s67, {QKV_SZ + j * 4096 + (kind - 1) * 1024}')
                for i in range(2):
                    a(f'buffer_load_dwordx4 {vr(fr(buf, kind, 2 * j + i), 4)}, v{vL16}, {WS}, s56 offen offset:{i * 2048} sc1')
        a(f'{l}:\nADV s67 s67 {L_Q}')
    G.wait_flags(f'v{vFQ}', 'v4', 's73')
    qkload(0)
    def main():
        a('L_t_loop:')
        for buf in range(2):
            G.tick(0)
            a(f's_add_u32 s73, {sSEG}, 2\ns_min_u32 s73, s73, {NSEG}\ns_waitcnt vmcnt(0)')
            G.set_flag('s66', sSEG, 'v4', f'v{vZ}', 'LOCAL')
            G.wait_flags(f'v{vFQ}', 'v4', 's73')
            qkload(1 - buf)
            a(f's_add_u32 s73, {sSEG}, 1')
            G.tick(1)
            for eb in range(6):
                for D, kind in ((DA, 1), (DB, 2)):
                    a(f'{MF32} {vr(D, 4)}, {vr(fr(buf, kind, eb), 4)}, {vr(fr(buf, 0, eb), 4)}, {"0" if eb == 0 else vr(D, 4)}')
            G.wait_flags(f'v{vFS}', 'v4', 's73', sleep=1)
            G.tick(2)
            a('s_add_u32 s56, s68, 4096')
            for i in range(6):
                a(f'buffer_load_dwordx4 {vr(MB_ + 4 * i, 4)}, v{vL16}, {WS}, {"s68" if i < 4 else "s56"} offen offset:{(i & 3) * 1024} sc1')
            for r in range(4):
                a(f'v_cndmask_b32 v{DA + r}, v{vNI}, v{DA + r}, s[{24 + 2*r}:{25 + 2*r}]\nv_cndmask_b32 v{DB + r}, v{vNI}, v{DB + r}, s[{32 + 2*r}:{33 + 2*r}]')
            M = X
            a(f"""v_max3_f32 v{M}, v{DA}, v{DA+1}, v{DA+2}
v_max3_f32 v{M}, v{M}, v{DA+3}, v{DB}
v_max3_f32 v{M}, v{M}, v{DB+1}, v{DB+2}
v_max_f32 v{M}, v{M}, v{DB+3}
""")
            for eb in range(6):
                a(f's_waitcnt vmcnt({5 - eb})\n{MF32} {vr(DM, 4)}, {vr(MB_ + 4 * eb, 4)}, {vr(fr(buf, 0, eb), 4)}, {"0" if eb == 0 else vr(DM, 4)}')
            a(f's_nop 7\nv_max3_f32 v{M}, v{M}, v{DM}, v{DM+1}')
            def allred(op, A):
                for sw in ('v_permlane16_swap_b32', 'v_permlane32_swap_b32'):
                    a(f'v_mov_b32 v{X+2}, v{A}\ns_nop 1\n{sw} v{A}, v{X+2}\n{op} v{A}, v{A}, v{X+2}')
            allred('v_max_f32', M)
            a(f'v_mul_f32 v{M}, s78, v{M}')
            vals = [DA + r for r in range(4)] + [DB + r for r in range(4)] + [DM, DM + 1]
            for v in vals: a(f'v_fma_f32 v{v}, v{v}, s78, -v{M}')
            for v in vals: a(f'v_exp_f32 v{v}, v{v}')
            L = X + 1
            a(f'v_add_f32 v{L}, v{vals[0]}, v{vals[1]}')
            for v in vals[2:]: a(f'v_add_f32 v{L}, v{L}, v{v}')
            allred('v_add_f32', L)
            a(f'v_rcp_f32 v{L}, v{L}\ns_cmp_eq_u32 s65, 0')
            for v in vals: a(f'v_mul_f32 v{v}, v{v}, v{L}')
            O1 = 32
            l = a.label('L_t_st')
            for i in range(5): a(f'v_cvt_pk_bf16_f32 v{O1 + i}, v{vals[2*i]}, v{vals[2*i+1]}')
            a(f"""buffer_store_dword v{O1+4}, v{vPM}, {WS}, s70 offen LOCAL
s_cbranch_scc1 {l}
buffer_store_dwordx4 v[{O1}:{O1+3}], v{vL16}, {WS}, s69 offen LOCAL
s_branch {l}_e
{l}:
buffer_store_dwordx2 v[{O1}:{O1+1}], v{vL16}, {WS}, s69 offen LOCAL
{l}_e:
ADV s68 s68 {L_KM}
ADV s69 s69 {L_PT}
ADV s70 s70 {L_PT}
""")
            G.tick(3)
            G.flush(4); G.stamp(sSEG)
            a(f's_add_u32 {sSEG}, {sSEG}, 1')
        a(f's_cmp_lt_u32 {sSEG}, {NSEG}\ns_cbranch_scc1 L_t_loop\ns_waitcnt vmcnt(0)')
        G.set_flag('s66', sSEG, 'v4', f'v{vZ}', 'LOCAL')
        G.stamp(3)
        a('s_branch L_end')
    G.two_flavours('t', main)

def roleO(G):
    a = G.a
    a(f'L_roleO:\ns_lshl_b32 s56, {sROLE}, 2\ns_add_u32 s56, s56, {sW}\ns_cmp_eq_u32 s56, {4 * R_O}\ns_cselect_b32 s56, 0, 0x40000000\nv_mov_b32 v12, s56\ns_mov_b32 s72, {FL + 128 * F_O}')
    G.set_flag('s72', 0, 'v4', 'v12')
    G.arrive()
    a(f's_sub_u32 {sIDX}, {sROLE}, {R_O}\ns_cmp_lt_u32 {sIDX}, {0 if G.diag & 2 else 10}\ns_cbranch_scc0 L_end')
    G.srd(12, P_X, 2048 * 1280); G.srd(20, P_OUT, 2048 * 1280)
    G.await_all()
    vXR, vOUT, vFB, vFL = 8, 9, 10, 11
    B = 16
    a(f"""
v_and_b32 v4, 31, v1
v_lshlrev_b32 v4, 4, v4
v_lshrrev_b32 v5, 5, v1
v_lshl_add_u32 v{vXR}, v5, 13, v4
v_and_b32 v6, 7, v1
v_bfe_u32 v7, v1, 3, 2
v_mul_u32_u24 v{vOUT}, 1280, v6
v_lshl_add_u32 v{vOUT}, v7, 3, v{vOUT}
v_lshl_add_u32 v{vOUT}, v5, 5, v{vOUT}
v_lshlrev_b32 v{vFB}, 10, v5
v_lshl_add_u32 v{vFB}, v7, 7, v{vFB}
v_lshl_add_u32 v{vFB}, v6, 3, v{vFB}
s_lshl_b32 s64, {sIDX}, 15
s_lshl_b32 s56, {sW}, 9
s_add_u32 s64, s64, s56
s_add_u32 s64, s64, {XO}
s_lshl_b32 s65, {sIDX}, 12
s_lshr_b32 s57, {sW}, 1
s_lshl_b32 s56, s57, 9
s_add_u32 s65, s65, s56
s_and_b32 s56, {sW}, 1
s_lshl_b32 s56, s56, 6
s_add_u32 s65, s65, s56
s_add_u32 s65, s65, {FB}
s_mul_i32 s66, {sW}, 10240
s_lshl_b32 s56, {sIDX}, 7
s_add_u32 s66, s66, s56
v_and_b32 v4, 3, v1
v_mul_u32_u24 v5, 10, v4
s_add_u32 s56, {sIDX}, {PG_CP // 128}
v_add_lshl_u32 v5, v5, s56, 7
v_add_u32 v5, {sSELM}, v5
s_lshl_b32 s56, {sIDX}, 3
s_add_u32 s56, s56, s57
v_lshl_add_u32 v4, v4, 1, s56
v_mul_u32_u24 v6, 205, v4
v_lshrrev_b32 v6, 11, v6
v_mul_u32_u24 v7, 10, v6
v_sub_u32 v7, v4, v7
v_and_b32 v7, 3, v7
v_lshl_add_u32 v6, v6, 2, v7
v_add_u32 v6, {F_FD + FL // 128}, v6
v_lshlrev_b32 v6, 7, v6
v_cmp_gt_u32 vcc, 4, v1
s_mov_b32 {sSEG}, 1
s_nop 0
v_cndmask_b32 v{vFL}, v6, v5, vcc
L_o_loop:
buffer_load_dwordx2 v[{B+32}:{B+33}], v{vOUT}, {SA}, s66 offen
buffer_load_dwordx2 v[{B+34}:{B+35}], v{vOUT}, {SA}, s66 offen offset:64
""")
    G.wait_flags(f'v{vFL}', 'v4', sSEG, sleep=G.fsl)
    G.set_flag('s72', sSEG, 'v4', 'v12')
    for h in range(2):
        for xx in range(2):
            a(f's_add_u32 s56, s64, {h * 16384 + xx * 4096}')
            for k in range(2):
                r = B + h * 16 + (xx * 2 + k) * 4
                a(f'buffer_load_dwordx4 v[{r}:{r+3}], v{vXR}, {WS}, s56 offen offset:{k * 2048} sc1')
        a(f'buffer_load_dwordx2 v[{B+36+2*h}:{B+37+2*h}], v{vFB}, {WS}, s65 offen offset:{h * 2048} sc1')
    for h in range(2):
        r = B + h * 16; T_ = B + 40
        a(f's_waitcnt vmcnt({5 if h == 0 else 1})')
        for i, src in enumerate((B + 32 + 2*h, B + 33 + 2*h, B + 36 + 2*h, B + 37 + 2*h)):
            a(f'v_lshlrev_b32 v{T_ + 2*i}, 16, v{src}\nv_and_b32 v{T_ + 2*i + 1}, 0xffff0000, v{src}')
        for i in range(4):
            a(f'v_add_f32 v{r+i}, v{r+i}, v{r+4+i}\nv_add_f32 v{r+8+i}, v{r+8+i}, v{r+12+i}\nv_add_f32 v{T_+i}, v{T_+i}, v{T_+4+i}\nv_add_f32 v{r+i}, v{r+i}, v{r+8+i}\nv_add_f32 v{r+i}, v{r+i}, v{T_+i}')
        a(f'v_cvt_pk_bf16_f32 v{r+4}, v{r}, v{r+1}\nv_cvt_pk_bf16_f32 v{r+5}, v{r+2}, v{r+3}\nbuffer_store_dwordx2 v[{r+4}:{r+5}], v{vOUT}, {SC}, s66 offen offset:{64 * h}')
    a(f'ADV s64 s64 {L_XO}\nADV s65 s65 {L_FB}\ns_add_u32 s66, s66, 40960\ns_add_u32 {sSEG}, {sSEG}, 1\ns_cmp_le_u32 {sSEG}, {NSEG}\ns_cbranch_scc1 L_o_loop')
    G.dstamp(9)
    G.stamp(3)
    a('s_branch L_end')

def emit(G):
    from roleC import roleC
    roleS(G); roleC(G); roleV(G); roleT(G); roleO(G)
```

```python
import sys, math
from asmlib import Asm, vr

NAME = 'parallel_sum__memory_aug_recurrent_mem_tr__glu_gated_geglu__prompt'
KN = NAME + '_kernel'
MB = 1 << 20
import os
XM, L_XM = 0, 18
PG_PROBE = 196608
PG_CP = 212992
LOC, L_LOC = 20 * MB, 19
O1 = int(os.environ.get('O1', 0)); O2 = int(os.environ.get('O2', 0))
LM, LE, LL, LZ = LOC + O1, LOC + 65536 + O1, LOC + 81920 + O1, LOC + 131072
HC = LOC + 98304 + O1
FL    = 18 * MB + O2
XN    = 22 * MB
FB, L_FB = 25 * MB, 40960
PT, L_PT = LOC + 458752, L_LOC
HT, L_HT = 33 * MB, 98304
KM, L_KM = 40 * MB, 18
XO, L_XO = 54 * MB, 327680
QT, L_Q = 84 * MB, 393216
QKV_SZ = 24 * MB
VO, L_VO = 157 * MB, 1310720
VNEAR = int(os.environ.get('VNEAR', 0))
if VNEAR:
    VO, L_VO, QT, XO = 128 * MB, 22, 54 * MB, 196 * MB
PROF  = 240 * MB
GATE = int(os.environ.get('GATE', 13))
WS_SIZE = 256 * MB
F_XW, F_OT, F_FD, F_T, F_S, F_O = 0, 384, 512, 576, 640, 768
R_S, R_C, R_V, R_T, R_O, R_FD, R_OT, R_XW = 0, 32, 72, 104, 120, 132, 140, 172
def role_table():
    t = [[] for _ in range(8)]
    for x in range(4):
        t[x] += [R_S + 8 * x + j for j in range(8)] + [R_V + 8 * x + j for j in range(8)] + [R_T + 4 * x + j for j in range(4)]
        t[x] += [R_C + 10 * x + j for j in range(10)] + [R_O + 2 * x + j for j in range(2)]
    for x in range(4):
        t[4 + x] += [R_OT + 8 * x + j for j in range(8)]
    t[4] += [R_FD + j for j in range(8)]
    xw = list(range(R_XW, 256)) + [R_O + 8 + j for j in range(4)]
    x = 0
    while xw:
        while len(t[4 + x]) >= 32: x = (x + 1) % 4
        t[4 + x] += xw[:4]; xw = xw[4:]; x = (x + 1) % 4
    flat = sum(t, [])
    assert sorted(flat) == list(range(256)) and all(len(r) == 32 for r in t)
    return flat
NSEG = 64
SPIN = 400000
WS, DBG, SA, SB, SC = 's[4:7]', 's[8:11]', 's[12:15]', 's[16:19]', 's[20:23]'
P_X, P_MEM, P_WQ, P_WK, P_WV, P_WO, P_G, P_U, P_D, P_OUT = 24, 26, 28, 30, 32, 34, 40, 42, 44, 46
sROLE, sW, sIDX, sSEG = 's52', 's53', 's54', 's55'
sSELM = sSELV = sSELE = sSELL = 's60'
sSPIN = 's96'
sSLOW = 's3'
C_SCALE = 192 ** -0.5 * math.log2(math.e)
import struct
def f2u(f): return struct.unpack('<I', struct.pack('<f', f))[0]

class VQ:
    def __init__(self, G): self.G = G; self.n = 0; self.tag = {}
    def op(self, ins, tag=None, n=1):
        self.G.a(ins); self.n += n
        if tag is not None: self.tag[tag] = self.n
    def need(self, tag):
        if tag in self.tag: self.G.a(f's_waitcnt vmcnt({min(63, self.n - self.tag[tag])})')

class Gen:
    def __init__(self, enable=('S','C','V','T','O','FD','OT','XW'), sel=0, place=1, prof=0, probe=1, diag=0, slp=1, rt=0, zpos=0, hs=14, hc=1, pf=0, hp=1, sb1=5, slow=0, xd=0, lser=1, psplit=20, vof=1, tch=0, nt=0, late=0, mpipe=1, b2=48, early=0, kfirst=1, cpf=1, pbar=0, fsl=4, vsl=0, vdl=0, ssl=0, nanck=0, k2=None, ctch=1, warm=1):
        self.a = Asm(); self.cold = []; self.enable = set(enable); self.sel = sel; self.place = place; self.prof = prof; self.probe = probe; self.diag = diag; self.slp = slp; self.rt = rt; self.zpos = zpos; self.hs = hs; self.hc = hc; self.pf = pf; self.hp = hp; self.sb1 = sb1; self.slow = slow; self.xd = xd; self.lser = lser; self.psplit = psplit; self.vof = vof; self.tch = tch; self.nt = nt; self.late = late; self.mpipe = mpipe; self.b2 = b2; self.early = early; self.kfirst = kfirst; self.cpf = cpf; self.pbar = pbar; self.fsl = fsl; self.vsl = vsl; self.vdl = vdl; self.ssl = ssl; self.nanck = nanck; self.k2 = k2; self.ctch = ctch; self.warm = warm

    def two_flavours(self, name, body):
        import re
        a = self.a
        a(f's_cmp_eq_u32 {sSLOW}, 0\ns_cbranch_scc0 L_{name}_slow')
        keep = a.lines; a.lines = []
        body()
        txt = a.lines; a.lines = keep
        labels = [l[:-1] for l in txt if l.endswith(':')]
        a.lines += [l.replace(' LOCAL', '') for l in txt]
        pat = re.compile(r'\b(' + '|'.join(map(re.escape, labels)) + r')\b')
        self.cold += [f'L_{name}_slow:'] + [pat.sub(lambda m: m.group(1) + '_w', l).replace(' LOCAL', ' sc1') for l in txt]

    def loop2(self, body):
        keep = self.a.lines; self.a.lines = []
        body(); self.a.lines = keep
        body()

    def win(self, dst, src, add=0):
        return (f's_add_u32 {dst}, {src}, {add}\ns_lshr_b32 s97, {dst}, 8\ns_xor_b32 s97, s97, {sSELM}\ns_and_b32 s97, s97, 8192\ns_add_u32 {dst}, {dst}, s97')

    def srd(self, dst, ptr, size):
        a = self.a
        a(f's_mov_b32 s{dst}, s{ptr}\ns_mov_b32 s{dst+1}, s{ptr+1}\ns_mov_b32 s{dst+2}, {size}\ns_mov_b32 s{dst+3}, 0x20000')

    def prologue(self):
        a = self.a
        a(f'''
s_cmp_ge_u32 s2, 256
s_cbranch_scc1 L_end
s_load_dwordx16 s[24:39], s[0:1], 0
s_load_dwordx8 s[40:47], s[0:1], 64
s_load_dwordx4 s[48:51], s[0:1], 96
v_and_b32 v1, 63, v0
v_lshrrev_b32 v4, 6, v0
v_lshrrev_b32 v2, 4, v1
v_readfirstlane_b32 {sW}, v4
v_and_b32 v3, 15, v1
s_getreg_b32 s56, hwreg(HW_REG_XCC_ID)
''')
        if self.cpf:
            a(f'''s_getpc_b64 s[58:59]
L_pc0:
s_lshr_b32 s57, s2, 3
s_lshl_b32 s57, s57, 5
v_and_b32 v5, 31, v0
v_add_lshl_u32 v5, v5, s57, 7
v_min_u32 v5, L_hot_end - L_pc0, v5
global_load_dword v253, v5, s[58:59]''')
        a('s_waitcnt lgkmcnt(0)')
        self.srd(4, 50, WS_SIZE); self.srd(8, 48, 256)
        a(f's_mov_b32 {sSELM}, {self.sel}')
        if self.prof == 4:
            a(f's_and_b32 s57, s2, 31\ns_add_u32 s57, s57, {sW}\ns_cmp_eq_u32 s57, 0\ns_cbranch_scc0 L_nost')
            self.dstamp(8, True)
            a('L_nost:')
        if self.place:
            a(f'''
s_and_b32 s56, s56, 7
s_cmp_eq_u32 {sW}, 0
s_cselect_b32 s57, 0, 0x1000
s_mul_i32 s58, s56, 24
s_add_u32 s57, s57, s58
v_mov_b32 v5, 1
v_mov_b32 v6, s57
s_mov_b64 exec, 1
buffer_atomic_add v5, v6, {DBG}, 0 offen offset:64 sc0
''')
            nt = 0
            a('s_mov_b64 exec, -1\ns_mov_b32 s63, 0')
            a(f'''
s_waitcnt vmcnt({nt})
s_cmp_eq_u32 {sW}, 0
s_cbranch_scc0 L_noticket
s_mov_b64 exec, 1
s_branch L_ticket2
L_ticket:
v_mov_b32 v5, 1
s_mul_i32 s57, s56, 24
v_mov_b32 v6, s57
buffer_atomic_add v5, v6, {DBG}, 0 offen offset:64 sc0
s_waitcnt vmcnt(0)
L_ticket2:
v_readfirstlane_b32 s57, v5
s_nop 3
s_cmp_lt_u32 s57, 32
s_cbranch_scc1 L_gotticket
v_mov_b32 v5, 1
v_mov_b32 v6, 0
buffer_store_dword v5, v6, {DBG}, 0 offen offset:24 sc1
s_add_u32 s56, s56, 1
s_and_b32 s56, s56, 7
s_branch L_ticket
L_gotticket:
s_lshl_b32 s58, s56, 5
s_add_u32 s57, s57, s58
s_getpc_b64 s[58:59]
L_pc:
s_and_b32 s56, s57, 0xfc
s_add_u32 s56, s56, role_tab - L_pc
s_load_dword s56, s[58:59], s56
s_and_b32 s57, s57, 3
s_lshl_b32 s57, s57, 3
s_waitcnt lgkmcnt(0)
s_lshr_b32 s57, s56, s57
v_mov_b32 v5, s57
v_mov_b32 v6, 0
ds_write_b32 v6, v5
s_waitcnt lgkmcnt(0)
s_mov_b64 exec, -1
L_noticket:
s_barrier
v_mov_b32 v6, 0
ds_read_b32 v5, v6
s_waitcnt lgkmcnt(0)
v_readfirstlane_b32 {sROLE}, v5
s_nop 3
s_and_b32 {sROLE}, {sROLE}, 255
s_barrier
''')
        else:
            a(f's_mov_b32 {sROLE}, s2')
        a(f'''
''')
        self.stamp(0)
        a(f'''
s_sub_u32 s56, {sROLE}, {R_O}
s_cmp_lt_u32 s56, 20
s_cbranch_scc1 L_ln
s_sub_u32 s56, {sROLE}, {R_XW - 20}
s_sub_u32 s57, {sROLE}, {R_XW}
s_cmp_lt_u32 s57, 24
s_cbranch_scc1 L_ln
s_sub_u32 s56, {sROLE}, {R_XW + 72 - 44}
s_cmp_ge_u32 {sROLE}, {R_XW + 72}
s_cbranch_scc1 L_ln
s_sub_u32 s57, {sROLE}, {R_C}
s_mul_i32 s56, s57, 205
s_lshr_b32 s56, s56, 10
s_mul_i32 s58, s56, 5
s_add_u32 s56, s56, 56
s_cmp_lt_u32 s57, 40
s_cselect_b32 s57, s57, 1
s_cmp_eq_u32 s57, s58
s_cbranch_scc1 L_ln
L_dispatch:
s_cmp_lt_u32 {sROLE}, {R_C}
s_cbranch_scc1 L_roleS
s_cmp_lt_u32 {sROLE}, {R_V}
s_cbranch_scc1 L_roleC
s_cmp_lt_u32 {sROLE}, {R_T}
s_cbranch_scc1 L_roleV
s_cmp_lt_u32 {sROLE}, {R_O}
s_cbranch_scc1 L_roleT
s_cmp_lt_u32 {sROLE}, {R_FD}
s_cbranch_scc1 L_roleO
s_cmp_lt_u32 {sROLE}, {R_OT}
s_cbranch_scc1 L_roleFD
s_cmp_lt_u32 {sROLE}, {R_XW}
s_cbranch_scc1 L_roleOT
s_branch L_roleXW
''')
        for c in range(40): assert (c * 205) >> 10 == c // 5

    def touch(self):
        a = self.a; n = 0
        if not self.tch: return 0
        st = self.tch
        a(f's_mov_b32 s63, 1\ns_lshl_b32 s61, s2, 2\ns_add_u32 s61, s61, {sW}\nv_mul_u32_u24 v254, {st}, v1')
        for ptr, size in ((P_WV, 7864320), (P_WK, 7864320), (P_WO, 7864320), (P_WQ, 7864320), (P_G, 1966080), (P_U, 1966080), (P_D, 1966080)):
            per = size // 1024
            self.srd(12, ptr, size)
            a(f's_mul_i32 s62, s61, {per}')
            o = 0
            while o < per:
                k = min(64, (per - o) // st)
                a(f's_mov_b32 exec_lo, {(1 << min(k, 32)) - 1:#x}\ns_mov_b32 exec_hi, {(1 << max(k - 32, 0)) - 1:#x}')
                if o: a(f's_add_u32 s62, s62, {64 * st}')
                a(f'buffer_load_dword v255, v254, {SA}, s62 offen')
                o += 64 * st; n += 1
        a('s_mov_b64 exec, -1')
        return n

    def arrive(self):
        a = self.a; l = a.label('L_arr')
        a(f'''
s_waitcnt vmcnt(0)
s_barrier
s_cmp_eq_u32 {sW}, 3
s_cbranch_scc0 {l}
s_mov_b64 exec, 1
v_mov_b32 v4, 1
v_mov_b32 v5, 8
buffer_atomic_add v4, v5, {DBG}, 0 offen sc0
s_waitcnt vmcnt(0)
v_cmp_eq_u32 vcc, 255, v4
s_cbranch_vccz {l}_x
buffer_load_dwordx3 v[4:6], v5, {DBG}, 0 offen offset:8 sc1
s_waitcnt vmcnt(0)
v_cmp_lt_u32 vcc, v4, v5
v_mov_b32 v4, 0x2001
v_lshlrev_b32 v6, 1, v6
v_cndmask_b32 v4, 1, v4, vcc
v_or_b32 v4, v4, v6
v_mov_b32 v5, 252
buffer_store_dword v4, v5, {DBG}, 0 offen sc1
{l}_x:
s_mov_b64 exec, -1
{l}:
s_cmp_eq_u32 s63, 0
s_cbranch_scc0 {l}_t
''')
        self.touch()
        a(f'{l}_t:')
    def await_all(self, stamps=True):
        a = self.a; l = a.label('L_aw')
        if stamps: self.stamp(1)
        a(f'''
s_mov_b32 {sSPIN}, {SPIN}
v_mov_b32 v5, 252
{l}:
buffer_load_dword v4, v5, {DBG}, 0 offen sc1
s_sub_u32 {sSPIN}, {sSPIN}, 1
s_cbranch_scc1 L_fail
s_waitcnt vmcnt(0)
v_cmp_eq_u32 vcc, 0, v4
s_cbranch_vccz {l}_d
s_sleep 16
s_branch {l}
{l}_d:
v_readfirstlane_b32 s61, v4
s_nop 3
s_and_b32 {sSELM}, s61, 8192
s_and_b32 {sSLOW}, s61, 2''')
        if self.slow or not self.place: a(f's_mov_b32 {sSLOW}, 1')
        if stamps: self.stamp(2)
    def wait_flags(self, voff, vtmp, sneed, sleep=2, soff='0', first=None):
        a = self.a; l = a.label('L_wf')
        if first:
            a(f'buffer_load_dword {vtmp}, {voff}, {WS}, {soff} offen sc1\ns_waitcnt vmcnt(0)')
            first()
            a(f'v_cmp_gt_u32 vcc, {sneed}, {vtmp}\ns_cbranch_vccz {l}_d')
        a(f'''
s_mov_b32 {sSPIN}, {SPIN}
{l}:
buffer_load_dword {vtmp}, {voff}, {WS}, {soff} offen sc1
s_sub_u32 {sSPIN}, {sSPIN}, 1
s_cbranch_scc1 L_fail
s_waitcnt vmcnt(0)
v_cmp_gt_u32 vcc, {sneed}, {vtmp}
''' + (f's_cbranch_vccz {l}_d\ns_sleep {min(127, sleep * self.slp)}\ns_branch {l}\n{l}_d:' if sleep else f's_cbranch_vccnz {l}\n{l}_d:'))
    def set_flag(self, sflag, val, vtmp, vzero, fl='sc1'):
        self.a(f'v_mov_b32 {vtmp}, {val}\nbuffer_store_dword {vtmp}, {vzero}, {WS}, {sflag} offen {fl}')

    def stamp(self, slot, vt=(6, 7), sub=0, nsub=1):
        if not self.prof or self.prof == 4 or (self.prof == 2 and isinstance(slot, str)) or (self.prof == 3 and slot not in (0, 3)): return
        a = self.a
        a(f's_memrealtime s[98:99]\ns_lshl_b32 s100, {sROLE}, 2\ns_add_u32 s100, s100, {sW}\ns_lshl_b32 s100, s100, 12')
        if isinstance(slot, str): a(f's_mul_i32 s101, {slot}, {4 * nsub}\ns_add_u32 s100, s100, s101\ns_add_u32 s100, s100, {PROF + 64 + 4 * sub}')
        else: a(f's_add_u32 s100, s100, {PROF + 4 * slot}')
        a(f's_waitcnt lgkmcnt(0)\nv_mov_b32 v{vt[0]}, s98\nv_mov_b32 v{vt[1]}, 0\nbuffer_store_dword v{vt[0]}, v{vt[1]}, {WS}, s100 offen')

    def dstamp(self, slot, neg=False):
        if self.prof != 4: return
        self.a(f's_memrealtime s[98:99]\ns_waitcnt lgkmcnt(0)\ns_and_b32 s98, s98, 0xffffff\n' + ('s_xor_b32 s98, s98, 0xffffff\n' if neg else '') +
               f's_mov_b64 exec, 1\nv_mov_b32 v6, s98\nv_mov_b32 v7, {4 * slot}\nbuffer_atomic_umax v6, v7, {DBG}, 0 offen\ns_mov_b64 exec, -1')

    def tick(self, i):
        if self.prof == 2: self.a(f'{"s_memrealtime" if self.rt else "s_memtime"} s[{80 + 2 * i}:{81 + 2 * i}]')
    def flush(self, n, vt=(6, 7)):
        if self.prof != 2: return
        a = self.a
        a(f's_lshl_b32 s100, {sROLE}, 2\ns_add_u32 s100, s100, {sW}\ns_lshl_b32 s100, s100, 12\ns_lshl_b32 s101, {sSEG}, 5\ns_add_u32 s100, s100, s101\ns_add_u32 s100, s100, {PROF + 1024}')
        a(f's_waitcnt lgkmcnt(0)\nv_mov_b32 v{vt[1]}, 0')
        for i in range(n):
            a(f'v_mov_b32 v{vt[0]}, s{80 + 2 * i}\nbuffer_store_dword v{vt[0]}, v{vt[1]}, {WS}, s100 offen offset:{4 * i}')

    def check(self, regs, vt):
        a = self.a; r = list(regs)
        a(f'v_max3_u32 {vt}, {vr(r[0])}, {vr(r[1])}, {vr(r[2])}')
        i = 3
        while i + 1 < len(r):
            a(f'v_max3_u32 {vt}, {vt}, {vr(r[i])}, {vr(r[i+1])}'); i += 2
        if i < len(r):
            a(f'v_max_u32 {vt}, {vt}, {vr(r[i])}')
        a(f'v_cmp_eq_u32 vcc, -1, {vt}')

    def stream_load(self, nblocks, ninstr, ring, issue, consume):
        a = self.a
        n = 0; pos = {}
        def iss(b):
            nonlocal n
            issue(b); n += ninstr; pos[b] = n
        for b in range(min(ring, nblocks)): iss(b)
        for b in range(nblocks):
            assert n - pos[b] <= 63
            a(f's_waitcnt vmcnt({n - pos[b]})')
            n += consume(b) or 0
            a('s_waitcnt lgkmcnt(0)')
            if b + ring < nblocks: iss(b + ring)

    def wo_load(self, rows, ring, vaddr, consume):
        a = self.a
        nb = 192 // rows; bs = rows * 1280; ni = bs // 4096
        a(f's_mul_i32 s72, {sIDX}, 245760\ns_mul_i32 s70, {sW}, {bs // 4}\ns_add_u32 s72, s72, s70')
        def issue(b):
            for i in range(ni):
                if i % 4 == 0: a(f's_add_u32 m0, s70, {(b % ring) * bs + i * 1024}\ns_add_u32 s73, s72, {b * bs + i * 1024}')
                a(f'buffer_load_dwordx4 v13, {SA}, s73 offen offset:{(i % 4) * 1024} {"nt " if self.nt == 2 else ""}lds')
        for b in range(ring - 1): issue(b)
        base = 0
        for b in range(nb):
            a(f's_waitcnt vmcnt({ni * (min(nb - 1, b + ring - 2) - b)})\ns_barrier')
            if b + ring - 1 < nb: issue(b + ring - 1)
            if (b % ring) * bs != base:
                a(f'v_add_u32 {vaddr}, {(b % ring) * bs - base}, {vaddr}'); base = (b % ring) * bs
            consume(b)
            a('s_waitcnt lgkmcnt(0)')
        a('s_barrier')

    def dma(self, voff, srd, soff, sbase, ldsoff, sc1=False):
        self.a(f's_add_u32 m0, {sbase}, {ldsoff}\ns_nop 0\nbuffer_load_dwordx4 {voff}, {srd}, {soff} offen {"sc1 " if sc1 else ("nt " if self.nt else "")}lds')

    def ln(self):
        a = self.a
        a('L_ln:')
        self.srd(12, P_X, 2048 * 1280)
        a(f"""
s_lshl_b32 s56, s56, 2
s_add_u32 s56, s56, {sW}
v_and_b32 v4, 7, v1
v_lshrrev_b32 v5, 3, v1
v_mul_u32_u24 v6, 1280, v4
v_lshl_add_u32 v6, v5, 4, v6
v_lshrrev_b32 v7, 2, v5
v_lshlrev_b32 v7, 11, v7
v_and_b32 v5, 3, v5
v_lshl_add_u32 v7, v5, 8, v7
v_lshl_add_u32 v7, v4, 4, v7
s_mov_b32 s58, 0x3acccccd
s_mul_i32 s57, s56, 10240
""")
        R0, R1, F = 16, 56, 96
        for j in range(10): a(f'buffer_load_dwordx4 v[{R0+4*j}:{R0+4*j+3}], v6, {SA}, s57 offen offset:{128*j}')
        nt = self.touch()
        a(f"""
s_lshr_b32 s59, s56, 2
s_mul_i32 s59, s59, 40960
s_bfe_u32 s64, s56, 0x10001
s_lshl_b32 s64, s64, 10
s_add_u32 s59, s59, s64
s_and_b32 s64, s56, 1
s_lshl_b32 s64, s64, 7
s_add_u32 s59, s59, s64
s_add_u32 s59, s59, {XN}
""")
        for j in range(40):
            if j % 4 == 0: a(f's_waitcnt vmcnt({nt + 9 - j // 4})')
            a(f'v_lshlrev_b32 v{F+2*j}, 16, v{R0+j}\nv_and_b32 v{F+2*j+1}, 0xffff0000, v{R0+j}')
        def red(v, t):
            a(f's_nop 1\nv_add_f32_dpp {v}, {v}, {v} row_ror:8 row_mask:0xf bank_mask:0xf')
            for sw in ('v_permlane16_swap_b32', 'v_permlane32_swap_b32'):
                a(f'v_mov_b32 {t}, {v}\ns_nop 1\n{sw} {v}, {t}\nv_add_f32 {v}, {v}, {t}')
        a(f'v_add_f32 v10, v{F}, v{F+1}')
        for j in range(2, 80): a(f'v_add_f32 v10, v10, v{F+j}')
        red('v10', 'v11')
        a(f'v_mul_f32 v10, s58, v10\nv_sub_f32 v12, v{F}, v10\nv_mul_f32 v13, v12, v12')
        for j in range(1, 80): a(f'v_sub_f32 v12, v{F+j}, v10\nv_fmac_f32 v13, v12, v12')
        red('v13', 'v11')
        a("""
v_mul_f32 v13, s58, v13
v_cvt_pk_bf16_f32 v10, v10, v13
v_and_b32 v13, 0xffff0000, v10
v_lshlrev_b32 v10, 16, v10
v_add_f32 v13, 0x3727c5ac, v13
v_cvt_pk_bf16_f32 v13, v13, v13
v_lshlrev_b32 v13, 16, v13
v_sqrt_f32 v13, v13
s_nop 0
v_cvt_pk_bf16_f32 v13, v13, v13
v_lshlrev_b32 v13, 16, v13
v_rcp_f32 v13, v13
""")
        for j in range(40):
            x, y = F + 2 * j, F + 2 * j + 1
            a(f"""v_sub_f32 v{x}, v{x}, v10
v_sub_f32 v{y}, v{y}, v10
v_cvt_pk_bf16_f32 v{R0+j}, v{x}, v{y}
v_lshlrev_b32 v{x}, 16, v{R0+j}
v_and_b32 v{y}, 0xffff0000, v{R0+j}
v_mul_f32 v{x}, v{x}, v13
v_mul_f32 v{y}, v{y}, v13
v_cvt_pk_bf16_f32 v{R0+j}, v{x}, v{y}""")
            if j % 4 == 3: a(f'buffer_store_dwordx4 v[{R0+j-3}:{R0+j}], v7, {WS}, s59 offen sc1\ns_add_u32 s59, s59, 4096')
        a('s_nop 1\ns_branch L_dispatch')

    def disabled(self, name):
        if name in self.enable: return False
        self.arrive()
        self.a('s_branch L_end')
        return True

    def roleXW(self):
        a = self.a
        a('L_roleXW:')
        if self.disabled('XW'): return
        W0 = 192
        wf = lambda kk, t: W0 + (kk * 4 + t) * 4
        ACC = 64
        acc = lambda mt, t: ACC + (mt * 4 + t) * 4
        XB = 32
        a(f'''
s_sub_u32 {sIDX}, {sROLE}, {R_XW}
s_lshl_b32 s64, {sIDX}, 2
s_add_u32 s64, s64, {sW}
s_lshl_b32 s66, s64, 7
s_add_u32 s66, s66, {FL + 128 * F_XW}
v_mov_b32 v8, 0
''')
        self.set_flag('s66', 0, 'v4', 'v8')
        self.arrive()
        a(f'''
s_cmp_lt_u32 s64, 288
s_cbranch_scc0 L_xw_ffn
s_mov_b32 s69, 0
s_mov_b32 s65, 12288
s_mov_b32 s68, {L_Q}
s_cmp_lt_u32 s64, 96
s_cselect_b32 s12, s{P_WQ}, s{P_WK}
s_cselect_b32 s13, s{P_WQ+1}, s{P_WK+1}
s_cselect_b32 s56, 0, 96
s_mov_b32 s67, {QT}
s_cselect_b32 s67, s67, {QT + QKV_SZ}
s_cmp_lt_u32 s64, 192
s_cselect_b32 s12, s12, s{P_WV}
s_cselect_b32 s13, s13, s{P_WV+1}
s_cselect_b32 s56, s56, 192
s_cselect_b32 s67, s67, {QT + 2 * QKV_SZ}
s_mov_b32 s14, {640 * 12288}
s_mov_b32 s15, 0x20000
s_mov_b32 s16, s12
s_mov_b32 s17, s13
s_mov_b32 s18, s14
s_mov_b32 s19, 0x20000
s_sub_u32 s56, s64, s56
s_lshl_b32 s57, s56, 12
s_add_u32 s67, s67, s57
s_lshl_b32 s57, s56, 7
v_lshrrev_b32 v4, 3, v1
v_mul_u32_u24 v4, 12288, v4
v_and_b32 v5, 7, v1
v_lshl_add_u32 v4, v5, 4, v4
v_add_u32 v10, s57, v4
v_add_u32 v11, {8 * 12288}, v10
v_and_b32 v4, 1, v2
v_lshlrev_b32 v4, 11, v4
v_lshrrev_b32 v5, 1, v2
v_lshl_add_u32 v4, v5, 10, v4
v_lshrrev_b32 v5, 2, v3
v_lshl_add_u32 v4, v5, 7, v4
s_mov_b32 s57, 512
s_mov_b32 s58, 64
s_branch L_xw_go
L_xw_ffn:
s_mov_b32 s69, 1
s_mov_b32 s65, 3072
s_mov_b32 s68, {L_HT}
''')
        self.srd(12, P_G, 640 * 3072); self.srd(16, P_U, 640 * 3072)
        a(f'''
s_sub_u32 s56, s64, 288
s_lshl_b32 s67, s56, 11
s_add_u32 s67, s67, {HT}
s_lshl_b32 s57, s56, 6
v_lshrrev_b32 v4, 2, v1
v_mul_u32_u24 v4, 3072, v4
v_and_b32 v5, 3, v1
v_lshl_add_u32 v4, v5, 4, v4
v_add_u32 v10, s57, v4
v_mov_b32 v11, v10
v_lshrrev_b32 v4, 2, v3
v_lshl_add_u32 v4, v2, 3, v4
v_lshlrev_b32 v4, 6, v4
s_mov_b32 s57, 256
s_mov_b32 s58, 2048
L_xw_go:
s_mul_i32 s70, {sW}, 40960
s_lshl_b32 s71, s65, 4
s_mov_b32 s72, 0
v_and_b32 v5, 3, v3
v_lshl_add_u32 v4, v5, 3, v4
v_add_u32 v20, s70, v4
v_add_u32 v21, s57, v20
v_add_u32 v22, s58, v20
v_add_u32 v23, s58, v21
''')
        if self.late:
            a(f's_sub_u32 s56, s64, {(0, 0, 96, 192)[self.late]}\ns_cmp_lt_u32 s56, {(0, 288, 192, 96)[self.late]}\ns_cbranch_scc1 L_xw_now')
            self.await_all(stamps=False)
            a('L_xw_now:')
        RING = 10
        def issue(b):
            o = (b % RING) * 4096
            self.dma('v10', SA, 's72', 's70', o); self.dma('v11', SB, 's72', 's70', o + 2048)
            a('s_add_u32 s72, s72, s71')
            self.dma('v10', SA, 's72', 's70', o + 1024); self.dma('v11', SB, 's72', 's70', o + 3072)
            a('s_add_u32 s72, s72, s71')
        def consume(b):
            o = (b % RING) * 4096
            for t in range(4):
                for hf in range(2):
                    a(f'ds_read_b64_tr_b16 {vr(wf(b, t) + 2 * hf, 2)}, v{20 + 2 * (t >> 1) + hf} offset:{o + (t & 1) * 32}')
        def xdma1(i, src='s72', dst='s73'):
            return (f's_add_u32 s75, {src}, {i * 1024}\ns_add_u32 m0, {dst}, {i * 1024}\ns_nop 0\n'
                    f'buffer_load_dwordx4 v13, {WS}, s75 offen sc1 lds')
        xadv = 's_add_u32 s72, s72, 40960\ns_add_u32 s73, s73, 40960\ns_cmp_lt_u32 s73, 122880\ns_cselect_b32 s73, s73, s70'
        self.stream_load(20, 4, RING, issue, consume)
        self.await_all()
        a(f'''s_barrier
v_lshlrev_b32 v13, 4, v1
s_mul_i32 s70, {sW}, 10240
s_add_u32 s72, s70, {XN}
s_mov_b32 s73, s70
s_mov_b32 s74, 0
s_mov_b32 {sSEG}, 0
''')
        for _ in range(2):
            for i in range(10): a(xdma1(i))
            a(xadv)
        k1 = 2 * math.sqrt(2 / math.pi) * math.log2(math.e)
        a(f's_mov_b32 s76, {f2u(-k1 * 0.044715):#x}\ns_mov_b32 s77, {f2u(-k1):#x}\nv_mov_b32 v15, s77')
        a(f'v_add_u32 v16, 0x40000000, v13\ns_sub_u32 s67, s67, s68\nv_mov_b32 v17, {FL + 128 * F_O}\nv_mov_b32 v18, 0\ns_waitcnt vmcnt(10)\ns_barrier')
        a('s_cmp_eq_u32 s69, 0\ns_cbranch_scc0 L_xf_loop')
        acc2 = lambda par, mt, t: 64 + par * 32 + (mt * 4 + t) * 4
        OUT, TMP = 128, 144
        def epilogue(ffn, par):
            o = []
            if not ffn:
                for mt in range(2):
                    for p in range(2):
                        d = OUT + (mt * 2 + p) * 4
                        for q in range(2):
                            s_ = acc2(par, mt, 2 * p + q)
                            o += [('v', f'v_cvt_pk_bf16_f32 v{d + 2*q}, v{s_}, v{s_+1}'), ('v', f'v_cvt_pk_bf16_f32 v{d + 2*q + 1}, v{s_+2}, v{s_+3}')]
                        o.append(('m', f'buffer_store_dwordx4 v[{d}:{d+3}], v16, {WS}, s67 offen offset:{p * 2048 + mt * 1024} sc1'))
            else:
                for mt in range(2):
                    G_ = [acc2(par, mt, q) + r for q in range(2) for r in range(4)]
                    U_ = [acc2(par, mt, 2 + q) + r for q in range(2) for r in range(4)]
                    T_ = [TMP + i for i in range(8)]
                    o += [('v', f'v_mul_f32 v{t}, v{g}, v{g}') for g, t in zip(G_, T_)]
                    o += [('v', f'v_fma_f32 v{t}, v{t}, s76, v15') for t in T_]
                    o += [('v', f'v_mul_f32 v{t}, v{t}, v{g}') for g, t in zip(G_, T_)]
                    o += [('t', f'v_exp_f32 v{t}, v{t}') for t in T_]
                    o += [('v', f'v_mul_f32 v{g}, v{g}, v{u}') for g, u in zip(G_, U_)]
                    o += [('v', f'v_add_f32 v{t}, 1.0, v{t}') for t in T_]
                    o += [('t', f'v_rcp_f32 v{t}, v{t}') for t in T_]
                    o += [('v', f'v_mul_f32 v{g}, v{g}, v{t}') for g, t in zip(G_, T_)]
                    d = OUT + mt * 4
                    o += [('v', f'v_cvt_pk_bf16_f32 v{d + i}, v{G_[2*i]}, v{G_[2*i+1]}') for i in range(4)]
                    o.append(('m', f'buffer_store_dwordx4 v[{d}:{d+3}], v16, {WS}, s67 offen offset:{mt * 1024} sc1'))
            return o
        for ffn in (0, 1):
            nm = 'L_xf' if ffn else 'L_xw'
            vq = VQ(self)
            def body():
                for par in range(2):
                    self.tick(0)
                    l = a.label('L_xw_go')
                    a(f's_sub_u32 s79, {sSEG}, {GATE}\ns_max_i32 s79, s79, 0')
                    vq.need('fl')
                    a(f'v_cmp_gt_u32 vcc, s79, v18\ns_cbranch_vccz {l}')
                    self.wait_flags('v17', 'v18', 's79', sleep=8)
                    a(f'{l}:\nv_add_u32 v14, s74, v13')
                    def rd(kk):
                        b = XB + (kk % 3) * 8
                        a(f'ds_read_b128 {vr(b, 4)}, v14 offset:{kk * 2048}\nds_read_b128 {vr(b + 4, 4)}, v14 offset:{kk * 2048 + 1024}')
                    rd(0); rd(1)
                    ep = epilogue(ffn, 1 - par)
                    n = 0
                    for kk in range(20):
                        if kk + 2 < 20: rd(kk + 2)
                        a(f's_waitcnt lgkmcnt({min(4, 2 * (19 - kk))})')
                        b = XB + (kk % 3) * 8
                        for mt in range(2):
                            for t in range(4):
                                c = vr(acc2(par, mt, t), 4)
                                a(f'v_mfma_f32_16x16x32_bf16 {c}, {vr(wf(kk, t), 4)}, {vr(b + 4 * mt, 4)}, {"0" if kk == 0 else c}')
                                n += 1
                                if n >= 3:
                                    budget = 2
                                    while ep and budget > 0:
                                        kind, txt = ep[0]
                                        if kind == 't' and budget < 2: break
                                        ep.pop(0)
                                        if kind == 'm': vq.op(txt, 'st'); budget = 0
                                        else: a(txt); budget -= 2 if kind == 't' else 1
                                if kk >= 10 and mt == 0 and t == 3: vq.op(xdma1(kk - 10), 'dma')
                        if kk == (17 if ffn else 7):
                            assert not ep
                            vq.need('st')
                            vq.op(f'v_mov_b32 v4, {sSEG}\nbuffer_store_dword v4, v8, {WS}, s66 offen sc1')
                        if kk == 8: vq.op(f'buffer_load_dword v18, v17, {WS}, 0 offen sc1', 'fl')
                        if kk == 9:
                            self.tick(1)
                            vq.need('dma'); a('s_barrier')
                            self.tick(2)
                    assert not ep
                    a(xadv)
                    self.tick(3)
                    self.tick(4)
                    if self.prof == 2: self.flush(5); vq.n += 5
                    if self.prof == 1: self.stamp(sSEG); vq.n += 1
                    a(f'''v_mov_b32 v16, v13
s_add_u32 s67, s67, s68
s_add_u32 s74, s74, 40960
s_cmp_lt_u32 s74, 122880
s_cselect_b32 s74, s74, 0
s_add_u32 {sSEG}, {sSEG}, 1''')
            a(f'{nm}_loop:')
            self.loop2(body)
            a(f's_cmp_lt_u32 {sSEG}, {NSEG}\ns_cbranch_scc1 {nm}_loop\ns_nop 7')
            for kind, txt in epilogue(ffn, 1): a(txt + ('\ns_nop 0' if kind == 't' else ''))
            a('s_waitcnt vmcnt(0)')
            self.set_flag('s66', NSEG, 'v4', 'v8')
            self.stamp(3)
            a('s_branch L_end')

    def slab_voff(self, vb, n, ppr, pitch, magic, shift, scol):
        a = self.a
        for u in range(64 * n): assert (u * magic) >> shift == u // ppr, (u, ppr)
        for i in range(n):
            a(f'''v_add_u32 v4, {64 * i}, v1
v_mul_u32_u24 v5, {magic}, v4
v_lshrrev_b32 v5, {shift}, v5
v_mul_u32_u24 v6, {ppr}, v5
v_sub_u32 v4, v4, v6
v_mul_u32_u24 v5, {pitch}, v5
v_lshl_add_u32 v4, v4, 4, v5
v_add_u32 v{vb + i}, {scol}, v4''')

    def roleOT(self):
        a = self.a
        a('L_roleOT:')
        if self.disabled('OT'): return
        W0 = 256
        wf = lambda eb, c: W0 + (c * 6 + eb) * 4
        VB = 64
        vf = lambda buf, eb, mt: VB + buf * 48 + (eb * 2 + mt) * 4
        a(f'''
s_sub_u32 {sIDX}, {sROLE}, {R_OT}
s_lshl_b32 s66, {sW}, 5
s_add_u32 s66, s66, {sIDX}
s_lshl_b32 s66, s66, 7
s_add_u32 s66, s66, {FL + 128 * F_OT}
v_mov_b32 v8, 0
''')
        self.set_flag('s66', 0, 'v4', 'v8')
        self.arrive()
        self.srd(12, P_WO, 32 * 245760)
        a(f'''v_lshlrev_b32 v13, 4, v1
s_mul_i32 s57, {sW}, 320
v_lshrrev_b32 v4, 2, v3
v_lshl_add_u32 v4, v2, 2, v4
v_mul_u32_u24 v4, 1280, v4
v_and_b32 v5, 3, v3
v_lshl_add_u32 v4, v5, 3, v4
v_add_u32 v12, s57, v4''')
        def consume(b):
            for c in range(10):
                for hf in range(2):
                    a(f'ds_read_b64_tr_b16 {vr(wf(b, c) + 2 * hf, 2)}, v12 offset:{hf * 20480 + c * 32}')
        self.wo_load(32, 4, 'v12', consume)
        self.await_all()
        a(f'''
v_lshlrev_b32 v13, 4, v1
v_min_u32 v4, 2, v1
s_mul_i32 s56, {sIDX}, 3
s_add_u32 s56, s56, {F_XW + 192 + FL // 128}
v_add_lshl_u32 v15, v4, s56, 7
s_mul_i32 s72, {sIDX}, 12288
s_add_u32 s72, s72, {QT + 2 * QKV_SZ}
s_mul_i32 s67, {sW}, {10 * (16384 if VNEAR else 8192)}
s_and_b32 s56, {sIDX}, 7
s_lshl_b32 s56, s56, 10
s_add_u32 s67, s67, s56
s_lshr_b32 s56, {sIDX}, 3
s_mul_i32 s56, s56, {MB if VNEAR else 327680}
s_add_u32 s67, s67, s56
s_add_u32 s67, s67, {VO}
{'FIXW s67' if VNEAR else ''}
{'s_xor_b32 s67, s67, 8192' if VNEAR == 2 else ''}
s_mov_b32 {sSEG}, 0
s_mov_b32 s73, 1
''')
        def vload1(buf, f):
            return f's_add_u32 s75, s72, {(f >> 2) * 4096}\nbuffer_load_dwordx4 {vr(VB + buf * 48 + f * 4, 4)}, v13, {WS}, s75 offen offset:{(f & 3) * 1024} sc1'
        self.wait_flags('v15', 'v4', 's73')
        for f in range(12): a(vload1(0, f))
        a(f'ADV s72 s72 {L_Q}\ns_waitcnt vmcnt(0)')
        vq = VQ(self)
        def body():
            for buf in range(2):
                self.tick(0)
                l = a.label('L_ot')
                a(f's_add_u32 s73, {sSEG}, 2\ns_min_u32 s73, s73, {NSEG}\ns_mov_b32 s74, s67')
                vq.need('v')
                vq.op(f'buffer_load_dword v17, v15, {WS}, 0 offen sc1', 'fl')
                self.tick(1)
                for c in range(11):
                    n = 0
                    fin = []
                    if c > 0:
                        A = 32 + ((c - 1) & 1) * 8; d = 48 + ((c - 1) & 1) * 4
                        fin = [f'v_cvt_pk_bf16_f32 v{d+i}, v{A+2*i}, v{A+2*i+1}' for i in range(4)]
                        st = f'buffer_store_dwordx4 v[{d}:{d+3}], v13, {WS}, s74 offen sc1\ns_add_u32 s74, s74, {16384 if VNEAR else 8192}'
                    if c < 10:
                        A = 32 + (c & 1) * 8
                        for eb in range(6):
                            for mt in range(2):
                                dd = vr(A + 4 * mt, 4)
                                a(f'v_mfma_f32_16x16x32_bf16 {dd}, {vr(vf(buf, eb, mt), 4)}, {vr(wf(eb, c), 4)}, {"0" if eb == 0 else dd}')
                                n += 1
                                if 3 <= n < 7 and fin: a(fin[n - 3])
                                if n == 7 and fin: vq.op(st, 'st')
                                if n == 12 and c == 2:
                                    vq.need('fl')
                                    a(f'v_cmp_gt_u32 vcc, s73, v17\nv_mov_b32 v4, {sSEG}\ns_cmp_eq_u64 vcc, 0\ns_cselect_b32 s76, 0, 0x40000000\nv_add_u32 v16, s76, v13')
                                    vq.op(f'buffer_store_dword v4, v8, {WS}, s66 offen sc1')
                                if n in (1, 5, 10) and 3 <= c < 7: vq.op(vload1(1 - buf, 3 * (c - 3) + (1, 5, 10).index(n)).replace('v13', 'v16'), 'v')
                    else:
                        a('s_nop 7')
                        for f in fin: a(f)
                        vq.op(st)
                self.tick(2)
                if self.prof == 2: self.flush(3); vq.n += 3
                if self.prof == 1: self.stamp(sSEG); vq.n += 1
                a(f's_add_u32 {sSEG}, {sSEG}, 1\ns_cmp_eq_u32 s76, 0\ns_cbranch_scc1 {l}')
                self.wait_flags('v15', 'v4', 's73', sleep=1, first=lambda: self.set_flag('s66', sSEG, 'v5', 'v8'))
                for f in range(12): a(vload1(1 - buf, f))
                a(f's_waitcnt vmcnt(0)\n{l}:\nADV s72 s72 {L_Q}\nADV s67 s67 {L_VO}')
        a('L_ot_loop:')
        self.loop2(body)
        a(f's_cmp_lt_u32 {sSEG}, {NSEG}\ns_cbranch_scc1 L_ot_loop\ns_waitcnt vmcnt(0)')
        self.set_flag('s66', NSEG, 'v4', 'v8')
        self.stamp(3)
        a('s_branch L_end')

    def roleFD(self):
        a = self.a
        a('L_roleFD:')
        if self.disabled('FD'): return
        W0 = 256
        wf = lambda kb, c: W0 + (kb * 5 + c) * 4
        HB = 64
        ACC = 24
        a(f'''
s_sub_u32 {sIDX}, {sROLE}, {R_FD}
s_lshl_b32 s66, {sIDX}, 2
s_add_u32 s66, s66, {sW}
s_lshl_b32 s66, s66, 7
s_add_u32 s66, s66, {FL + 128 * F_FD}
v_mov_b32 v8, 0
''')
        self.set_flag('s66', 0, 'v4', 'v8')
        self.arrive()
        self.srd(12, P_D, 1536 * 1280)
        a(f's_mul_i32 s57, {sIDX}, 160\ns_mul_i32 s72, {sW}, {384 * 1280}\ns_mul_i32 s70, {sW}, 40960')
        self.slab_voff(16, 5, 10, 1280, 205, 11, 's57')
        a('''v_lshrrev_b32 v4, 2, v3
v_lshl_add_u32 v4, v2, 2, v4
v_mul_u32_u24 v4, 160, v4
v_and_b32 v5, 3, v3
v_lshl_add_u32 v4, v5, 3, v4
v_add_u32 v12, s70, v4''')
        if self.late: self.await_all(stamps=False)
        RING = 8
        def issue(b):
            for i in range(5): self.dma(f'v{16+i}', SA, 's72', 's70', (b % RING) * 5120 + i * 1024)
            a('s_add_u32 s72, s72, 40960')
        def consume(b):
            for c in range(5):
                for hf in range(2):
                    a(f'ds_read_b64_tr_b16 {vr(wf(b, c) + 2 * hf, 2)}, v12 offset:{(b % RING) * 5120 + hf * 2560 + c * 32}')
        self.stream_load(12, 5, RING, issue, consume)
        self.await_all()
        a('s_barrier')
        a(f'''
v_lshlrev_b32 v13, 4, v1
v_lshlrev_b32 v10, 3, v1
s_mul_i32 s70, {sW}, 10240
v_add_u32 v14, s70, v13
s_lshl_b32 s70, {sW}, 10
v_add_u32 v9, s70, v13
v_min_u32 v4, 11, v1
s_mul_i32 s56, {sW}, 12
s_add_u32 s56, s56, {F_XW + 288 + FL // 128}
v_add_lshl_u32 v15, v4, s56, 7
s_mul_i32 s72, {sW}, 24576
s_add_u32 s72, s72, {HT}
s_mul_i32 s67, {sIDX}, 5120
s_lshl_b32 s56, {sW}, 9
s_add_u32 s67, s67, s56
s_add_u32 s67, s67, {FB}
s_mov_b32 {sSEG}, 0
s_mov_b32 s73, 1
''')
        def hload1(buf, f):
            return f's_add_u32 s75, s72, {(f >> 2) * 4096}\nbuffer_load_dwordx4 {vr(HB + buf * 96 + f * 4, 4)}, v13, {WS}, s75 offen offset:{(f & 3) * 1024} sc1'
        self.wait_flags('v15', 'v4', 's73')
        for f in range(24): a(hload1(0, f))
        a(f'ADV s72 s72 {L_HT}\nv_mov_b32 v22, 0\ns_waitcnt vmcnt(0)')
        a('L_fd_loop:')
        for buf in range(2):
            self.tick(0)
            l = a.label('L_fd_ok')
            a(f's_add_u32 s73, {sSEG}, 2\ns_min_u32 s73, s73, {NSEG}\ns_waitcnt vmcnt(2)\nv_cmp_gt_u32 vcc, s73, v22\ns_cbranch_vccz {l}')
            self.wait_flags('v15', 'v4', 's73')
            a(f'{l}:')
            self.tick(1)
            n = 0
            for kb in range(12):
                for c in range(5):
                    for tt in range(2):
                        d = vr(ACC + (c * 2 + tt) * 4, 4)
                        a(f'v_mfma_f32_16x16x32_bf16 {d}, {vr(wf(kb, c), 4)}, {vr(HB + buf * 96 + (kb * 2 + tt) * 4, 4)}, {"0" if kb == 0 else d}')
                        if n % 4 == 1 and n // 4 < 24: a(hload1(1 - buf, n // 4))
                        if n == 62:
                            a('s_waitcnt vmcnt(16)')
                            self.set_flag('s66', sSEG, 'v4', 'v8')
                        if n == 110: a(f'buffer_load_dword v22, v15, {WS}, 0 offen sc1')
                        n += 1
            a(f'ADV s72 s72 {L_HT}')
            self.tick(2)
            a('s_nop 7')
            lb = buf * 40960
            for t in range(10): a(f'ds_write_b128 v14, {vr(ACC + t * 4, 4)} offset:{lb + t * 1024}')
            a('s_waitcnt lgkmcnt(0)\ns_barrier')
            lab = a.label('L_fd_skip')
            for j in range(3):
                if j == 2: a(f's_cmp_lt_u32 {sW}, 2\ns_cbranch_scc0 {lab}')
                for w in range(4):
                    off = lb + w * 10240 + j * 4096
                    if off > 65535 - 16:
                        a(f'v_add_u32 v11, {off}, v9\nds_read_b128 {vr(ACC + w * 4, 4)}, v11')
                    else:
                        a(f'ds_read_b128 {vr(ACC + w * 4, 4)}, v9 offset:{off}')
                a('s_waitcnt lgkmcnt(0)')
                for r in range(4):
                    a(f'v_add_f32 v{ACC+r}, v{ACC+r}, v{ACC+4+r}\nv_add_f32 v{ACC+8+r}, v{ACC+8+r}, v{ACC+12+r}\nv_add_f32 v{ACC+r}, v{ACC+r}, v{ACC+8+r}')
                a(f'v_cvt_pk_bf16_f32 v{16+2*j}, v{ACC}, v{ACC+1}\nv_cvt_pk_bf16_f32 v{17+2*j}, v{ACC+2}, v{ACC+3}')
                a(f'buffer_store_dwordx2 v[{16+2*j}:{17+2*j}], v10, {WS}, s67 offen offset:{j * 2048 if j < 2 else 0} sc1' if j < 2 else
                  f's_add_u32 s75, s67, 4096\nbuffer_store_dwordx2 v[{16+2*j}:{17+2*j}], v10, {WS}, s75 offen sc1')
            a(f'{lab}:')
            self.tick(3)
            if self.prof == 2: self.flush(4); a('s_waitcnt vmcnt(0)')
            a(f'ADV s67 s67 {L_FB}\ns_add_u32 {sSEG}, {sSEG}, 1')
        a(f's_cmp_lt_u32 {sSEG}, {NSEG}\ns_cbranch_scc1 L_fd_loop\ns_waitcnt vmcnt(0)')
        self.set_flag('s66', NSEG, 'v4', 'v8')
        self.stamp(3)
        a('s_branch L_end')

    def build(self):
        a = self.a
        self.prologue(); self.ln()
        import roles2
        roles2.emit(self)
        self.roleFD(); self.roleOT(); self.roleXW()
        a(f'''L_fail:
s_waitcnt vmcnt(0) lgkmcnt(0)
s_mov_b64 exec, 1
v_mov_b32 v4, {sROLE}
v_add_u32 v4, 1, v4
v_mov_b32 v5, 12
buffer_store_dword v4, v5, {DBG}, 0 offen
L_end:
s_endpgm
L_hot_end:''')
        a.lines += self.cold
        a('.p2align 2\n.type role_tab,@object\n.size role_tab, 256\nrole_tab:')
        rt = role_table()
        for i in range(0, 256, 16): a('.byte ' + ', '.join(str(r) for r in rt[i:i+16]))
        hdr = open(f'cdna_kernels/{NAME}.s.ref').read().split('; Override')[0]
        return (hdr + '; @launch grid=(256,1,1) block=(256,1,1) lds=163840\n'
                f'.amdgcn_target "amdgcn-amd-amdhsa--gfx950"\n.text\n.globl {KN}\n.p2align 8\n.type {KN},@function\n{KN}:\n'
                + a.text() + f'''.section .rodata,"a"
.p2align 6
.amdhsa_kernel {KN}
  .amdhsa_next_free_vgpr 512
  .amdhsa_next_free_sgpr 102
  .amdhsa_accum_offset 256
  .amdhsa_group_segment_fixed_size 0
  .amdhsa_kernarg_size 112
  .amdhsa_user_sgpr_count 2
  .amdhsa_user_sgpr_kernarg_segment_ptr 1
  .amdhsa_system_sgpr_workgroup_id_x 1
  .amdhsa_float_denorm_mode_32 3
  .amdhsa_float_denorm_mode_16_64 3
.end_amdhsa_kernel
''')

if __name__ == '__main__':
    kw = eval('dict(%s)' % (sys.argv[2] if len(sys.argv) > 2 else ''))
    open(sys.argv[1], 'w').write(Gen(**kw).build())
```

```python
from gen import *
import roles2 as R

def roleC(G):
    a = G.a
    SMF, MF32, MF16 = R.SMF, R.MF32, R.MF16
    a('L_roleC:')
    if G.disabled('C'): return
    vT, vZ, vIDX, vL16, vL8, vL4, vE, vFL, vND, vFV, vHO, vHV, vFO, vMS, vOW, vOUT, vFBo, vXR, vFT = range(7, 26)
    vFR, vFTv, vNR = 60, 61, 62
    EB, E2 = 28, 44
    BZ = 68
    D1 = 84
    LA, LB = 116, 124
    AC = 132
    X = 136
    OA, XF = 148, 156
    FX = 224
    PB = 160
    YS = lambda u: 256 + 40 * (u & 3)
    for c in range(40): assert (c * 205) >> 11 == c // 10
    for o in range(80): assert (o * 205) >> 11 == o // 10
    G.srd(12, P_MEM, 10240)
    a(f'''
s_sub_u32 {sIDX}, {sROLE}, {R_C}
s_mul_i32 s74, {sIDX}, 205
s_lshr_b32 s74, s74, 11
s_mul_i32 s56, s74, 10
s_sub_u32 s76, {sIDX}, s56
s_lshl_b32 s75, s76, 2
s_add_u32 s75, s75, {sW}
v_mov_b32 v{vZ}, 0
v_lshlrev_b32 v{vL16}, 4, v1
v_lshlrev_b32 v{vL8}, 3, v1
v_lshlrev_b32 v{vL4}, 2, v1
s_lshl_b32 s72, {sIDX}, 7
s_add_u32 s72, s72, {PG_CP}
s_lshl_b32 s79, s74, 7
s_add_u32 s79, s79, {HC}
s_cmp_eq_u32 s75, 0
s_cselect_b32 s56, 0, 0x40000000
v_mov_b32 v{vHO}, s56
buffer_store_dword v{vZ}, v{vHO}, {WS}, s79 offen sc1
buffer_store_dword v{vZ}, v{vZ}, {WS}, s72 offen sc1
s_add_u32 s56, s72, 8192
buffer_store_dword v{vZ}, v{vZ}, {WS}, s56 offen sc1
s_lshl_b32 s64, s74, 14
s_lshl_b32 s56, s75, 8
s_add_u32 s64, s64, s56
s_add_u32 s64, s64, {LM}
v_bfe_u32 v4, v1, 2, 3
v_mul_u32_u24 v4, 1280, v4
v_and_b32 v5, 3, v1
v_lshl_add_u32 v4, v5, 3, v4
v_lshrrev_b32 v5, 5, v1
v_lshl_add_u32 v4, v5, 2, v4
s_lshl_b32 s56, s75, 5
buffer_load_dword v5, v4, {SA}, s56 offen
v_mov_b32 v26, -1
v_mov_b32 v27, -1
s_add_u32 s56, s64, {1 << L_LOC}
s_add_u32 s57, s64, {2 << L_LOC}
buffer_store_dword v26, v{vL4}, {WS}, s56 offen sc1
buffer_store_dword v26, v{vL4}, {WS}, s57 offen sc1
s_lshl_b32 s70, s76, 14
s_lshl_b32 s56, {sW}, 11
s_add_u32 s70, s70, s56
s_add_u32 s70, s70, {XM}
s_lshl_b32 s77, s74, 9
s_add_u32 s58, s70, s77
''')
    for extra in [e + r for e in (0, 8192, 262144, 262144 + 8192) for r in ((0, MB) if G.k2 else (0,))]:
        a(f's_add_u32 s56, s58, {extra}\nbuffer_store_dwordx2 v[26:27], v{vL8}, {WS}, s56 offen sc1')
    a(f's_waitcnt vmcnt({10 if G.k2 else 6})\nv_min_u32 v5, -2, v5\nbuffer_store_dword v5, v{vL4}, {WS}, s64 offen sc1')
    G.arrive()
    if G.ctch:
        for ptr in (P_WV, P_WK)[:G.ctch]:
            G.srd(12, ptr, 7864320)
            a(f's_lshl_b32 s56, {sIDX}, 2\ns_add_u32 s56, s56, {sW}\ns_lshl_b32 s56, s56, 13\nv_lshlrev_b32 v4, 7, v1')
            for k in range(6): a(f'buffer_load_dword v250, v4, {SA}, s56 offen\ns_add_u32 s56, s56, {160 * 8192}')
    G.await_all()
    a(f's_add_u32 s72, s72, {sSELM}')
    R.idx_setup(G, vIDX)
    a(f'''
v_lshrrev_b32 v4, 3, v3
v_lshlrev_b32 v4, 9, v4
v_lshl_add_u32 v4, v2, 7, v4
v_and_b32 v5, 7, v3
v_lshl_add_u32 v{vE}, v5, 4, v4
s_lshl_b32 s65, s74, 12
s_add_u32 s65, s65, {LE}
s_lshl_b32 s56, s74, 11
s_add_u32 s66, s56, {LL}
s_lshl_b32 s67, s75, 13
s_add_u32 s67, s67, s56
s_add_u32 s67, s67, {LZ}
s_mul_i32 s68, s74, {MB if VNEAR else 327680}
s_lshl_b32 s57, s75, {14 if VNEAR else 13}
s_add_u32 s68, s68, s57
s_add_u32 s68, s68, {VO}
{'FIXW s68' if VNEAR else ''}
{'s_xor_b32 s68, s68, 8192' if VNEAR == 2 else ''}
s_lshl_b32 s57, s75, 13
s_add_u32 s37, s57, {XO}
s_add_u32 s36, s37, s56
s_add_u32 s37, s37, s77
s_lshl_b32 s41, s74, 14
s_lshl_b32 s56, {sW}, 12
s_add_u32 s41, s41, s56
s_add_u32 s41, s41, {PT}
s_mov_b32 s45, s56
''')
    a(f'''
s_mul_i32 s56, s75, 205
s_lshr_b32 s56, s56, 11
s_lshl_b32 s56, s56, 5
s_lshl_b32 s57, s74, 3
s_add_u32 s56, s56, s57
s_add_u32 s56, s56, {F_OT + FL // 128}
v_and_b32 v4, 7, v1
v_add_lshl_u32 v{vFR}, v4, s56, 7
s_lshl_b32 s56, s74, 4
s_add_u32 s56, s56, {F_T + FL // 128}
v_add_lshl_u32 v{vFT}, v3, s56, 7
v_mov_b32 v{vFV}, 0
''')
    a(f'''
v_bfe_u32 v4, v1, 3, 1
v_lshlrev_b32 v4, 2, v4
v_bfe_u32 v5, v1, 4, 1
v_lshl_add_u32 v4, v5, 1, v4
v_lshrrev_b32 v6, 5, v1
v_add_u32 v4, v4, v6
v_and_b32 v5, 1, v1
v_lshl_add_u32 v4, v5, 3, v4
v_lshlrev_b32 v4, 4, v4
v_bfe_u32 v5, v1, 1, 2
v_lshl_add_u32 v{vMS}, v5, 2, v4
v_lshrrev_b32 v4, 3, v3
v_lshlrev_b32 v4, 9, v4
v_lshl_add_u32 v4, v2, 7, v4
v_and_b32 v5, 7, v1
v_lshl_add_u32 v{vOW}, v5, 4, v4
s_mov_b32 s46, -1
s_mov_b32 s47, 0
s_mov_b32 {sSEG}, 0
''')
    def need():
        a(f's_sub_u32 s58, {sSEG}, 1\ns_add_u32 s59, {sSEG}, 1\ns_min_u32 s40, s59, {NSEG}')
    waitR = lambda: G.wait_flags(f'v{vFR}', f'v{vFV}', 's40', sleep=1)
    waitT = lambda: G.wait_flags(f'v{vFT}', f'v{vFTv}', 's58', sleep=1)
    def progress(val):
        l = a.label('L_c_pg')
        a(f's_cmp_eq_u32 {sW}, 0\ns_cbranch_scc0 {l}\nv_mov_b32 v4, {val}\nbuffer_store_dword v4, v{vZ}, {WS}, s72 offen sc1\n{l}:')
    def pdma(par):
        if G.diag & 2: return
        a(f's_add_u32 m0, s45, {16384 * par}\ns_nop 0')
        for k in range(4): a(f'buffer_load_dwordx4 v{vL16}, {WS}, s41 offen offset:{k * 1024} sc1 lds')
        a(f'ADV s41 s41 {L_PT}')
    d0, d1 = vr(OA, 4), vr(OA + 4, 4)
    def prod_parts(H, par):
        rd = [f'ds_read_b128 {vr(PB + 4 * k, 4)}, v{vL16} offset:{16384 * par + 1024 * k}' for k in range(16)]
        mf = [(k + 1, f'{MF32} {d1}, {vr(H + 4 * k, 4)}, {vr(PB + 4 * k, 4)}, {"0" if k == 0 else d1}') for k in range(8)]
        mf += [(9 + k // 2, f'{MF16} {d0}, {vr(H + 4 * k, 2)}, {vr(PB + 32 + 2 * k, 2)}, {"0" if k == 0 else d0}') for k in range(8)]
        mf += [(16, ('s_nop 3\n' if k == 0 else '') + f'{MF32} {(d0, d1)[k >> 1]}, {vr(H + 32 + 4 * (k & 1), 4)}, {vr(PB + 48 + 4 * k, 4)}, {(d0, d1)[k >> 1]}') for k in (2, 3, 0, 1)]
        o = []; have = 0
        for need, t in mf:
            if need > have: t = f's_waitcnt lgkmcnt({16 - need})\n' + t; have = need
            o.append(t)
        return rd + o[:G.psplit], o[G.psplit:]
    def prod_store():
        a(f"""buffer_store_dwordx4 {d1}, v{vOW}, {WS}, s36 offen offset:1024 sc1
buffer_store_dwordx4 {d0}, v{vOW}, {WS}, s36 offen sc1
ADV s36 s36 {L_XO}""")
    def products(H, par):
        for t in sum(prod_parts(H, par), []): a(t)
        a('s_nop 7')
        prod_store()
    def voload(u):
        if G.diag & 2: return
        a('s_add_u32 s59, s68, 4096')
        for i in range(8): a(f'buffer_load_dwordx4 {vr(YS(u) + 4 * i, 4)}, v{vL16}, {WS}, {"s68" if i < 4 else "s59"} offen offset:{(i & 3) * 1024} sc1')
        a(f'ADV s68 s68 {L_VO}')
    def eload(b):
        for p in range(4): a(f'buffer_load_dwordx4 v[{b + 4*p}:{b + 4*p + 3}], v{vE}, {WS}, s65 offen offset:{1024 * p} sc1')
    zregs = [BZ + 8 * p + i for p in range(2) for i in range(4)]
    def zload(_):
        for p in range(2): a(f'buffer_load_dwordx4 v[{BZ + 8*p}:{BZ + 8*p + 3}], v{vL16}, {WS}, s67 offen offset:{1024 * p} sc1')
    def lload(b):
        a(f'buffer_load_dwordx4 v[{b}:{b+3}], v{vL16}, {WS}, s66 offen sc1\nbuffer_load_dwordx4 v[{b+4}:{b+7}], v{vL16}, {WS}, s66 offen offset:1024 sc1')
    zero = lambda: [a(f'v_mov_b32 v{AC + i}, 0') for i in range(4)]
    zsave = lambda u: [a(f'v_accvgpr_write_b32 {vr(YS(u) + 32 + i)}, v{zregs[i]}') for i in range(8)]
    comb = lambda b: f'{SMF} v[{AC}:{AC+3}], v[{b}:{b+3}], v[{BZ}:{BZ+7}], v{vIDX}\n{SMF} v[{AC}:{AC+3}], v[{b+4}:{b+7}], v[{BZ+8}:{BZ+15}], v{vIDX}'
    flv = f'buffer_load_dword v{vFV}, v{vFL}, {WS}, 0 offen sc1'
    def umf(u, p, b):
        for q in range(2):
            a(f'{MF32} {vr(D1 + (2*p + q) * 4, 4)}, v[{b + 4*p}:{b + 4*p + 3}], {vr(YS(u) + (2*p+q)*4, 4)}, 0')
    def xprep():
        a(G.win('s69', 's70') + f'\ns_add_u32 s71, s69, s77\ns_add_u32 s48, s69, {MB}\ns_add_u32 s49, s71, {MB}')
    X2 = 224
    def xchg(work, hint, tail, fin):
        xl = lambda r, sr: f'buffer_load_dwordx4 v[{r}:{r+3}], v{vL16}, {WS}, {sr} offen sc1\nbuffer_load_dwordx4 v[{r+4}:{r+7}], v{vL16}, {WS}, {sr} offen offset:1024 sc1'
        l = a.label('L_c_x')
        if G.k2: a(f'buffer_store_dwordx2 v[{AC}:{AC+1}], v{vL8}, {WS}, s49 offen sc1')
        a(f'buffer_store_dwordx2 v[{AC}:{AC+1}], v{vL8}, {WS}, s71 offen sc1')
        G.tick(3)
        if not G.k2:
            for t in work: a(t)
            a('s_waitcnt vmcnt(0)')
            if G.xd: tail(); hint()
            for _ in range(G.xd - 1): a('s_nop 15')
            a(xl(X, 's69'))
            if not G.xd: hint(); tail()
            a('s_waitcnt vmcnt(0)')
        else:
            n1, n2 = 16 + G.k2[0], 16 + G.k2[1]
            for t in work[:n1]: a(t)
            a(xl(X2, 's69'))
            for t in work[n1:n2]: a(t)
            hint()
            if G.k2[2]: tail()
            a(xl(X, 's48'))
            for t in work[n2:]: a(t)
            if not G.k2[2]: tail()
            a('s_waitcnt vmcnt(2)')
            G.check(range(X2, X2 + 8), f'v{vT}')
            a(f's_cbranch_vccnz {l}_b')
            fin(X2)
            a(f's_branch {l}_e\n{l}_b:\ns_waitcnt vmcnt(0)')
        G.check(range(X, X + 8), f'v{vT}')
        a(f's_cbranch_vccz {l}')
        R.poll(G, lambda b: a(xl(X, 's48' if G.k2 else 's69')), lambda b: None, 2, 8, X, None, f'v{vT}', pipe=False)
        a(f'{l}:')
        fin(X)
        a(f'{l}_e:')
    def xarm():
        a(f'ADV s56 s70 {L_XM} 2\n' + G.win('s56', 's56') + f'\ns_add_u32 s56, s56, s77\nbuffer_store_dwordx2 v[26:27], v{vL8}, {WS}, s56 offen sc1\nADV s70 s70 {L_XM}')
        if G.k2: a(f's_add_u32 s56, s56, {MB}\nbuffer_store_dwordx2 v[26:27], v{vL8}, {WS}, s56 offen sc1')
    def arms():
        a(f'buffer_store_dword v26, v{vL4}, {WS}, s57 offen LOCAL')
        xarm()
    if G.warm:
        for k in range(4):
            eload(EB); lload(LA); zload(0)
            for i in range(4): a(f'buffer_load_dwordx4 v[{PB}:{PB+3}], v{vL16}, {WS}, s41 offen offset:{i * 1024} sc1')
            a(f'buffer_load_dword v{PB}, v{vL4}, {WS}, s64 offen sc1')
            for r in ('s65', 's66', 's67', 's41', 's64'): a(f'ADV {r} {r} {L_LOC}')
    if not G.diag & 2:
        need(); waitR()
    voload(0)
    def main():
        colds = []
        a('L_c_loop:')
        for u in range(4):
            G.tick(0)
            xprep()
            zero()
            a(f'ADV s64 s64 {L_LOC}\ns_add_u32 s62, {sSEG}, 1\nv_mov_b32 v{vHV}, s62')
            if not G.pbar: a('s_waitcnt vmcnt(0)\ns_barrier')
            a(f'L_c_re{u}:')
            R.poll(G, lambda b: eload(EB), lambda b: None, 4, 16, [EB + 3, EB + 7, EB + 11, EB + 15] if G.nanck else list(range(EB, EB + 16)), None, f'v{vT}', pipe=False)
            G.tick(1)
            zload(0); lload(LA)
            def pack(p):
                d = BZ + 8 * (p >> 1) + 4 + 2 * (p & 1)
                o = [f'v_cndmask_b32 v{D1 + 8*p + r}, v{D1 + 8*p + 4 + r}, v{D1 + 8*p + r}, s[46:47]' for r in range(4)]
                return o + [f'v_cvt_pk_bf16_f32 v{d}, v{D1 + 8*p}, v{D1 + 8*p + 1}', f'v_cvt_pk_bf16_f32 v{d + 1}, v{D1 + 8*p + 2}, v{D1 + 8*p + 3}']
            pk = sum((pack(p) for p in range(4)), [])
            for n in range(8):
                a(f'{MF32} {vr(D1 + 4 * n, 4)}, v[{EB + 4*(n>>1)}:{EB + 4*(n>>1) + 3}], {vr(YS(u) + 4 * n, 4)}, 0')
                if n >= 4:
                    for _ in range(2): a(pk.pop(0))
            for t in pk: a(t)
            if G.nanck:
                fold = f"""v_permlane32_swap_b32 v{AC}, v{AC+2}
v_permlane32_swap_b32 v{AC+1}, v{AC+3}
v_add_f32 v{AC}, v{AC}, v{AC+2}
v_add_f32 v{AC+1}, v{AC+1}, v{AC+3}"""
                G.tick(2)
                a(f's_mov_b32 {sSPIN}, {SPIN}\ns_branch L_c_lp{u}\nL_c_l1{u}:')
                lload(LA); a('s_nop 1'); zero()
                a(f's_sub_u32 {sSPIN}, {sSPIN}, 1\ns_cbranch_scc1 L_fail\nL_c_lp{u}:\ns_waitcnt vmcnt(0)')
                a(comb(LA))
                G.check(range(LA, LA + 8), f'v{vT}')
                a(f's_cbranch_vccnz L_c_l1{u}\ns_nop 1\n{fold}\nv_cmp_u_f32 vcc, v{AC}, v{AC+1}\ns_cbranch_vccnz L_c_nan{u}\nL_c_red{u}:')
                def cold(u=u):
                    a(f'L_c_nan{u}:')
                    G.check(range(EB, EB + 16), f'v{vT}')
                    a(f's_cbranch_vccz L_c_n2{u}'); zero(); a(f's_branch L_c_re{u}\nL_c_n2{u}:')
                    G.check(list(range(LA, LA + 8)) + zregs, f'v{vT}')
                    a(f's_cbranch_vccz L_c_red{u}\nL_c_lr{u}:')
                    zload(0); lload(LA); a('s_nop 3'); zero()
                    a(f's_sub_u32 {sSPIN}, {sSPIN}, 1\ns_cbranch_scc1 L_fail\ns_branch L_c_lp{u}')
                colds.append(cold)
            else:
                a('s_waitcnt vmcnt(2)')
                G.check(zregs, f'v{vT}')
                a(f's_cbranch_vccz L_c_zok{u}')
                R.poll(G, lambda b: (zload(0), lload(LA)), lambda b: None, 4, 8, zregs, None, f'v{vT}', pipe=False)
                a(f'L_c_zok{u}:')
                G.tick(2)
                if G.lser:
                    a(f's_mov_b32 {sSPIN}, {SPIN}\nL_c_lp{u}:\ns_waitcnt vmcnt(0)')
                    a(comb(LA)); G.check(range(LA, LA + 8), f'v{vT}')
                    a(f's_cbranch_vccz L_c_red{u}')
                    lload(LA); a('s_nop 1'); zero()
                    a(f's_sub_u32 {sSPIN}, {sSPIN}, 1\ns_cbranch_scc1 L_fail')
                else:
                    lload(LB)
                    a(f's_mov_b32 {sSPIN}, {SPIN}\nL_c_lp{u}:\ns_waitcnt vmcnt(2)')
                    a(comb(LA)); G.check(range(LA, LA + 8), f'v{vT}')
                    a(f's_cbranch_vccz L_c_red{u}')
                    lload(LA); a('s_nop 1'); zero()
                    a(f's_sub_u32 {sSPIN}, {sSPIN}, 1\ns_cbranch_scc1 L_fail\ns_waitcnt vmcnt(2)')
                    a(comb(LB)); G.check(range(LB, LB + 8), f'v{vT}')
                    a(f's_cbranch_vccz L_c_red{u}')
                    lload(LB); a('s_nop 1'); zero()
                a(f'''s_branch L_c_lp{u}
L_c_red{u}:
s_nop 1
v_permlane32_swap_b32 v{AC}, v{AC+2}
v_permlane32_swap_b32 v{AC+1}, v{AC+3}
v_add_f32 v{AC}, v{AC}, v{AC+2}
v_add_f32 v{AC+1}, v{AC+1}, v{AC+3}''')
            def hint():
                a(f's_cmp_eq_u32 s75, 0\ns_cbranch_scc0 L_c_nh{u}\nbuffer_store_dword v{vHV}, v{vZ}, {WS}, s79 offen LOCAL\nL_c_nh{u}:')
            def tail():
                zsave(u)
                a(f'ADV s65 s65 {L_LOC}\nADV s66 s66 {L_LOC}\nADV s67 s67 {L_LOC}\nADV s57 s64 {L_LOC} 2\ns_add_u32 {sSEG}, {sSEG}, 1')
            def fin(X):
                Y = 232
                for r in range(4): a(f'v_add_f32 v{Y+r}, v{X+r}, v{X+4+r}')
                a(f"""s_nop 0
v_permlane32_swap_b32 v{Y}, v{Y+1}
v_permlane32_swap_b32 v{Y+2}, v{Y+3}
v_add_f32 v{Y}, v{Y}, v{Y+1}
v_add_f32 v{Y+2}, v{Y+2}, v{Y+3}
v_cvt_pk_bf16_f32 v{Y}, v{Y}, v{Y+2}
v_min_u32 v{Y}, -2, v{Y}
buffer_store_dword v{Y}, v{vMS}, {WS}, s64 offen LOCAL""")
            xchg(sum(prod_parts(YS(u + 2), u & 1), []), hint, tail, fin)
            G.tick(4)
            a('s_barrier')
            need()
            a(f's_cmp_lt_u32 {sSEG}, 3\ns_cbranch_scc1 L_c_early{u}')
            if G.diag & 2: arms()
            else:
                a(f's_sub_u32 s42, {sSEG}, 3\nv_cmp_gt_u32 vcc, s40, v{vFV}\ns_cbranch_vccnz L_c_rw{u}\nL_c_rok{u}:')
                a(f'buffer_load_dword v{vFTv}, v{vFT}, {WS}, 0 offen sc1\nbuffer_load_dword v{vFV}, v{vFR}, {WS}, 0 offen sc1')
                progress('s42')
                if G.vof: voload(u + 1)
                prod_store(); arms()
                if not G.vof: voload(u + 1)
                G.tick(5)
                a(f's_waitcnt vmcnt({14 if G.k2 else 13})\nv_cmp_gt_u32 vcc, s58, v{vFTv}\ns_cbranch_vccnz L_c_tw{u}\nL_c_tok{u}:')
                pdma((u + 1) & 1)
                G.tick(6)
                if G.diag & 4:
                    for k, n in ((0, 16), (1, 12), (2, 8), (3, 4)):
                        a(f's_waitcnt vmcnt({n})'); G.tick(k)
                    a('s_waitcnt vmcnt(0)')
            G.tick(7)
            G.flush(8, vt=(4, 5))
            a(f'L_c_next{u}:')
            if u == 2: a(f's_cmp_lt_u32 {sSEG}, {NSEG - 1}\ns_cbranch_scc0 L_c_drain')
        a('s_branch L_c_loop')
        for f in colds: f()
        for u in range(4):
            a(f'L_c_early{u}:')
            arms()
            if not G.diag & 2:
                waitR(); voload(u + 1)
                if u == 1: waitT(); pdma(0)
            a(f's_branch L_c_next{u}')
            if not G.diag & 2:
                a(f'L_c_rw{u}:'); waitR()
                a(f's_branch L_c_rok{u}\nL_c_tw{u}:'); waitT()
                a(f's_branch L_c_tok{u}')
        a('L_c_drain:')
        if G.diag & 2:
            a('s_branch L_end'); return
        for seg in (61, 62, 63):
            if seg == 63:
                R.poll(G, zload, lambda b: None, 4, 8, zregs, None, f'v{vT}', pipe=False, sleep=1)
                zsave(3)
            if seg > 61:
                a(f's_mov_b32 s58, {seg + 1}')
                waitT(); pdma(seg & 1)
            a('s_waitcnt vmcnt(0)\ns_barrier')
            progress(seg)
            products(YS(seg), seg & 1)
        a('s_waitcnt vmcnt(0)\ns_barrier')
        progress(64)
        G.stamp(3)
        a('s_branch L_end')
    G.two_flavours('c', main)
```

```python
from gen import *

def head_slab_load(G, mats, vb, vres, park):
    a = G.a
    for u in range(192): assert (u * 171) >> 12 == u // 24
    a(f's_mul_i32 s58, {sIDX}, 384')
    for i in range(3):
        a(f"""v_add_u32 v4, {64 * i}, v1
v_mul_u32_u24 v5, 171, v4
v_lshrrev_b32 v5, 12, v5
v_mul_u32_u24 v6, 24, v5
v_sub_u32 v4, v4, v6
v_mul_u32_u24 v5, 12288, v5
v_lshl_add_u32 v5, v4, 4, v5
v_add_u32 v{vb + i}, s58, v5""")
    a(f"""v_lshrrev_b32 v4, 2, v3
v_lshl_add_u32 v4, v2, 3, v4
v_mul_u32_u24 v4, 384, v4
v_and_b32 v5, 3, v3
v_lshl_add_u32 v4, v5, 3, v4
s_lshr_b32 s56, {sW}, 1
s_lshl_b32 s56, s56, 1
s_add_u32 s56, s56, {sW}
s_lshl_b32 s56, s56, 6
s_lshl_b32 s57, {sW}, 5
s_add_u32 s57, s57, 128
v_add_u32 v{vb + 11}, s56, v4
v_add_u32 v{vb + 12}, s57, v4
s_mul_i32 s70, {sW}, 12288""")
    for i in range(4):
        a(f's_xor_b32 s56, {sW}, {i}\ns_mul_i32 s56, s56, 12288\nv_add_u32 v{vb + 3 + 2*i}, s56, v{vb + 11}\nv_add_u32 v{vb + 4 + 2*i}, s56, v{vb + 12}')
    ng = 5 * len(mats)
    def issue(gi):
        srd = mats[gi // 5][0]; g = gi % 5
        if g < 4: a(f's_mul_i32 s72, {sW}, {4 * 393216}\ns_add_u32 s72, s72, {g * 393216}')
        else: a(f's_mul_i32 s72, {sW}, 393216\ns_add_u32 s72, s72, {16 * 393216}')
        for k in range(4):
            for i in range(3): G.dma(f'v{vb+i}', srd, 's72', 's70', (gi % 3) * 49152 + k * 3072 + i * 1024)
            if k < 3: a(f's_add_u32 s72, s72, {8 * 12288}')
    parked = {}
    base = 0
    tk = lambda i: a(f's_memrealtime s[{80 + 2*i}:{81 + 2*i}]') if G.diag & 16 else None
    tk(0); issue(0); issue(1); tk(1)
    for gi in range(ng):
        if gi == 3: tk(2)
        a(f's_waitcnt vmcnt({12 if gi + 1 < ng else 0})')
        if gi == 3: tk(3)
        a('s_barrier')
        if gi == 3: tk(4)
        if gi + 2 < ng: issue(gi + 2)
        if gi == 3: tk(5)
        if gi == 4: tk(6)
        nb = (gi % 3) * 49152
        if nb != base:
            for r in range(vb + 3, vb + 13): a(f'v_add_u32 v{r}, {nb - base}, v{r}')
            base = nb
        dest = mats[gi // 5][1]; g = gi % 5
        for i in range(4):
            b = g + 4 * i if g < 4 else 16 + i
            for tl in range(3):
                kind, d = dest(b >> 1, tl)
                if kind == 'l': d = parked.setdefault(d, park + 8 * len(parked))
                ad = (vb + 3 + 2 * i if g < 4 else vb + 11) + (tl == 2)
                off = (0 if g < 4 else i * 12288) + (tl & 1) * 32
                for hf in range(2):
                    a(f'ds_read_b64_tr_b16 {vr(d + 4 * (b & 1) + 2 * hf, 2)}, v{ad} offset:{off + hf * 1536}')
        a('s_waitcnt lgkmcnt(0)')
    a('s_barrier')
    if G.diag & 16:
        tk(7); a(f's_mov_b32 {sSEG}, 0'); G.prof = 2; G.flush(8, vt=(4, 5)); G.prof = 1
    for o, r in parked.items():
        a(f'ds_write_b128 v{vres}, {vr(r, 4)} offset:{o}\nds_write_b128 v{vres}, {vr(r + 4, 4)} offset:{o + 1024}')
    a('s_waitcnt lgkmcnt(0)')

def mpoll_setup(G, vg4, vg2, vl4, vl2, ssel, ldsbase):
    a = G.a
    a(f'''
s_lshl_b32 s56, {sW}, 11
v_lshl_add_u32 v{vl4}, v1, 4, s56
v_mov_b32 v{vg4}, v{vl4}
v_add_u32 v{vl4}, {ldsbase}, v{vl4}
s_lshl_b32 s56, {sW}, 9
v_lshl_add_u32 v{vl2}, v1, 3, s56
v_add_u32 v{vg2}, 8192, v{vl2}
v_add_u32 v{vl2}, {ldsbase + 8192}, v{vl2}
''')

def poll(G, load, use, n, nreg, A, B, vt, pipe=True, sleep=0):
    a = G.a; l = a.label('L_poll')
    a(f's_mov_b32 {sSPIN}, {SPIN}')
    if not pipe:
        a(f'{l}:')
        load(A)
        a(f's_sub_u32 {sSPIN}, {sSPIN}, 1\ns_cbranch_scc1 L_fail\ns_waitcnt vmcnt(0)')
        use(A)
        G.check(A if isinstance(A, list) else range(A, A + nreg), vt)
        if sleep: a(f's_cbranch_vccz {l}_d\ns_sleep {sleep}\ns_branch {l}\n{l}_d:')
        else: a(f's_cbranch_vccnz {l}')
    else:
        load(A)
        a(f'{l}:')
        load(B)
        a(f's_waitcnt vmcnt({n})')
        use(A); G.check(range(A, A + nreg), vt)
        a(f's_cbranch_vccz {l}_d')
        load(A)
        a(f's_sub_u32 {sSPIN}, {sSPIN}, 1\ns_cbranch_scc1 L_fail\ns_waitcnt vmcnt({n})')
        use(B); G.check(range(B, B + nreg), vt)
        a(f's_cbranch_vccnz {l}')
        a(f'{l}_d:')

def idx_setup(G, v):
    G.a(f'v_mov_b32 v4, 0x4444\nv_mov_b32 v5, 0xeeee\nv_cmp_gt_u32 vcc, 8, v3\ns_nop 1\nv_cndmask_b32 v{v}, v5, v4, vcc')

def ttile_addr(G, vw, vr_):
    G.a(f"""v_lshrrev_b32 v4, 1, v2
v_lshlrev_b32 v4, 3, v4
v_xor_b32 v4, v4, v3
v_lshlrev_b32 v4, 3, v4
v_lshl_add_u32 {vw}, v2, 7, v4
v_lshrrev_b32 v4, 2, v3
v_lshl_add_u32 v4, v2, 2, v4
v_bfe_u32 v5, v3, 1, 1
v_lshlrev_b32 v5, 3, v5
v_xor_b32 v4, v4, v5
v_lshlrev_b32 v4, 3, v4
v_and_b32 v5, 3, v3
v_lshl_add_u32 {vr_}, v5, 7, v4""")

SMF = 'v_smfmac_f32_16x16x64_bf16'
MF32 = 'v_mfma_f32_16x16x32_bf16'
MF16 = 'v_mfma_f32_16x16x16_bf16'

class Proj:
    def __init__(self, G, AB, SBUF, vA, vres, vidx, nbuf=3):
        self.G, self.AB, self.SBUF, self.vA, self.vres, self.vidx, self.nbuf = G, AB, SBUF, vA, vres, vidx, nbuf

class LQ:
    def __init__(self, a): self.a = a; self.n = 0; self.tag = {}; self.done = 0
    def op(self, ins, tag=None):
        self.a(ins); self.n += 1
        if tag is not None: self.tag[tag] = self.n
    def need(self, *tags):
        k = max(self.tag[t] for t in tags if t in self.tag) if any(t in self.tag for t in tags) else 0
        if k > self.done:
            self.a(f's_waitcnt lgkmcnt({min(15, self.n - k)})'); self.done = k
    def drain(self):
        self.a('s_waitcnt lgkmcnt(0)'); self.done = self.n

def roleS(G):
    a = G.a
    a('L_roleS:')
    if G.disabled('S'): return
    (vZ, vIDX, vG4, vG2, vL4, vL2, vA, vRES, vTW, vTR, vPW, vL16, vMW, vMR, vES, vLS, vFL, vKH, vD0, vD1, vA1, vA2, vA3, vPR) = range(8, 32)
    SQ, SK = 16, 124
    vT = 7
    AB = 32
    AQ = 44
    AK = 56
    KT = 68
    KH = 80
    QH = 86
    X = 92
    SB = 108
    Y = 126
    POLA = 98
    W0 = 128
    order = [(0, 0, t) for t in range(3)] + [(0, 1, t) for t in range(3)] + [(1, 0, t) for t in range(3)]
    order += [(0, tau, t) for tau in range(2, 7) for t in range(3)]
    order += [(0, tau, t) for tau in (7, 8, 9) for t in range(2)] + [(0, tau, 2) for tau in (7, 8, 9)] + [(1, 1, t) for t in range(3)]
    order += [(1, tau, t) for tau in (7, 8, 9, 2, 3) for t in range(3)]
    order += [(1, tau, t) for tau in (4, 5, 6) for t in range(2)] + [(1, tau, 2) for tau in (4, 5, 6)]
    assert len(set(order)) == 60
    lds_set = [order[n] for n in (6, 10, 15, 19, 24, 28, 33, 37, 42, 46, 51, 55)]
    nl = len(lds_set); RESW = nl * 2048
    RES, MST, TT, PMT, PMM, STG = 0, 98304, 108544, 120832, 125440, 98304
    assert 4 * RESW <= MST
    loc = {}; nr = 0
    for key in sorted(order):
        if key in lds_set: loc[key] = ('l', lds_set.index(key) * 2048)
        else: loc[key] = ('r', W0 + 8 * nr); nr += 1
    assert W0 + 8 * nr <= 512
    a(f"""
s_mov_b32 {sIDX}, {sROLE}
s_lshl_b32 s66, {sIDX}, 2
s_add_u32 s66, s66, {sW}
s_lshl_b32 s66, s66, 7
s_add_u32 s66, s66, {FL + 128 * F_S}
v_mov_b32 v{vZ}, 0
v_lshlrev_b32 v{vL16}, 4, v1
""")
    G.set_flag('s66', 0, 'v4', f'v{vZ}')
    a(f"""
s_lshl_b32 s64, {sIDX}, 9
s_add_u32 s64, s64, {LE}
s_lshr_b32 s65, {sIDX}, 2
s_lshl_b32 s65, s65, 10
s_and_b32 s56, {sIDX}, 1
s_lshl_b32 s56, s56, 8
s_add_u32 s65, s65, s56
s_and_b32 s56, {sIDX}, 2
s_lshl_b32 s56, s56, 1
s_add_u32 s65, s65, s56
s_add_u32 s65, s65, {LL}
v_mov_b32 v4, -1
v_mov_b32 v5, -1
v_lshlrev_b32 v6, 3, v1
v_lshrrev_b32 v7, 5, v1
v_lshl_add_u32 v7, v7, 8, v6
s_and_b32 s59, {sW}, 1
s_lshl_b32 s59, s59, {L_LOC}
s_add_u32 s56, s59, s64
s_add_u32 s57, s59, s65
buffer_store_dwordx2 v[4:5], v6, {WS}, s56 offen sc1
buffer_store_dword v4, v7, {WS}, s57 offen sc1
""")
    G.arrive()
    G.srd(12, P_WQ, 640 * 12288); G.srd(16, P_WK, 640 * 12288)
    a(f's_mul_i32 s71, {sW}, {RESW}\nv_add_u32 v{vRES}, s71, v{vL16}\nv_mov_b32 v0, v{vL16}')
    head_slab_load(G, [(SA, lambda t, tl: loc[0, t, tl]), ('s[16:19]', lambda t, tl: loc[1, t, tl])][::-1 if G.kfirst else 1], 16, vRES, 32)
    a(f'v_mov_b32 v{vL16}, v0')
    G.dstamp(10)
    G.await_all()
    a('s_barrier')
    idx_setup(G, vIDX)
    mpoll_setup(G, vG4, vG2, vL4, vL2, sSELM, MST)
    a(f"""
v_xor_b32 v{vA1}, 2048, v{vL4}
v_xor_b32 v{vA2}, 4096, v{vL4}
v_xor_b32 v{vA3}, 6144, v{vL4}
v_add_u32 v{vA}, {MST}, v{vL16}
""")
    a(f"""
v_and_b32 v4, 1, v2
v_lshlrev_b32 v4, 2, v4
v_and_b32 v5, 7, v3
v_sub_u32 v5, v5, v4
v_lshrrev_b32 v6, 2, v3
v_and_b32 v7, 3, v3
v_lshl_add_u32 v6, v6, 1, v7
v_lshrrev_b32 v7, 1, v7
v_lshl_add_u32 v6, v7, 4, v6
v_sub_u32 v6, v6, v4
v_mov_b32 v4, 0x3f80
v_mov_b32 v7, 0x3f800000
""")
    for dst, src in ((SQ, 5), (SK, 6)):
        for hh in range(2):
            a(f"""v_cmp_eq_u32 vcc, {2 * hh}, v{src}
v_cmp_eq_u32 s[56:57], {2 * hh + 1}, v{src}
s_nop 1
v_cndmask_b32 v{dst + hh}, 0, v4, vcc
v_cndmask_b32 v{dst + hh}, v{dst + hh}, v7, s[56:57]""")
    a(f"""
v_cmp_gt_u32 s[74:75], 8, v3
s_mul_i32 s56, {sW}, 1152
s_add_u32 s56, s56, {PMT}
v_lshl_add_u32 v4, v2, 5, v{vL16}
v_add_u32 v{vPW}, s56, v4
v_bfe_u32 v4, v1, 1, 2
v_mul_u32_u24 v4, 288, v4
v_and_b32 v5, 1, v1
v_lshl_add_u32 v4, v5, 7, v4
v_lshrrev_b32 v6, 3, v1
v_lshl_add_u32 v4, v6, 4, v4
v_add_u32 v{vPR}, {PMT}, v4
s_mul_i32 s56, {sW}, 576
s_add_u32 s56, s56, {PMM}
v_mul_u32_u24 v4, 144, v2
v_lshl_add_u32 v4, v3, 3, v4
v_add_u32 v{vMW}, s56, v4
v_and_b32 v4, 3, v1
v_mul_u32_u24 v4, 144, v4
v_lshl_add_u32 v4, v6, 3, v4
v_bfe_u32 v5, v1, 2, 1
v_lshl_add_u32 v4, v5, 6, v4
v_add_u32 v{vMR}, {PMM}, v4
""")
    a(f"""
v_lshrrev_b32 v4, 3, v1
v_bfe_u32 v5, v1, 1, 2
v_and_b32 v6, 1, v1
v_lshlrev_b32 v7, 7, v5
v_lshl_add_u32 v7, v4, 4, v7
v_lshl_add_u32 v{vES}, v6, 3, v7
v_lshl_add_u32 v7, v6, 3, v4
v_lshlrev_b32 v7, 4, v7
v_bfe_u32 v5, v1, 1, 1
v_lshl_add_u32 v7, v5, 3, v7
v_bfe_u32 v{vD0}, v1, 2, 1
v_lshl_add_u32 v{vLS}, v{vD0}, 9, v7
v_lshlrev_b32 v5, 2, v5
v_lshl_add_u32 v5, v6, 1, v5
v_cmp_eq_u32 s[76:77], 1, v{vD0}
v_cmp_eq_u32 vcc, v4, v5
s_nop 1
v_cndmask_b32 v{vD0}, 0, 1.0, vcc
v_add_u32 v5, 1, v5
v_cmp_eq_u32 vcc, v4, v5
s_nop 1
v_cndmask_b32 v{vD1}, 0, 1.0, vcc
""")
    a(f"""
s_cmp_eq_u32 {sW}, 0
s_cselect_b32 s56, 0, 0x40000000
v_add_u32 v{vES}, s56, v{vES}
v_add_u32 v{vLS}, s56, v{vLS}
v_min_u32 v4, 2, v1
s_mul_i32 s56, {sIDX}, 3
s_add_u32 s56, s56, {F_XW + 96 + FL // 128}
v_add_lshl_u32 v{vFL}, v4, s56, 7
s_lshr_b32 s56, {sW}, 1
s_lshl_b32 s57, s56, 1
s_add_u32 s57, s57, {sW}
s_add_u32 s56, s56, 2
s_and_b32 s58, {sW}, 1
s_lshl_b32 s58, s58, 3
v_add_u32 v{vKH}, s58, v{vL16}
s_mul_i32 s58, {sIDX}, 12288
s_add_u32 s58, s58, {QT + QKV_SZ}
s_lshl_b32 s67, s57, 11
s_add_u32 s67, s67, s58
s_lshl_b32 s68, s56, 11
s_add_u32 s68, s68, s58
s_mul_i32 s58, {sIDX}, 6144
s_add_u32 s58, s58, {KM}
s_lshl_b32 s69, s57, 10
s_add_u32 s69, s69, s58
s_lshl_b32 s70, s56, 10
s_add_u32 s70, s70, s58
s_lshr_b32 s56, {sIDX}, 3
s_lshl_b32 s79, s56, 7
s_add_u32 s79, s79, {HC}
s_lshl_b32 s71, s56, 14
s_add_u32 s71, s71, {LM}
s_mov_b32 s78, {f2u(C_SCALE):#x}
s_mov_b32 s62, {f2u(60.0):#x}
s_mov_b32 {sSEG}, 0
s_mov_b32 s73, 1
""")
    ktl = [f'buffer_load_dwordx4 v[{KT}:{KT+3}], v{vL16}, {WS}, s67 offen sc1',
           f'buffer_load_dwordx4 v[{KT+4}:{KT+7}], v{vL16}, {WS}, s67 offen offset:1024 sc1\nADV s67 s67 {L_Q}',
           f'buffer_load_dwordx2 v[{KT+8}:{KT+9}], v{vKH}, {WS}, s68 offen sc1',
           f'buffer_load_dwordx2 v[{KT+10}:{KT+11}], v{vKH}, {WS}, s68 offen offset:1024 sc1\nADV s68 s68 {L_Q}']
    if G.diag & 2: ktl = []
    else: G.wait_flags(f'v{vFL}', 'v4', 's73')
    for t in ktl: a(t)
    def main():
        a('L_s_loop:')
        G.tick(0)
        q = LQ(a)
        def wread(q, i):
            b = SB + (i % 2) * 8
            q.op(f'ds_read_b128 {vr(b, 4)}, v{vRES} offset:{i * 2048}')
            q.op(f'ds_read_b128 {vr(b + 4, 4)}, v{vRES} offset:{i * 2048 + 1024}', ('w', i))
        wread(q, 0); wread(q, 1)
        for i in range(24): a(f'v_mov_b32 v{AQ + i}, 0')
        q.drain()
        aseq = [2, 3, 4, 5, 6, 7, 8, 9, 2, 3, 4, 5, 6]
        slot1 = {t: (t - 2) % 3 for t in range(2, 10)}
        slot2 = dict(slot1); slot2.update({t: (8 + t - 2) % 3 for t in range(2, 7)})
        def ard(q, pos):
            t = aseq[pos]
            ad, off = ((vA1, vA2, vA3)[(t >> 1) - 1], (t & 1) * 1024) if t < 8 else (vA, t * 1024)
            q.op(f'ds_read_b128 {vr(AB + (pos % 3) * 4, 4)}, v{ad} offset:{off}', ('a', pos))
        def smf(q, n, own=POLA):
            mtx, tau, tl = order[n]
            kind, d = loc[mtx, tau, tl]
            if kind == 'l':
                i = d // 2048; d = SB + (i % 2) * 8; q.need(('w', i))
            if tau < 2: A = own + 4 * tau
            else:
                pos = tau - 2 if (mtx == 0 or tau >= 7) else 8 + tau - 2
                q.need(('a', pos)); A = AB + (pos % 3) * 4
            a(f'{SMF} {vr((AQ, AK)[mtx] + 4 * tl, 4)}, {vr(A, 4)}, {vr(d, 8)}, v{vIDX}')
            if kind == 'l' and i + 2 < nl: wread(q, i + 2)
        def mload(b):
            a(f"""buffer_load_dwordx4 v[{b}:{b+3}], v{vG4}, {WS}, s71 offen sc1
buffer_load_dwordx4 v[{b+4}:{b+7}], v{vG4}, {WS}, s71 offen offset:1024 sc1
buffer_load_dwordx2 v[{b+8}:{b+9}], v{vG2}, {WS}, s71 offen sc1""")
        def mwrite(b):
            a(f"""ds_write_b128 v{vL4}, v[{b}:{b+3}]
ds_write_b128 v{vL4}, v[{b+4}:{b+7}] offset:1024
ds_write_b64 v{vL2}, v[{b+8}:{b+9}]""")
        import copy
        def phase0(b, q0, fail):
            a(f'v_max3_u32 v{vT}, v{b+3}, v{b+7}, v{b+9}\nv_cmp_eq_u32 vcc, -1, v{vT}\ns_cbranch_vccnz {fail}')
            G.tick(1)
            wr = [f'ds_write_b128 v{vL4}, v[{b}:{b+3}]', f'ds_write_b128 v{vL4}, v[{b+4}:{b+7}] offset:1024', f'ds_write_b64 v{vL2}, v[{b+8}:{b+9}]']
            ck = [f'v_max3_u32 v{vT}, v{b}, v{b+1}, v{b+2}', f'v_max3_u32 v{vT}, v{vT}, v{b+4}, v{b+5}', f'v_max3_u32 v{vT}, v{vT}, v{b+6}, v{b+8}', f'v_cmp_eq_u32 vcc, -1, v{vT}']
            for n in range(9):
                smf(q0, n, own=b)
                if n < 3: q0.op(wr[n], 'mw')
                if n < 4: a(ck[n])
                if n == 4: a(f's_cbranch_vccnz {fail}_z')
                if n == G.sb1:
                    q0.need('mw'); a('s_barrier')
                    ard(q0, 0); ard(q0, 1); ard(q0, 2)
        def rezero(lab):
            a(f'{lab}_z:\ns_nop 7')
            for i in range(12): a(f'v_mov_b32 v{AQ + i}, 0')
        G.wait_flags(f'v{vZ}', 'v4', sSEG, sleep=G.ssl, soff='s79', first=lambda: G.set_flag('s66', sSEG, 'v5', f'v{vZ}', 'LOCAL'))
        G.tick(6)
        a(f's_mov_b32 {sSPIN}, {SPIN}')
        if G.mpipe:
            POLB = 80
            mload(POLA)
            a('s_branch L_s_poll')
            rezero('L_s_pollB')
            a('L_s_pollB:')
            mload(POLA)
            a(f's_sub_u32 {sSPIN}, {sSPIN}, 1\ns_cbranch_scc1 L_fail\ns_waitcnt vmcnt(3)')
            qb = copy.copy(q); qb.tag = dict(q.tag)
            phase0(POLB, qb, 'L_s_poll')
            a('s_branch L_s_main')
            rezero('L_s_poll')
            a('L_s_poll:')
            mload(POLB)
            a('s_waitcnt vmcnt(3)')
            phase0(POLA, q, 'L_s_pollB')
        else:
            a('s_branch L_s_poll')
            rezero('L_s_poll')
            a('L_s_poll:')
            mload(POLA)
            a(f's_sub_u32 {sSPIN}, {sSPIN}, 1\ns_cbranch_scc1 L_fail\ns_waitcnt vmcnt(0)')
            phase0(POLA, q, 'L_s_poll')
        a('L_s_main:')
        fill = {n: [] for n in range(60)}
        V = lambda s_: (lambda: a(s_))
        last_use = {}
        for n in range(9, 60):
            mtx, tau, tl = order[n]
            if tau < 2: continue
            pos = tau - 2 if (mtx == 0 or tau >= 7) else 8 + tau - 2
            last_use[pos] = n
        for pos in range(3, len(aseq)): fill[last_use[pos - 3]].append(lambda pos=pos: ard(q, pos))
        def cvt2(ACC, tl, dst):
            s_ = ACC + 4 * tl
            return [V(f'v_cvt_pk_bf16_f32 v{dst}, v{s_}, v{s_+1}'), V(f'v_cvt_pk_bf16_f32 v{dst+1}, v{s_+2}, v{s_+3}')]
        def tmf(ACC, tl, src, sel): return V(f'{MF16} {vr(ACC + 4 * tl, 4)}, v[{src}:{src+1}], v[{sel}:{sel+1}], 0')
        fill[12].append(V(f'buffer_load_dword v2, v{vFL}, {WS}, 0 offen sc1'))
        fill[30].append(V('s_waitcnt vmcnt(1)'))
        fill[31] += cvt2(AQ, 0, X)
        fill[32] += [V('s_nop 0'), tmf(AQ, 0, X, SQ)] + cvt2(AQ, 1, X + 2)
        fill[33] += [V('s_nop 0'), tmf(AQ, 1, X + 2, SQ)] + cvt2(AQ, 2, X + 4)
        fill[34] += [V('s_nop 0'), tmf(AQ, 2, X + 4, SQ)] + cvt2(AQ, 0, QH)
        fill[35] += cvt2(AQ, 1, QH + 2)
        fill[36] += [V('s_nop 0')] + [V(f'{MF32} {vr(AQ + 4*mt, 4)}, v[{KT + 4*mt}:{KT + 4*mt + 3}], v[{QH}:{QH+3}], 0') for mt in range(2)] + cvt2(AQ, 2, QH + 4)
        fill[38] += [V(f'{MF16} {vr(AQ + 4*mt, 4)}, v[{KT + 8 + 2*mt}:{KT + 9 + 2*mt}], v[{QH+4}:{QH+5}], {vr(AQ + 4*mt, 4)}') for mt in range(2)]
        fill[41] += [V(f'v_cndmask_b32 v{X + r}, v{AQ + 4 + r}, v{AQ + r}, s[74:75]') for r in range(4)]
        fill[41].append(lambda: q.op(f'ds_write_b128 v{vPW}, v[{X}:{X+3}]', 'pw'))
        def b2():
            q.need('pw'); a('s_barrier'); G.tick(2)
            for w in range(4): q.op(f'ds_read_b128 v[{X + 4*w}:{X + 4*w + 3}], v{vPR} offset:{1152 * w}', ('p', w))
        fill[G.b2].append(b2)
        add = lambda d, x, y: V(f'v_add_f32 v{d}, v{x}, v{y}')
        DP = ['quad_perm:[1,0,3,2]', 'quad_perm:[2,3,0,1]', 'row_half_mirror']
        dpt = lambda op, v, k: f'{op}_dpp {v}, {v}, {v} {DP[k]} row_mask:0xf bank_mask:0xf'
        dpp = lambda op, v, k: a(dpt(op, v, k))
        ex = lambda r: V(f'v_exp_f32 v{X+r}, v{X+r}')
        e0 = G.b2 + 5
        assert e0 + 6 <= 59
        fill[e0] += [lambda: q.need(('p', 1))] + [add(X + r, X + r, X + 4 + r) for r in range(4)]
        fill[e0 + 1] += [lambda: q.need(('p', 3))] + [add(X + 8 + r, X + 8 + r, X + 12 + r) for r in range(4)]
        fill[e0 + 2] += [add(X + r, X + r, X + 8 + r) for r in range(4)]
        fill[e0 + 3] += [V(f'v_max3_f32 v5, v{X}, v{X+1}, v{X+2}'), V(f'v_max_f32 v5, v5, v{X+3}')]
        fill[e0 + 4] += [V('s_nop 0'), V(dpt('v_max_f32', 'v5', 0))]
        fill[e0 + 5] += [V('s_nop 0'), V(dpt('v_max_f32', 'v5', 1))]
        fill[e0 + 6] += [V('s_nop 0'), V(dpt('v_max_f32', 'v5', 2))]
        fm = lambda r: V(f'v_fma_f32 v{X+r}, v{X+r}, s78, -v5')
        est = V(f'v_cvt_pk_bf16_f32 v{X+4}, v{X}, v{X+1}\nv_cvt_pk_bf16_f32 v{X+5}, v{X+2}, v{X+3}\nbuffer_store_dwordx2 v[{X+4}:{X+5}], v{vES}, {WS}, s64 offen LOCAL')
        mul5 = V('v_mul_f32 v5, s78, v5')
        if G.early:
            fill[e0 + 6] += [mul5] + [fm(r) for r in range(4)]
            mul5 = V('s_nop 0'); fm = lambda r: ex(r)
        fill[58] += cvt2(AK, 0, X + 8)
        for n in range(9, 60):
            smf(q, n)
            for f in fill[n]: f()
        G.tick(3)
        S0 = AQ + 8; d = vr(S0, 4)
        run = lambda fs: [f() for f in fs]
        run(cvt2(AK, 1, X + 10) + [tmf(AK, 0, X + 8, SK), mul5, tmf(AK, 1, X + 10, SK), fm(0), fm(1), fm(2)])
        if G.early:
            run(cvt2(AK, 2, Y) + [fm(3), V('s_nop 0'), tmf(AK, 2, Y, SK), est])
            G.tick(7)
            run(cvt2(AK, 0, KH) + cvt2(AK, 1, KH + 2))
            a(f's_nop 1\n{MF32} {d}, v[{KH}:{KH+3}], v[{QH}:{QH+3}], 0')
            run(cvt2(AK, 2, KH + 4))
            a(f's_cmp_eq_u32 {sW}, 0\ns_nop 2\n{MF16} {d}, v[{KH+4}:{KH+5}], v[{QH+4}:{QH+5}], {d}\ns_nop 0')
        else:
            run(cvt2(AK, 2, Y) + [fm(3), ex(0), tmf(AK, 2, Y, SK)] + cvt2(AK, 0, KH) + cvt2(AK, 1, KH + 2) + [ex(1), ex(2)])
            a(f'{MF32} {d}, v[{KH}:{KH+3}], v[{QH}:{QH+3}], 0')
            run([ex(3)] + cvt2(AK, 2, KH + 4))
            a(f"""v_cvt_pk_bf16_f32 v{X+4}, v{X}, v{X+1}
v_cvt_pk_bf16_f32 v{X+5}, v{X+2}, v{X+3}
s_cmp_eq_u32 {sW}, 0
{MF16} {d}, v[{KH+4}:{KH+5}], v[{QH+4}:{QH+5}], {d}
buffer_store_dwordx2 v[{X+4}:{X+5}], v{vES}, {WS}, s64 offen LOCAL""")
            G.tick(7)
        a(f"""v_add_f32 v6, v{X}, v{X+1}
v_add_f32 v4, v{X+2}, v{X+3}
v_add_f32 v6, v6, v4
s_nop 1
{dpt('v_add_f32', 'v6', 0)}
s_nop 0
ds_write_b64 v{vMW}, v[{S0}:{S0+1}]
{dpt('v_add_f32', 'v6', 1)}
s_nop 1
{dpt('v_add_f32', 'v6', 2)}
s_waitcnt lgkmcnt(0)
s_barrier
""")
        G.tick(4)
        Z = X + 8
        a(f"""s_cbranch_scc0 L_s_nolate
ds_read2_b64 v[{Z}:{Z+3}], v{vMR} offset0:0 offset1:72
ds_read2_b64 v[{Z+4}:{Z+7}], v{vMR} offset0:144 offset1:216
s_waitcnt lgkmcnt(1)
v_add_f32 v{Z}, v{Z}, v{Z+2}
v_add_f32 v{Z+1}, v{Z+1}, v{Z+3}
s_waitcnt lgkmcnt(0)
v_add_f32 v{Z+4}, v{Z+4}, v{Z+6}
v_add_f32 v{Z+5}, v{Z+5}, v{Z+7}
v_add_f32 v{Z}, v{Z}, v{Z+4}
v_add_f32 v{Z+1}, v{Z+1}, v{Z+5}
v_fma_f32 v{Z+2}, v{Z}, s78, -v5
v_fma_f32 v{Z+3}, v{Z+1}, s78, -v5
v_exp_f32 v{Z+4}, v{Z+2}
v_exp_f32 v{Z+5}, v{Z+3}
v_max_f32 v{Z+2}, v{Z+2}, v{Z+3}
v_add_f32 v{Z+6}, v{Z+4}, v{Z+5}
v_cmp_nge_f32 vcc, {'-4.0' if G.diag & 32 else 's62'}, v{Z+2}
v_cndmask_b32 v{Z+4}, v{Z+4}, v{vD0}, s[76:77]
{dpt('v_add_f32', f'v{Z+6}', 0)}
v_cndmask_b32 v{Z+5}, v{Z+5}, v{vD1}, s[76:77]
s_cbranch_vccnz L_s_exact
{dpt('v_add_f32', f'v{Z+6}', 1)}
v_add_f32 v{Z+6}, v{Z+6}, v6
L_s_norm:
v_rcp_f32 v{Z+6}, v{Z+6}
s_nop 0
v_mul_f32 v{Z+4}, v{Z+4}, v{Z+6}
v_mul_f32 v{Z+5}, v{Z+5}, v{Z+6}
v_cvt_pk_bf16_f32 v{Z}, v{Z+4}, v{Z+5}
v_min_u32 v{Z}, -2, v{Z}
buffer_store_dword v{Z}, v{vLS}, {WS}, s65 offen LOCAL
""")
        def exact():
            a(f"""L_s_exact:
v_max_f32 v{Z+2}, v{Z}, v{Z+1}
s_nop 1
{dpt('v_max_f32', f'v{Z+2}', 0)}
s_nop 1
{dpt('v_max_f32', f'v{Z+2}', 1)}
v_mul_f32 v{Z+2}, s78, v{Z+2}
v_max_f32 v{Z+2}, v{Z+2}, v5
v_fma_f32 v{Z+4}, v{Z}, s78, -v{Z+2}
v_fma_f32 v{Z+5}, v{Z+1}, s78, -v{Z+2}
v_sub_f32 v{Z+3}, v5, v{Z+2}
v_exp_f32 v{Z+4}, v{Z+4}
v_exp_f32 v{Z+5}, v{Z+5}
v_exp_f32 v{Z+3}, v{Z+3}
v_add_f32 v{Z+6}, v{Z+4}, v{Z+5}
v_mul_f32 v{Z}, v{vD0}, v{Z+3}
v_mul_f32 v{Z+1}, v{vD1}, v{Z+3}
{dpt('v_add_f32', f'v{Z+6}', 0)}
v_cndmask_b32 v{Z+4}, v{Z+4}, v{Z}, s[76:77]
v_cndmask_b32 v{Z+5}, v{Z+5}, v{Z+1}, s[76:77]
{dpt('v_add_f32', f'v{Z+6}', 1)}
v_fmac_f32 v{Z+6}, v6, v{Z+3}
s_branch L_s_norm""")
        G.tick(5)
        a(f"""L_s_nolate:
s_barrier
v_mov_b32 v{X}, -1
v_mov_b32 v{X+1}, -1
ADV s56 s64 {L_LOC} 2
ADV s57 s65 {L_LOC} 2
buffer_store_dwordx2 v[{X}:{X+1}], v{vES}, {WS}, s56 offen LOCAL
buffer_store_dword v{X}, v{vLS}, {WS}, s57 offen LOCAL
buffer_store_dwordx4 v[{KH}:{KH+3}], v{vL16}, {WS}, s69 offen LOCAL
buffer_store_dwordx2 v[{KH+4}:{KH+5}], v{vKH}, {WS}, s70 offen LOCAL
s_add_u32 s73, {sSEG}, 2
s_min_u32 s73, s73, {NSEG}
s_waitcnt vmcnt(5)
v_cmp_gt_u32 vcc, {0 if G.diag & 2 else 's73'}, v2
s_cbranch_vccnz L_s_kwait
L_s_kok:
""")
        for t in ktl: a(t)
        a(f"""ADV s69 s69 {L_KM}
ADV s70 s70 {L_KM}
ADV s64 s64 {L_LOC}
ADV s65 s65 {L_LOC}
ADV s71 s71 {L_LOC}
""")
        G.flush(8, vt=(4, 7))
        G.stamp(sSEG, vt=(4, 7))
        if G.prof == 4:
            for k, sl in ((1, 11), (8, 12), (63, 13)):
                l = a.label('L_ds')
                a(f's_lshl_b32 s56, {sSEG}, 8\ns_add_u32 s56, s56, {sROLE}\ns_add_u32 s56, s56, {sW}\ns_cmp_eq_u32 s56, {k << 8}\ns_cbranch_scc0 {l}')
                G.dstamp(sl); a(f'{l}:')
        a(f's_add_u32 {sSEG}, {sSEG}, 1\ns_cmp_lt_u32 {sSEG}, {NSEG}\ns_cbranch_scc1 L_s_loop\ns_waitcnt vmcnt(0)')
        G.set_flag('s66', sSEG, 'v4', f'v{vZ}', 'LOCAL')
        G.stamp(3)
        a('s_branch L_end\nL_s_kwait:')
        G.wait_flags(f'v{vFL}', 'v2', 's73')
        a('s_branch L_s_kok')
        exact()
    G.two_flavours('s', main)

def roleV(G):
    a = G.a
    a('L_roleV:')
    if G.disabled('V'): return
    vT, vIDX, vG4, vG2, vL4, vL2, vA, vRES, vTW, vTW3, vL16, vZS, vA1, vA2, vA3 = range(8, 23)
    SEL = 0
    AB = 24
    AC = 56
    POL = 68
    X = 80
    SB = 88
    W0 = 104
    order = [(tau, t) for tau in range(2) for t in range(3)] + [(tau, t) for tau in range(2, 10) for t in range(2)] + [(tau, 2) for tau in range(2, 10)]
    lds_set = [order[n] for n in (5, 8, 11, 14, 17, 20, 23, 26, 29)]
    RESW = len(lds_set) * 2048
    RES, MST, TT = 0, 73728, 83968
    loc = {}; nr = 0
    wo = {}
    for t3 in range(3):
        for c in range(10): wo[t3, c] = W0 + 8 * nr; nr += 1
    for key in order:
        if key in lds_set: loc[key] = ('l', lds_set.index(key) * 2048)
        else: loc[key] = ('r', W0 + 8 * nr); nr += 1
    assert W0 + 8 * nr <= 512
    a(f'''
s_sub_u32 {sIDX}, {sROLE}, {R_V}
v_lshlrev_b32 v{vL16}, 4, v1
v_and_b32 v4, 31, v1
v_lshlrev_b32 v4, 4, v4
v_lshrrev_b32 v5, 5, v1
v_lshl_add_u32 v{vZS}, v5, 13, v4
s_mul_i32 s64, {sW}, 81920
s_lshr_b32 s56, {sIDX}, 2
s_lshl_b32 s56, s56, 10
s_add_u32 s64, s64, s56
s_and_b32 s56, {sIDX}, 1
s_lshl_b32 s56, s56, 9
s_add_u32 s64, s64, s56
s_and_b32 s56, {sIDX}, 2
s_lshl_b32 s56, s56, 2
s_add_u32 s64, s64, s56
s_add_u32 s64, s64, {LZ}
v_mov_b32 v4, -1
v_mov_b32 v5, -1
''')
    for extra in (0, 1 << L_LOC):
        for p in range(5):
            a(f's_add_u32 s56, s64, {extra + p * 16384}\nbuffer_store_dwordx2 v[4:5], v{vZS}, {WS}, s56 offen sc1')
    G.arrive()
    G.srd(12, P_WO, 32 * 245760); G.srd(16, P_WV, 640 * 12288)
    a(f'''s_mul_i32 s57, {sW}, 320
v_lshlrev_b32 v13, 4, v1
v_and_b32 v4, 1, v2
v_lshlrev_b32 v4, 5, v4
v_lshrrev_b32 v5, 3, v3
v_lshl_add_u32 v4, v5, 4, v4
v_lshrrev_b32 v5, 1, v2
v_lshl_add_u32 v4, v5, 2, v4
v_bfe_u32 v5, v3, 2, 1
v_add_u32 v4, v4, v5
v_mul_u32_u24 v4, 1280, v4
v_and_b32 v5, 3, v3
v_lshl_add_u32 v4, v5, 3, v4
v_add_u32 v29, s57, v4''')
    def consume(b):
        for c in range(10):
            for q2 in range(4):
                a(f'ds_read_b64_tr_b16 {vr(wo[b, c] + 2 * q2, 2)}, v29 offset:{(8 * (q2 >> 1) + 2 * (q2 & 1)) * 1280 + c * 32}')
    G.wo_load(64, 2, 'v29', consume)
    a(f's_mul_i32 s71, {sW}, {RESW}\nv_add_u32 v{vRES}, s71, v{vL16}\nv_mov_b32 v0, v{vZS}')
    head_slab_load(G, [('s[16:19]', lambda t, tl: loc[t, tl])], 19, vRES, 32)
    a(f'v_mov_b32 v{vZS}, v0')
    G.await_all()
    a('s_barrier')
    idx_setup(G, vIDX)
    mpoll_setup(G, vG4, vG2, vL4, vL2, sSELV, MST)
    a(f'''
v_add_u32 v{vA}, {MST}, v{vL16}
s_lshr_b32 s56, {sW}, 1
s_lshl_b32 s57, s56, 11
s_and_b32 s58, {sW}, 1
s_lshl_b32 s59, s58, 3
s_add_u32 s57, s57, s59
s_add_u32 s57, s57, {TT}
v_add_u32 v{vTW}, s57, v{vL16}
s_lshl_b32 s56, s56, 3
s_add_u32 s56, s56, {TT + 1024}
v_add_u32 v{vTW3}, s56, v{vL16}
v_lshrrev_b32 v4, 3, v3
v_cmp_eq_u32 s[76:77], s58, v4
s_lshr_b32 s56, {sIDX}, 3
s_lshl_b32 s79, s56, 7
s_add_u32 s79, s79, {HC}
s_lshl_b32 s71, s56, 14
s_add_u32 s71, s71, {LM}
v_mov_b32 v23, 0
s_mov_b32 {sSEG}, 0
v_and_b32 v4, 1, v2
v_lshlrev_b32 v4, 2, v4
v_sub_u32 v5, v3, v4
v_mov_b32 v6, 0x3f80
v_mov_b32 v7, 0x3f800000
''')
    for hh in range(4):
        k0 = 2 * (hh & 1) + 8 * (hh >> 1)
        a(f'''v_cmp_eq_u32 vcc, {k0}, v5
v_cmp_eq_u32 s[56:57], {k0 + 1}, v5
s_nop 1
v_cndmask_b32 v{SEL + hh}, 0, v6, vcc
v_cndmask_b32 v{SEL + hh}, v{SEL + hh}, v7, s[56:57]''')
    a(f'''s_lshl_b32 s56, {sIDX}, 2
s_add_u32 s56, s56, {sW}
s_mul_i32 s65, s56, 10240
s_add_u32 s65, s65, {VO + 2 * L_VO}
s_mul_i32 s66, s56, 3072
s_add_u32 s66, s66, {QT + QKV_SZ + L_Q}''')
    nl = len(lds_set)
    a(f'v_xor_b32 v{vA1}, 2048, v{vL4}\nv_xor_b32 v{vA2}, 4096, v{vL4}\nv_xor_b32 v{vA3}, 6144, v{vL4}')
    def main():
        a('L_v_loop:')
        G.tick(0)
        q = LQ(a)
        def wread(i):
            b = SB + (i % 2) * 8
            q.op(f'ds_read_b128 {vr(b, 4)}, v{vRES} offset:{i * 2048}')
            q.op(f'ds_read_b128 {vr(b + 4, 4)}, v{vRES} offset:{i * 2048 + 1024}', ('w', i))
        wread(0); wread(1)
        for i in range(12): a(f'v_mov_b32 v{AC + i}, 0')
        q.drain()
        def mload(b):
            a(f"""buffer_load_dwordx4 v[{b}:{b+3}], v{vG4}, {WS}, s71 offen sc1
buffer_load_dwordx4 v[{b+4}:{b+7}], v{vG4}, {WS}, s71 offen offset:1024 sc1
buffer_load_dwordx2 v[{b+8}:{b+9}], v{vG2}, {WS}, s71 offen sc1""")
        def mwrite(b):
            a(f"""ds_write_b128 v{vL4}, v[{b}:{b+3}]
ds_write_b128 v{vL4}, v[{b+4}:{b+7}] offset:1024
ds_write_b64 v{vL2}, v[{b+8}:{b+9}]""")
        G.wait_flags('v23', 'v4', sSEG, sleep=G.vsl, soff='s79')
        if G.vdl: a(f's_sleep {G.vdl}')
        a(f's_mov_b32 {sSPIN}, {SPIN}\ns_branch L_v_poll\nL_v_poll_z:\ns_nop 7')
        for i in range(12): a(f'v_mov_b32 v{AC + i}, 0')
        a('L_v_poll:')
        mload(POL)
        b = POL
        a(f's_sub_u32 {sSPIN}, {sSPIN}, 1\ns_cbranch_scc1 L_fail\ns_waitcnt vmcnt(0)\nv_max3_u32 v{vT}, v{b+3}, v{b+7}, v{b+9}\nv_cmp_eq_u32 vcc, -1, v{vT}\ns_cbranch_vccnz L_v_poll')
        G.tick(1)
        sched = {}
        def at(n, f): sched.setdefault(n, []).append((lambda: a(f)) if isinstance(f, str) else f)
        cv = lambda d, s_: f'v_cvt_pk_bf16_f32 v{d}, v{s_}, v{s_+1}'
        sel = f'v[{SEL}:{SEL+3}]'
        wr = [f'ds_write_b128 v{vL4}, v[{b}:{b+3}]', f'ds_write_b128 v{vL4}, v[{b+4}:{b+7}] offset:1024', f'ds_write_b64 v{vL2}, v[{b+8}:{b+9}]']
        ck = [f'v_max3_u32 v{vT}, v{b}, v{b+1}, v{b+2}', f'v_max3_u32 v{vT}, v{vT}, v{b+4}, v{b+5}', f'v_max3_u32 v{vT}, v{vT}, v{b+6}, v{b+8}', f'v_cmp_eq_u32 vcc, -1, v{vT}']
        def ard(t):
            ad, off = ((vA1, vA2, vA3)[(t >> 1) - 1], (t & 1) * 1024) if t < 8 else (vA, t * 1024)
            q.op(f'ds_read_b128 {vr(AB + (t - 2) * 4, 4)}, v{ad} offset:{off}', ('a', t))
        for n in range(3): at(n, lambda n=n: q.op(wr[n], 'mw'))
        for n in range(4): at(n, ck[n])
        at(4, 's_cbranch_vccnz L_v_poll_z')
        at(4, lambda: (q.need('mw'), a('s_barrier'), ard(2), ard(3), ard(4)))
        for t in range(5, 10): at(2 * t - 4, lambda t=t: ard(t))
        grp = [(68, 72), (56, 60), (40, 44), (48, 52), (64, 36)]
        zer = lambda r: f'v_mov_b32 v{r}, 0'
        for i in range(8): at(9 + i, zer(68 + i))
        at(24, cv(X, AC)); at(24, cv(X + 1, AC + 2)); at(24, cv(X + 2, AC + 4)); at(24, cv(X + 3, AC + 6))
        at(25, f's_nop 0\n{MF32} v[{X+4}:{X+7}], v[{X}:{X+3}], {sel}, 0')
        for i in range(3): at(25 + i, zer(56 + i))
        at(28, cv(X, X + 4)); at(28, cv(X + 1, X + 6)); at(28, lambda: q.op(f'ds_write_b64 v{vTW}, v[{X}:{X+1}]', 't1'))
        def mid():
            for i in range(3, 8): a(zer(56 + i))
            a(zer(40) + '\n' + zer(41) + '\n' + zer(42))
            a(cv(4, AC + 8) + '\n' + cv(5, AC + 10) + '\n' + cv(6, AC + 8) + '\n' + cv(7, AC + 10))
            q.need('t1'); a('s_barrier')
            G.tick(2)
            a(f'{MF32} v[{X+4}:{X+7}], v[4:7], {sel}, 0')
            q.op(f'ds_read_b128 v[{AB}:{AB+3}], v{vA} offset:{TT - MST}', ('m', 0))
            q.op(f'ds_read_b128 v[{AB+4}:{AB+7}], v{vA} offset:{TT - MST + 2048}', ('m', 2))
            for i in range(3, 8): a(zer(40 + i))
            a('s_nop 0\n' + cv(X + 2, X + 4) + '\n' + cv(X + 3, X + 6) + '\ns_mov_b64 exec, s[76:77]')
            q.op(f'ds_write_b64 v{vTW3}, v[{X+2}:{X+3}]', 't2')
            a('s_mov_b64 exec, -1')
        at(29, mid)
        vm = {0: AB, 2: AB + 4, 1: AB + 8}
        o2 = [(p, t3) for p in range(3) for t3 in (0, 2)] + [(p, 1) for p in range(3)] + [(p, t3) for p in (3, 4) for t3 in range(3)]
        at(35, lambda: (q.need('t2'), a('s_barrier'), q.op(f'ds_read_b128 v[{AB+8}:{AB+11}], v{vA} offset:{TT - MST + 1024}', ('m', 1))))
        for i, r in enumerate(list(range(48, 56)) + list(range(64, 68)) + list(range(36, 40))): at(30 + i, zer(r))
        last = {p: 30 + 2 * k + 1 for k, (p, t3) in enumerate(o2)}
        n0 = 0
        for p in range(5):
            A0, A1 = grp[p]; T_ = (X, SB)[p & 1]; F = SB + 4 + (p & 1) * 4; d = SB + 12 + (p & 1) * 2
            n0 = max(last[p] + 3, n0 + 3)
            at(n0, cv(T_, A0)); at(n0, cv(T_ + 1, A0 + 2)); at(n0 + 1, cv(T_ + 2, A1)); at(n0 + 1, cv(T_ + 3, A1 + 2))
            at(n0 + 2, f's_nop 0\n{MF32} v[{F}:{F+3}], {sel}, v[{T_}:{T_+3}], 0')
            at(n0 + 5, cv(d, F)); at(n0 + 5, cv(d + 1, F + 2))
            at(n0 + 5, f's_add_u32 s56, s64, {p * 16384}\nbuffer_store_dwordx2 v[{d}:{d+1}], v{vZS}, {WS}, s56 offen LOCAL')
        for n in range(60):
            if n < 30:
                tau, tl = order[n]
                kind, d = loc[tau, tl]
                if kind == 'l':
                    i = d // 2048; d = SB + (i % 2) * 8; q.need(('w', i))
                if tau < 2: A = POL + 4 * tau
                else:
                    q.need(('a', tau)); A = AB + (tau - 2) * 4
                a(f'{SMF} {vr(AC + 4 * tl, 4)}, {vr(A, 4)}, {vr(d, 8)}, v{vIDX}')
                if kind == 'l' and i + 2 < nl: wread(i + 2)
            else:
                p, t3 = o2[(n - 30) >> 1]; qq = n & 1
                q.need(('m', t3))
                a(f'{SMF} {vr(grp[p][qq], 4)}, {vr(vm[t3], 4)}, {vr(wo[t3, 2 * p + qq], 8)}, v{vIDX}')
            for f in sched.pop(n, []): f()
        for n in range(60, 72):
            a('s_nop 2')
            for f in sched.pop(n, []): f()
            if not sched: break
        G.tick(3)
        a('v_mov_b32 v4, -1\nv_mov_b32 v5, -1')
        a(f'ADV s57 s64 {L_LOC} 2')
        for p in range(5):
            a(f's_add_u32 s56, s57, {p * 16384}\nbuffer_store_dwordx2 v[4:5], v{vZS}, {WS}, s56 offen LOCAL')
        G.flush(4, vt=(4, 5))
        G.stamp(sSEG, vt=(4, 5))
        a(f'''ADV s64 s64 {L_LOC}
ADV s71 s71 {L_LOC}
s_add_u32 {sSEG}, {sSEG}, 1
s_cmp_lt_u32 {sSEG}, {NSEG}
s_cbranch_scc1 L_v_loop''')
        G.stamp(3)
        a('s_branch L_end')
    G.two_flavours('v', main)


def roleT(G):
    a = G.a
    a('L_roleT:')
    if G.disabled('T'): return
    vZ, vL16, vFQ, vFS, vPM, vNI, vPT = 8, 9, 10, 11, 12, 13, 14
    DA, DB, DM = 16, 20, 24
    X = 28
    MB_ = 64
    FRG = 256
    a(f"""
s_sub_u32 {sIDX}, {sROLE}, {R_T}
s_lshl_b32 s66, {sIDX}, 2
s_add_u32 s66, s66, {sW}
s_lshr_b32 s64, s66, 1
s_and_b32 s65, {sW}, 1
s_lshl_b32 s66, s66, 7
s_add_u32 s66, s66, {FL + 128 * F_T}
v_mov_b32 v{vZ}, 0
""")
    G.set_flag('s66', 0, 'v4', f'v{vZ}')
    if G.probe:
        a(f'''
s_and_b32 s57, {sW}, 1
s_lshl_b32 s56, s57, 13
s_lshl_b32 s58, s64, 8
s_add_u32 s56, s56, s58
s_add_u32 s56, s56, {PG_PROBE}
s_getreg_b32 s58, hwreg(HW_REG_XCC_ID)
s_bfe_u32 s58, s58, 0x10002
s_xor_b32 s57, s57, s58
s_lshl_b32 s57, s57, 2
s_mov_b32 s58, 65535
s_mov_b32 s59, 0
s_waitcnt vmcnt(0)
L_t_probe:
s_memtime s[68:69]
s_waitcnt lgkmcnt(0)
buffer_store_dword v{vZ}, v{vZ}, {WS}, s56 offen sc1
s_waitcnt vmcnt(0)
s_memtime s[70:71]
s_waitcnt lgkmcnt(0)
s_sub_u32 s67, s70, s68
s_min_u32 s58, s58, s67
s_add_u32 s59, s59, 1
s_cmp_lt_u32 s59, 5
s_cbranch_scc1 L_t_probe
s_sub_u32 s58, 65535, s58
v_mov_b32 v4, s58
s_mov_b64 exec, 1
buffer_atomic_umax v4, v{vZ}, {DBG}, s57 offen offset:16
s_mov_b64 exec, -1
''')
    G.arrive()
    if G.diag & 2:
        a('s_branch L_end'); return
    G.await_all()
    a(f"""
v_lshlrev_b32 v{vL16}, 4, v1
v_min_u32 v4, 5, v1
v_add_u32 v5, 93, v4
v_cmp_gt_u32 vcc, 3, v4
s_mul_i32 s56, s64, 3
s_add_u32 s56, s56, {F_XW + FL // 128}
v_cndmask_b32 v4, v5, v4, vcc
v_add_lshl_u32 v{vFQ}, v4, s56, 7
v_and_b32 v4, 3, v1
s_lshl_b32 s56, s64, 2
s_add_u32 s56, s56, {F_S + FL // 128}
v_add_lshl_u32 v{vFS}, v4, s56, 7
v_lshrrev_b32 v4, 1, v2
v_lshl_add_u32 v4, v4, 4, v3
v_lshlrev_b32 v4, 4, v4
v_and_b32 v5, 1, v2
v_lshl_add_u32 v{vPM}, v5, 2, v4
v_mov_b32 v{vNI}, 0xff800000
s_mul_i32 s67, s64, 12288
s_add_u32 s67, s67, {QT}
s_lshl_b32 s74, s65, 10
s_mul_i32 s68, s64, 6144
s_add_u32 s68, s68, {KM}
s_and_b32 s59, s64, 7
s_lshl_b32 s69, s59, 10
s_lshr_b32 s56, s59, 1
s_lshl_b32 s56, s56, 10
s_and_b32 s57, s59, 1
s_lshl_b32 s58, s57, 3
s_add_u32 s56, s56, s58
s_add_u32 s56, s56, 8192
s_cmp_eq_u32 s65, 0
s_cselect_b32 s69, s56, s69
s_lshl_b32 s70, s65, 11
s_lshr_b32 s56, s59, 2
s_lshl_b32 s56, s56, 10
s_add_u32 s70, s70, s56
s_lshl_b32 s57, s57, 9
s_add_u32 s70, s70, s57
s_bfe_u32 s56, s59, 0x10001
s_lshl_b32 s56, s56, 3
s_add_u32 s70, s70, s56
s_add_u32 s70, s70, 12288
s_lshr_b32 s56, s64, 3
s_lshl_b32 s56, s56, 14
s_add_u32 s56, s56, {PT}
s_add_u32 s69, s69, s56
s_add_u32 s70, s70, s56
s_mov_b32 s78, {f2u(C_SCALE):#x}
v_lshlrev_b32 v4, 2, v2
s_lshl_b32 s56, s65, 4
v_add_u32 v6, s56, v3
""")
    for r in range(4):
        a(f'v_add_u32 v5, {r}, v4\nv_cmp_le_u32 s[{24 + 2*r}:{25 + 2*r}], v5, v6\nv_add_u32 v5, {16 + r}, v4\nv_cmp_le_u32 s[{32 + 2*r}:{33 + 2*r}], v5, v6')
    a(f's_mov_b32 {sSEG}, 0\ns_mov_b32 s73, 1')
    fr = lambda buf, kind, eb: FRG + 72 * buf + (kind * 6 + eb) * 4
    def qkload(buf):
        l = a.label('L_t_skip')
        for kind in range(3):
            if kind == 2: a(f's_cmp_eq_u32 s65, 0\ns_cbranch_scc1 {l}')
            for j in range(3):
                if kind == 0: a(f's_add_u32 s56, s67, s74\ns_add_u32 s56, s56, {j * 4096}')
                else: a(f's_add_u32 s56, s67, {QKV_SZ + j * 4096 + (kind - 1) * 1024}')
                for i in range(2):
                    a(f'buffer_load_dwordx4 {vr(fr(buf, kind, 2 * j + i), 4)}, v{vL16}, {WS}, s56 offen offset:{i * 2048} sc1')
        a(f'{l}:\nADV s67 s67 {L_Q}')
    if G.warm:
        for k in range(4):
            a('s_add_u32 s56, s68, 4096')
            for i in range(6): a(f'buffer_load_dwordx4 {vr(MB_, 4)}, v{vL16}, {WS}, {"s68" if i < 4 else "s56"} offen offset:{(i & 3) * 1024} sc1')
            a(f'ADV s68 s68 {L_KM}')
    G.wait_flags(f'v{vFQ}', 'v4', 's73')
    qkload(0)
    def main():
        a('L_t_loop:')
        for buf in range(2):
            G.tick(0)
            a(f's_add_u32 s73, {sSEG}, 2\ns_min_u32 s73, s73, {NSEG}\ns_waitcnt vmcnt(0)')
            G.set_flag('s66', sSEG, 'v4', f'v{vZ}', 'LOCAL')
            lab = a.label('L_t_la')
            a(f'buffer_load_dword v4, v{vFQ}, {WS}, 0 offen sc1\ns_mov_b32 s75, s73\ns_waitcnt vmcnt(0)\nv_cmp_gt_u32 vcc, s73, v4\ns_mov_b32 s76, 1\ns_cbranch_vccnz {lab}\ns_mov_b32 s76, 0')
            qkload(1 - buf)
            a(f'{lab}:\ns_add_u32 s73, {sSEG}, 1')
            G.tick(1)
            for eb in range(6):
                for D, kind in ((DA, 1), (DB, 2)):
                    a(f'{MF32} {vr(D, 4)}, {vr(fr(buf, kind, eb), 4)}, {vr(fr(buf, 0, eb), 4)}, {"0" if eb == 0 else vr(D, 4)}')
            G.wait_flags(f'v{vFS}', 'v4', 's73', sleep=1)
            G.tick(2)
            a('s_add_u32 s56, s68, 4096')
            for i in range(6):
                a(f'buffer_load_dwordx4 {vr(MB_ + 4 * i, 4)}, v{vL16}, {WS}, {"s68" if i < 4 else "s56"} offen offset:{(i & 3) * 1024} sc1')
            for r in range(4):
                a(f'v_cndmask_b32 v{DA + r}, v{vNI}, v{DA + r}, s[{24 + 2*r}:{25 + 2*r}]\nv_cndmask_b32 v{DB + r}, v{vNI}, v{DB + r}, s[{32 + 2*r}:{33 + 2*r}]')
            M = X
            a(f"""v_max3_f32 v{M}, v{DA}, v{DA+1}, v{DA+2}
v_max3_f32 v{M}, v{M}, v{DA+3}, v{DB}
v_max3_f32 v{M}, v{M}, v{DB+1}, v{DB+2}
v_max_f32 v{M}, v{M}, v{DB+3}
""")
            for eb in range(6):
                a(f's_waitcnt vmcnt({5 - eb})\n{MF32} {vr(DM, 4)}, {vr(MB_ + 4 * eb, 4)}, {vr(fr(buf, 0, eb), 4)}, {"0" if eb == 0 else vr(DM, 4)}')
            a(f's_nop 7\nv_max3_f32 v{M}, v{M}, v{DM}, v{DM+1}')
            def allred(op, A):
                for sw in ('v_permlane16_swap_b32', 'v_permlane32_swap_b32'):
                    a(f'v_mov_b32 v{X+2}, v{A}\ns_nop 1\n{sw} v{A}, v{X+2}\n{op} v{A}, v{A}, v{X+2}')
            allred('v_max_f32', M)
            a(f'v_mul_f32 v{M}, s78, v{M}')
            vals = [DA + r for r in range(4)] + [DB + r for r in range(4)] + [DM, DM + 1]
            for v in vals: a(f'v_fma_f32 v{v}, v{v}, s78, -v{M}')
            for v in vals: a(f'v_exp_f32 v{v}, v{v}')
            L = X + 1
            a(f'v_add_f32 v{L}, v{vals[0]}, v{vals[1]}')
            for v in vals[2:]: a(f'v_add_f32 v{L}, v{L}, v{v}')
            allred('v_add_f32', L)
            a(f'v_rcp_f32 v{L}, v{L}\ns_cmp_eq_u32 s65, 0')
            for v in vals: a(f'v_mul_f32 v{v}, v{v}, v{L}')
            O1 = 32
            l = a.label('L_t_st')
            for i in range(5): a(f'v_cvt_pk_bf16_f32 v{O1 + i}, v{vals[2*i]}, v{vals[2*i+1]}')
            a(f"""buffer_store_dword v{O1+4}, v{vPM}, {WS}, s70 offen LOCAL
s_cbranch_scc1 {l}
buffer_store_dwordx4 v[{O1}:{O1+3}], v{vL16}, {WS}, s69 offen LOCAL
s_branch {l}_e
{l}:
buffer_store_dwordx2 v[{O1}:{O1+1}], v{vL16}, {WS}, s69 offen LOCAL
{l}_e:
ADV s68 s68 {L_KM}
ADV s69 s69 {L_PT}
ADV s70 s70 {L_PT}
""")
            G.tick(3)
            G.flush(4); G.stamp(sSEG)
            a(f's_add_u32 {sSEG}, {sSEG}, 1\ns_cmp_eq_u32 s76, 0\ns_cbranch_scc1 {lab}_e')
            G.wait_flags(f'v{vFQ}', 'v4', 's75', first=lambda: G.set_flag('s66', sSEG, 'v5', f'v{vZ}', 'LOCAL'))
            qkload(1 - buf)
            a(f'{lab}_e:')
        a(f's_cmp_lt_u32 {sSEG}, {NSEG}\ns_cbranch_scc1 L_t_loop\ns_waitcnt vmcnt(0)')
        G.set_flag('s66', sSEG, 'v4', f'v{vZ}', 'LOCAL')
        G.stamp(3)
        a('s_branch L_end')
    G.two_flavours('t', main)

def roleO(G):
    a = G.a
    a(f'L_roleO:\ns_lshl_b32 s56, {sROLE}, 2\ns_add_u32 s56, s56, {sW}\ns_cmp_eq_u32 s56, {4 * R_O}\ns_cselect_b32 s56, 0, 0x40000000\nv_mov_b32 v12, s56\ns_mov_b32 s72, {FL + 128 * F_O}')
    G.set_flag('s72', 0, 'v4', 'v12')
    G.arrive()
    a(f's_sub_u32 {sIDX}, {sROLE}, {R_O}\ns_cmp_lt_u32 {sIDX}, {0 if G.diag & 2 else 10}\ns_cbranch_scc0 L_end')
    G.srd(12, P_X, 2048 * 1280); G.srd(20, P_OUT, 2048 * 1280)
    G.await_all()
    vXR, vOUT, vFB, vFL = 8, 9, 10, 11
    B = 16
    a(f"""
v_and_b32 v4, 31, v1
v_lshlrev_b32 v4, 4, v4
v_lshrrev_b32 v5, 5, v1
v_lshl_add_u32 v{vXR}, v5, 13, v4
v_and_b32 v6, 7, v1
v_bfe_u32 v7, v1, 3, 2
v_mul_u32_u24 v{vOUT}, 1280, v6
v_lshl_add_u32 v{vOUT}, v7, 3, v{vOUT}
v_lshl_add_u32 v{vOUT}, v5, 5, v{vOUT}
v_lshlrev_b32 v{vFB}, 10, v5
v_lshl_add_u32 v{vFB}, v7, 7, v{vFB}
v_lshl_add_u32 v{vFB}, v6, 3, v{vFB}
s_lshl_b32 s64, {sIDX}, 15
s_lshl_b32 s56, {sW}, 9
s_add_u32 s64, s64, s56
s_add_u32 s64, s64, {XO}
s_lshl_b32 s65, {sIDX}, 12
s_lshr_b32 s57, {sW}, 1
s_lshl_b32 s56, s57, 9
s_add_u32 s65, s65, s56
s_and_b32 s56, {sW}, 1
s_lshl_b32 s56, s56, 6
s_add_u32 s65, s65, s56
s_add_u32 s65, s65, {FB}
s_mul_i32 s66, {sW}, 10240
s_lshl_b32 s56, {sIDX}, 7
s_add_u32 s66, s66, s56
v_and_b32 v4, 3, v1
v_mul_u32_u24 v5, 10, v4
s_add_u32 s56, {sIDX}, {PG_CP // 128}
v_add_lshl_u32 v5, v5, s56, 7
v_add_u32 v5, {sSELM}, v5
s_lshl_b32 s56, {sIDX}, 3
s_add_u32 s56, s56, s57
v_lshl_add_u32 v4, v4, 1, s56
v_mul_u32_u24 v6, 205, v4
v_lshrrev_b32 v6, 11, v6
v_mul_u32_u24 v7, 10, v6
v_sub_u32 v7, v4, v7
v_and_b32 v7, 3, v7
v_lshl_add_u32 v6, v6, 2, v7
v_add_u32 v6, {F_FD + FL // 128}, v6
v_lshlrev_b32 v6, 7, v6
v_cmp_gt_u32 vcc, 4, v1
s_mov_b32 {sSEG}, 1
s_nop 0
v_cndmask_b32 v{vFL}, v6, v5, vcc
L_o_loop:
buffer_load_dwordx2 v[{B+32}:{B+33}], v{vOUT}, {SA}, s66 offen
buffer_load_dwordx2 v[{B+34}:{B+35}], v{vOUT}, {SA}, s66 offen offset:64
""")
    G.wait_flags(f'v{vFL}', 'v4', sSEG, sleep=G.fsl)
    G.set_flag('s72', sSEG, 'v4', 'v12')
    for h in range(2):
        for xx in range(2):
            a(f's_add_u32 s56, s64, {h * 16384 + xx * 4096}')
            for k in range(2):
                r = B + h * 16 + (xx * 2 + k) * 4
                a(f'buffer_load_dwordx4 v[{r}:{r+3}], v{vXR}, {WS}, s56 offen offset:{k * 2048} sc1')
        a(f'buffer_load_dwordx2 v[{B+36+2*h}:{B+37+2*h}], v{vFB}, {WS}, s65 offen offset:{h * 2048} sc1')
    for h in range(2):
        r = B + h * 16; T_ = B + 40
        a(f's_waitcnt vmcnt({5 if h == 0 else 1})')
        for i, src in enumerate((B + 32 + 2*h, B + 33 + 2*h, B + 36 + 2*h, B + 37 + 2*h)):
            a(f'v_lshlrev_b32 v{T_ + 2*i}, 16, v{src}\nv_and_b32 v{T_ + 2*i + 1}, 0xffff0000, v{src}')
        for i in range(4):
            a(f'v_add_f32 v{r+i}, v{r+i}, v{r+4+i}\nv_add_f32 v{r+8+i}, v{r+8+i}, v{r+12+i}\nv_add_f32 v{T_+i}, v{T_+i}, v{T_+4+i}\nv_add_f32 v{r+i}, v{r+i}, v{r+8+i}\nv_add_f32 v{r+i}, v{r+i}, v{T_+i}')
        a(f'v_cvt_pk_bf16_f32 v{r+4}, v{r}, v{r+1}\nv_cvt_pk_bf16_f32 v{r+5}, v{r+2}, v{r+3}\nbuffer_store_dwordx2 v[{r+4}:{r+5}], v{vOUT}, {SC}, s66 offen offset:{64 * h}')
    a(f'ADV s64 s64 {L_XO}\nADV s65 s65 {L_FB}\ns_add_u32 s66, s66, 40960\ns_add_u32 {sSEG}, {sSEG}, 1\ns_cmp_le_u32 {sSEG}, {NSEG}\ns_cbranch_scc1 L_o_loop')
    G.dstamp(9)
    G.stamp(3)
    a('s_branch L_end')

def emit(G):
    from roleC import roleC
    roleS(G); roleC(G); roleV(G); roleT(G); roleO(G)
```

```python
from gen import *

def head_slab_load(G, mats, vb, vres, park, arrive=False):
    a = G.a
    for u in range(192): assert (u * 171) >> 12 == u // 24
    a(f's_mul_i32 s58, {sIDX}, 384')
    for i in range(3):
        a(f"""v_add_u32 v4, {64 * i}, v1
v_mul_u32_u24 v5, 171, v4
v_lshrrev_b32 v5, 12, v5
v_mul_u32_u24 v6, 24, v5
v_sub_u32 v4, v4, v6
v_mul_u32_u24 v5, 12288, v5
v_lshl_add_u32 v5, v4, 4, v5
v_add_u32 v{vb + i}, s58, v5""")
    a(f"""v_lshrrev_b32 v4, 2, v3
v_lshl_add_u32 v4, v2, 3, v4
v_mul_u32_u24 v4, 384, v4
v_and_b32 v5, 3, v3
v_lshl_add_u32 v4, v5, 3, v4
s_lshr_b32 s56, {sW}, 1
s_lshl_b32 s56, s56, 1
s_add_u32 s56, s56, {sW}
s_lshl_b32 s56, s56, 6
s_lshl_b32 s57, {sW}, 5
s_add_u32 s57, s57, 128
v_add_u32 v{vb + 11}, s56, v4
v_add_u32 v{vb + 12}, s57, v4
s_mul_i32 s70, {sW}, 12288""")
    for i in range(4):
        a(f's_xor_b32 s56, {sW}, {i}\ns_mul_i32 s56, s56, 12288\nv_add_u32 v{vb + 3 + 2*i}, s56, v{vb + 11}\nv_add_u32 v{vb + 4 + 2*i}, s56, v{vb + 12}')
    ng = 5 * len(mats)
    def issue(gi):
        srd = mats[gi // 5][0]; g = gi % 5
        if g < 4: a(f's_mul_i32 s72, {sW}, {4 * 393216}\ns_add_u32 s72, s72, {g * 393216}')
        else: a(f's_mul_i32 s72, {sW}, 393216\ns_add_u32 s72, s72, {16 * 393216}')
        for k in range(4):
            for i in range(3): G.dma(f'v{vb+i}', srd, 's72', 's70', (gi % 3) * 49152 + k * 3072 + i * 1024)
            if k < 3: a(f's_add_u32 s72, s72, {8 * 12288}')
    parked = {}
    base = 0
    tk = lambda i: a(f's_memrealtime s[{80 + 2*i}:{81 + 2*i}]') if G.diag & 16 else None
    tk(0); issue(0); issue(1); tk(1)
    if arrive: G.arrive_soon(24)
    for gi in range(ng):
        if gi == 3: tk(2)
        a(f's_waitcnt vmcnt({12 if gi + 1 < ng else 0})')
        if gi == 3: tk(3)
        if arrive and gi == 2: G.arrive_check('v7')
        a('s_barrier')
        if gi == 3: tk(4)
        if gi + 2 < ng: issue(gi + 2)
        if gi == 3: tk(5)
        if gi == 4: tk(6)
        nb = (gi % 3) * 49152
        if nb != base:
            for r in range(vb + 3, vb + 13): a(f'v_add_u32 v{r}, {nb - base}, v{r}')
            base = nb
        dest = mats[gi // 5][1]; g = gi % 5
        for i in range(4):
            b = g + 4 * i if g < 4 else 16 + i
            for tl in range(3):
                kind, d = dest(b >> 1, tl)
                if kind == 'l': d = parked.setdefault(d, park + 8 * len(parked))
                ad = (vb + 3 + 2 * i if g < 4 else vb + 11) + (tl == 2)
                off = (0 if g < 4 else i * 12288) + (tl & 1) * 32
                for hf in range(2):
                    a(f'ds_read_b64_tr_b16 {vr(d + 4 * (b & 1) + 2 * hf, 2)}, v{ad} offset:{off + hf * 1536}')
        a('s_waitcnt lgkmcnt(0)')
    a('s_barrier')
    if G.diag & 16:
        tk(7); a(f's_mov_b32 {sSEG}, 0'); G.prof = 2; G.flush(8, vt=(4, 5)); G.prof = 1
    for o, r in parked.items():
        a(f'ds_write_b128 v{vres}, {vr(r, 4)} offset:{o}\nds_write_b128 v{vres}, {vr(r + 4, 4)} offset:{o + 1024}')
    a('s_waitcnt lgkmcnt(0)')

def mpoll_setup(G, vg4, vg2, vl4, vl2, ssel, ldsbase):
    a = G.a
    a(f'''
s_lshl_b32 s56, {sW}, 11
v_lshl_add_u32 v{vl4}, v1, 4, s56
v_mov_b32 v{vg4}, v{vl4}
v_add_u32 v{vl4}, {ldsbase}, v{vl4}
s_lshl_b32 s56, {sW}, 9
v_lshl_add_u32 v{vl2}, v1, 3, s56
v_add_u32 v{vg2}, 8192, v{vl2}
v_add_u32 v{vl2}, {ldsbase + 8192}, v{vl2}
''')

def poll(G, load, use, n, nreg, A, B, vt, pipe=True, sleep=0):
    a = G.a; l = a.label('L_poll')
    a(f's_mov_b32 {sSPIN}, {SPIN}')
    if not pipe:
        a(f'{l}:')
        load(A)
        a(f's_sub_u32 {sSPIN}, {sSPIN}, 1\ns_cbranch_scc1 L_fail\ns_waitcnt vmcnt(0)')
        use(A)
        G.check(A if isinstance(A, list) else range(A, A + nreg), vt)
        if sleep: a(f's_cbranch_vccz {l}_d\ns_sleep {sleep}\ns_branch {l}\n{l}_d:')
        else: a(f's_cbranch_vccnz {l}')
    else:
        load(A)
        a(f'{l}:')
        load(B)
        a(f's_waitcnt vmcnt({n})')
        use(A); G.check(range(A, A + nreg), vt)
        a(f's_cbranch_vccz {l}_d')
        load(A)
        a(f's_sub_u32 {sSPIN}, {sSPIN}, 1\ns_cbranch_scc1 L_fail\ns_waitcnt vmcnt({n})')
        use(B); G.check(range(B, B + nreg), vt)
        a(f's_cbranch_vccnz {l}')
        a(f'{l}_d:')

def idx_setup(G, v):
    G.a(f'v_mov_b32 v4, 0x4444\nv_mov_b32 v5, 0xeeee\nv_cmp_gt_u32 vcc, 8, v3\ns_nop 1\nv_cndmask_b32 v{v}, v5, v4, vcc')

def ttile_addr(G, vw, vr_):
    G.a(f"""v_lshrrev_b32 v4, 1, v2
v_lshlrev_b32 v4, 3, v4
v_xor_b32 v4, v4, v3
v_lshlrev_b32 v4, 3, v4
v_lshl_add_u32 {vw}, v2, 7, v4
v_lshrrev_b32 v4, 2, v3
v_lshl_add_u32 v4, v2, 2, v4
v_bfe_u32 v5, v3, 1, 1
v_lshlrev_b32 v5, 3, v5
v_xor_b32 v4, v4, v5
v_lshlrev_b32 v4, 3, v4
v_and_b32 v5, 3, v3
v_lshl_add_u32 {vr_}, v5, 7, v4""")

SMF = 'v_smfmac_f32_16x16x64_bf16'
MF32 = 'v_mfma_f32_16x16x32_bf16'
MF16 = 'v_mfma_f32_16x16x16_bf16'

class Proj:
    def __init__(self, G, AB, SBUF, vA, vres, vidx, nbuf=3):
        self.G, self.AB, self.SBUF, self.vA, self.vres, self.vidx, self.nbuf = G, AB, SBUF, vA, vres, vidx, nbuf

class LQ:
    def __init__(self, a): self.a = a; self.n = 0; self.tag = {}; self.done = 0
    def op(self, ins, tag=None):
        self.a(ins); self.n += 1
        if tag is not None: self.tag[tag] = self.n
    def need(self, *tags):
        k = max(self.tag[t] for t in tags if t in self.tag) if any(t in self.tag for t in tags) else 0
        if k > self.done:
            self.a(f's_waitcnt lgkmcnt({min(15, self.n - k)})'); self.done = k
    def drain(self):
        self.a('s_waitcnt lgkmcnt(0)'); self.done = self.n

def roleS(G):
    a = G.a
    a('L_roleS:')
    if G.disabled('S'): return
    (vZ, vIDX, vG4, vG2, vL4, vL2, vA, vRES, vTW, vTR, vPW, vL16, vMW, vMR, vES, vLS, vFL, vKH, vD0, vD1, vA1, vA2, vA3, vPR) = range(8, 32)
    SQ, SK = 16, 124
    vT = 7
    AB = 32
    AQ = 44
    AK = 56
    KT = 68
    KH = 80
    QH = 86
    X = 92
    SB = 108
    Y = 126
    POLA = 98
    W0 = 128
    order = [(0, 0, t) for t in range(3)] + [(0, 1, t) for t in range(3)] + [(1, 0, t) for t in range(3)]
    order += [(0, tau, t) for tau in range(2, 7) for t in range(3)]
    order += [(0, tau, t) for tau in (7, 8, 9) for t in range(2)] + [(0, tau, 2) for tau in (7, 8, 9)] + [(1, 1, t) for t in range(3)]
    order += [(1, tau, t) for tau in (7, 8, 9, 2, 3) for t in range(3)]
    order += [(1, tau, t) for tau in (4, 5, 6) for t in range(2)] + [(1, tau, 2) for tau in (4, 5, 6)]
    assert len(set(order)) == 60
    lds_set = [order[n] for n in (6, 10, 15, 19, 24, 28, 33, 37, 42, 46, 51, 55)]
    nl = len(lds_set); RESW = nl * 2048
    RES, MST, TT, PMT, PMM, STG = 0, 98304, 108544, 120832, 125440, 98304
    assert 4 * RESW <= MST
    loc = {}; nr = 0
    for key in sorted(order):
        if key in lds_set: loc[key] = ('l', lds_set.index(key) * 2048)
        else: loc[key] = ('r', W0 + 8 * nr); nr += 1
    assert W0 + 8 * nr <= 512
    a(f"""
s_mov_b32 {sIDX}, {sROLE}
s_lshl_b32 s66, {sIDX}, 2
s_add_u32 s66, s66, {sW}
s_lshl_b32 s66, s66, 7
s_add_u32 s66, s66, {FL + 128 * F_S}
v_mov_b32 v{vZ}, 0
v_lshlrev_b32 v{vL16}, 4, v1
""")
    G.set_flag('s66', 0, 'v4', f'v{vZ}')
    a(f"""
s_lshl_b32 s64, {sIDX}, 9
s_add_u32 s64, s64, {LE}
s_lshr_b32 s65, {sIDX}, 2
s_lshl_b32 s65, s65, 10
s_and_b32 s56, {sIDX}, 1
s_lshl_b32 s56, s56, 8
s_add_u32 s65, s65, s56
s_and_b32 s56, {sIDX}, 2
s_lshl_b32 s56, s56, 1
s_add_u32 s65, s65, s56
s_add_u32 s65, s65, {LL}
v_mov_b32 v4, -1
v_mov_b32 v5, -1
v_lshlrev_b32 v6, 3, v1
v_lshrrev_b32 v7, 5, v1
v_lshl_add_u32 v7, v7, 8, v6
s_and_b32 s59, {sW}, 1
s_lshl_b32 s59, s59, {L_LOC}
s_add_u32 s56, s59, s64
s_add_u32 s57, s59, s65
buffer_store_dwordx2 v[4:5], v6, {WS}, s56 offen sc1
buffer_store_dword v4, v7, {WS}, s57 offen sc1
""")
    if not G.soon: G.arrive()
    G.srd(12, P_WQ, 640 * 12288); G.srd(16, P_WK, 640 * 12288)
    a(f's_mul_i32 s71, {sW}, {RESW}\nv_add_u32 v{vRES}, s71, v{vL16}\nv_mov_b32 v0, v{vL16}')
    head_slab_load(G, [(SA, lambda t, tl: loc[0, t, tl]), ('s[16:19]', lambda t, tl: loc[1, t, tl])][::-1 if G.kfirst else 1], 16, vRES, 32, arrive=G.soon)
    a(f'v_mov_b32 v{vL16}, v0')
    G.dstamp(10)
    G.await_all()
    a('s_barrier')
    idx_setup(G, vIDX)
    mpoll_setup(G, vG4, vG2, vL4, vL2, sSELM, MST)
    a(f"""
v_xor_b32 v{vA1}, 2048, v{vL4}
v_xor_b32 v{vA2}, 4096, v{vL4}
v_xor_b32 v{vA3}, 6144, v{vL4}
v_add_u32 v{vA}, {MST}, v{vL16}
""")
    a(f"""
v_and_b32 v4, 1, v2
v_lshlrev_b32 v4, 2, v4
v_and_b32 v5, 7, v3
v_sub_u32 v5, v5, v4
v_lshrrev_b32 v6, 2, v3
v_and_b32 v7, 3, v3
v_lshl_add_u32 v6, v6, 1, v7
v_lshrrev_b32 v7, 1, v7
v_lshl_add_u32 v6, v7, 4, v6
v_sub_u32 v6, v6, v4
v_mov_b32 v4, 0x3f80
v_mov_b32 v7, 0x3f800000
""")
    for dst, src in ((SQ, 5), (SK, 6)):
        for hh in range(2):
            a(f"""v_cmp_eq_u32 vcc, {2 * hh}, v{src}
v_cmp_eq_u32 s[56:57], {2 * hh + 1}, v{src}
s_nop 1
v_cndmask_b32 v{dst + hh}, 0, v4, vcc
v_cndmask_b32 v{dst + hh}, v{dst + hh}, v7, s[56:57]""")
    a(f"""
v_cmp_gt_u32 s[74:75], 8, v3
s_mul_i32 s56, {sW}, 1152
s_add_u32 s56, s56, {PMT}
v_lshl_add_u32 v4, v2, 5, v{vL16}
v_add_u32 v{vPW}, s56, v4
v_bfe_u32 v4, v1, 1, 2
v_mul_u32_u24 v4, 288, v4
v_and_b32 v5, 1, v1
v_lshl_add_u32 v4, v5, 7, v4
v_lshrrev_b32 v6, 3, v1
v_lshl_add_u32 v4, v6, 4, v4
v_add_u32 v{vPR}, {PMT}, v4
s_mul_i32 s56, {sW}, 576
s_add_u32 s56, s56, {PMM}
v_mul_u32_u24 v4, 144, v2
v_lshl_add_u32 v4, v3, 3, v4
v_add_u32 v{vMW}, s56, v4
v_and_b32 v4, 3, v1
v_mul_u32_u24 v4, 144, v4
v_lshl_add_u32 v4, v6, 3, v4
v_bfe_u32 v5, v1, 2, 1
v_lshl_add_u32 v4, v5, 6, v4
v_add_u32 v{vMR}, {PMM}, v4
""")
    a(f"""
v_lshrrev_b32 v4, 3, v1
v_bfe_u32 v5, v1, 1, 2
v_and_b32 v6, 1, v1
v_lshlrev_b32 v7, 7, v5
v_lshl_add_u32 v7, v4, 4, v7
v_lshl_add_u32 v{vES}, v6, 3, v7
v_lshl_add_u32 v7, v6, 3, v4
v_lshlrev_b32 v7, 4, v7
v_bfe_u32 v5, v1, 1, 1
v_lshl_add_u32 v7, v5, 3, v7
v_bfe_u32 v{vD0}, v1, 2, 1
v_lshl_add_u32 v{vLS}, v{vD0}, 9, v7
v_lshlrev_b32 v5, 2, v5
v_lshl_add_u32 v5, v6, 1, v5
v_cmp_eq_u32 s[76:77], 1, v{vD0}
v_cmp_eq_u32 vcc, v4, v5
s_nop 1
v_cndmask_b32 v{vD0}, 0, 1.0, vcc
v_add_u32 v5, 1, v5
v_cmp_eq_u32 vcc, v4, v5
s_nop 1
v_cndmask_b32 v{vD1}, 0, 1.0, vcc
""")
    a(f"""
s_cmp_eq_u32 {sW}, 0
s_cselect_b32 s56, 0, 0x40000000
v_add_u32 v{vES}, s56, v{vES}
v_add_u32 v{vLS}, s56, v{vLS}
v_min_u32 v4, 2, v1
s_mul_i32 s56, {sIDX}, 3
s_add_u32 s56, s56, {F_XW + 96 + FL // 128}
v_add_lshl_u32 v{vFL}, v4, s56, 7
s_lshr_b32 s56, {sW}, 1
s_lshl_b32 s57, s56, 1
s_add_u32 s57, s57, {sW}
s_add_u32 s56, s56, 2
s_and_b32 s58, {sW}, 1
s_lshl_b32 s58, s58, 3
v_add_u32 v{vKH}, s58, v{vL16}
s_mul_i32 s58, {sIDX}, 12288
s_add_u32 s58, s58, {QT + QKV_SZ}
s_lshl_b32 s67, s57, 11
s_add_u32 s67, s67, s58
s_lshl_b32 s68, s56, 11
s_add_u32 s68, s68, s58
s_mul_i32 s58, {sIDX}, 6144
s_add_u32 s58, s58, {KM}
s_lshl_b32 s69, s57, 10
s_add_u32 s69, s69, s58
s_lshl_b32 s70, s56, 10
s_add_u32 s70, s70, s58
s_lshr_b32 s56, {sIDX}, 3
s_lshl_b32 s79, s56, 7
s_add_u32 s79, s79, {HC}
s_lshl_b32 s71, s56, 14
s_add_u32 s71, s71, {LM}
s_mov_b32 s78, {f2u(C_SCALE):#x}
s_mov_b32 s62, {f2u(60.0):#x}
s_mov_b32 {sSEG}, 0
s_mov_b32 s73, 1
""")
    ktl = [f'buffer_load_dwordx4 v[{KT}:{KT+3}], v{vL16}, {WS}, s67 offen sc1',
           f'buffer_load_dwordx4 v[{KT+4}:{KT+7}], v{vL16}, {WS}, s67 offen offset:1024 sc1\nADV s67 s67 {L_Q}',
           f'buffer_load_dwordx2 v[{KT+8}:{KT+9}], v{vKH}, {WS}, s68 offen sc1',
           f'buffer_load_dwordx2 v[{KT+10}:{KT+11}], v{vKH}, {WS}, s68 offen offset:1024 sc1\nADV s68 s68 {L_Q}']
    if G.diag & 2: ktl = []
    else: G.wait_flags(f'v{vFL}', 'v4', 's73')
    for t in ktl: a(t)
    def main():
        a('L_s_loop:')
        G.tick(0)
        q = LQ(a)
        def wread(q, i):
            b = SB + (i % 2) * 8
            q.op(f'ds_read_b128 {vr(b, 4)}, v{vRES} offset:{i * 2048}')
            q.op(f'ds_read_b128 {vr(b + 4, 4)}, v{vRES} offset:{i * 2048 + 1024}', ('w', i))
        wread(q, 0); wread(q, 1)
        for i in range(24): a(f'v_mov_b32 v{AQ + i}, 0')
        q.drain()
        aseq = [2, 3, 4, 5, 6, 7, 8, 9, 2, 3, 4, 5, 6]
        slot1 = {t: (t - 2) % 3 for t in range(2, 10)}
        slot2 = dict(slot1); slot2.update({t: (8 + t - 2) % 3 for t in range(2, 7)})
        def ard(q, pos):
            t = aseq[pos]
            ad, off = ((vA1, vA2, vA3)[(t >> 1) - 1], (t & 1) * 1024) if t < 8 else (vA, t * 1024)
            q.op(f'ds_read_b128 {vr(AB + (pos % 3) * 4, 4)}, v{ad} offset:{off}', ('a', pos))
        def smf(q, n, own=POLA):
            mtx, tau, tl = order[n]
            kind, d = loc[mtx, tau, tl]
            if kind == 'l':
                i = d // 2048; d = SB + (i % 2) * 8; q.need(('w', i))
            if tau < 2: A = own + 4 * tau
            else:
                pos = tau - 2 if (mtx == 0 or tau >= 7) else 8 + tau - 2
                q.need(('a', pos)); A = AB + (pos % 3) * 4
            a(f'{SMF} {vr((AQ, AK)[mtx] + 4 * tl, 4)}, {vr(A, 4)}, {vr(d, 8)}, v{vIDX}')
            if kind == 'l' and i + 2 < nl: wread(q, i + 2)
        def mload(b):
            a(f"""buffer_load_dwordx4 v[{b}:{b+3}], v{vG4}, {WS}, s71 offen sc1
buffer_load_dwordx4 v[{b+4}:{b+7}], v{vG4}, {WS}, s71 offen offset:1024 sc1
buffer_load_dwordx2 v[{b+8}:{b+9}], v{vG2}, {WS}, s71 offen sc1""")
        def mwrite(b):
            a(f"""ds_write_b128 v{vL4}, v[{b}:{b+3}]
ds_write_b128 v{vL4}, v[{b+4}:{b+7}] offset:1024
ds_write_b64 v{vL2}, v[{b+8}:{b+9}]""")
        import copy
        def phase0(b, q0, fail):
            a(f'v_max3_u32 v{vT}, v{b+3}, v{b+7}, v{b+9}\nv_cmp_eq_u32 vcc, -1, v{vT}\ns_cbranch_vccnz {fail}')
            G.tick(1)
            wr = [f'ds_write_b128 v{vL4}, v[{b}:{b+3}]', f'ds_write_b128 v{vL4}, v[{b+4}:{b+7}] offset:1024', f'ds_write_b64 v{vL2}, v[{b+8}:{b+9}]']
            ck = [f'v_max3_u32 v{vT}, v{b}, v{b+1}, v{b+2}', f'v_max3_u32 v{vT}, v{vT}, v{b+4}, v{b+5}', f'v_max3_u32 v{vT}, v{vT}, v{b+6}, v{b+8}', f'v_cmp_eq_u32 vcc, -1, v{vT}']
            for n in range(9):
                smf(q0, n, own=b)
                if n < 3: q0.op(wr[n], 'mw')
                if n < 4: a(ck[n])
                if n == 4: a(f's_cbranch_vccnz {fail}_z')
                if n == G.sb1:
                    q0.need('mw'); a('s_barrier')
                    ard(q0, 0); ard(q0, 1); ard(q0, 2)
        def rezero(lab):
            a(f'{lab}_z:\ns_nop 7')
            for i in range(12): a(f'v_mov_b32 v{AQ + i}, 0')
        G.wait_flags(f'v{vZ}', 'v4', sSEG, sleep=G.ssl, soff='s79', first=lambda: G.set_flag('s66', sSEG, 'v5', f'v{vZ}', 'LOCAL'))
        G.tick(6)
        a(f's_mov_b32 {sSPIN}, {SPIN}')
        if G.mpipe:
            POLB = 80
            mload(POLA)
            a('s_branch L_s_poll')
            rezero('L_s_pollB')
            a('L_s_pollB:')
            mload(POLA)
            a(f's_sub_u32 {sSPIN}, {sSPIN}, 1\ns_cbranch_scc1 L_fail\ns_waitcnt vmcnt(3)')
            qb = copy.copy(q); qb.tag = dict(q.tag)
            phase0(POLB, qb, 'L_s_poll')
            a('s_branch L_s_main')
            rezero('L_s_poll')
            a('L_s_poll:')
            mload(POLB)
            a('s_waitcnt vmcnt(3)')
            phase0(POLA, q, 'L_s_pollB')
        else:
            a('s_branch L_s_poll')
            rezero('L_s_poll')
            a('L_s_poll:')
            mload(POLA)
            a(f's_sub_u32 {sSPIN}, {sSPIN}, 1\ns_cbranch_scc1 L_fail\ns_waitcnt vmcnt(0)')
            phase0(POLA, q, 'L_s_poll')
        a('L_s_main:')
        fill = {n: [] for n in range(60)}
        V = lambda s_: (lambda: a(s_))
        last_use = {}
        for n in range(9, 60):
            mtx, tau, tl = order[n]
            if tau < 2: continue
            pos = tau - 2 if (mtx == 0 or tau >= 7) else 8 + tau - 2
            last_use[pos] = n
        for pos in range(3, len(aseq)): fill[last_use[pos - 3]].append(lambda pos=pos: ard(q, pos))
        def cvt2(ACC, tl, dst):
            s_ = ACC + 4 * tl
            return [V(f'v_cvt_pk_bf16_f32 v{dst}, v{s_}, v{s_+1}'), V(f'v_cvt_pk_bf16_f32 v{dst+1}, v{s_+2}, v{s_+3}')]
        def tmf(ACC, tl, src, sel): return V(f'{MF16} {vr(ACC + 4 * tl, 4)}, v[{src}:{src+1}], v[{sel}:{sel+1}], 0')
        fill[12].append(V(f'buffer_load_dword v2, v{vFL}, {WS}, 0 offen sc1'))
        fill[30].append(V('s_waitcnt vmcnt(1)'))
        fill[31] += cvt2(AQ, 0, X)
        fill[32] += [V('s_nop 0'), tmf(AQ, 0, X, SQ)] + cvt2(AQ, 1, X + 2)
        fill[33] += [V('s_nop 0'), tmf(AQ, 1, X + 2, SQ)] + cvt2(AQ, 2, X + 4)
        fill[34] += [V('s_nop 0'), tmf(AQ, 2, X + 4, SQ)] + cvt2(AQ, 0, QH)
        fill[35] += cvt2(AQ, 1, QH + 2)
        fill[36] += [V('s_nop 0')] + [V(f'{MF32} {vr(AQ + 4*mt, 4)}, v[{KT + 4*mt}:{KT + 4*mt + 3}], v[{QH}:{QH+3}], 0') for mt in range(2)] + cvt2(AQ, 2, QH + 4)
        fill[38] += [V(f'{MF16} {vr(AQ + 4*mt, 4)}, v[{KT + 8 + 2*mt}:{KT + 9 + 2*mt}], v[{QH+4}:{QH+5}], {vr(AQ + 4*mt, 4)}') for mt in range(2)]
        fill[41] += [V(f'v_cndmask_b32 v{X + r}, v{AQ + 4 + r}, v{AQ + r}, s[74:75]') for r in range(4)]
        fill[41].append(lambda: q.op(f'ds_write_b128 v{vPW}, v[{X}:{X+3}]', 'pw'))
        def b2():
            q.need('pw'); a('s_barrier'); G.tick(2)
            for w in range(4): q.op(f'ds_read_b128 v[{X + 4*w}:{X + 4*w + 3}], v{vPR} offset:{1152 * w}', ('p', w))
        fill[G.b2].append(b2)
        add = lambda d, x, y: V(f'v_add_f32 v{d}, v{x}, v{y}')
        DP = ['quad_perm:[1,0,3,2]', 'quad_perm:[2,3,0,1]', 'row_half_mirror']
        dpt = lambda op, v, k: f'{op}_dpp {v}, {v}, {v} {DP[k]} row_mask:0xf bank_mask:0xf'
        dpp = lambda op, v, k: a(dpt(op, v, k))
        ex = lambda r: V(f'v_exp_f32 v{X+r}, v{X+r}')
        e0 = G.b2 + 5
        assert e0 + 6 <= 59
        fill[e0] += [lambda: q.need(('p', 1))] + [add(X + r, X + r, X + 4 + r) for r in range(4)]
        fill[e0 + 1] += [lambda: q.need(('p', 3))] + [add(X + 8 + r, X + 8 + r, X + 12 + r) for r in range(4)]
        fill[e0 + 2] += [add(X + r, X + r, X + 8 + r) for r in range(4)]
        fill[e0 + 3] += [V(f'v_max3_f32 v5, v{X}, v{X+1}, v{X+2}'), V(f'v_max_f32 v5, v5, v{X+3}')]
        fill[e0 + 4] += [V('s_nop 0'), V(dpt('v_max_f32', 'v5', 0))]
        fill[e0 + 5] += [V('s_nop 0'), V(dpt('v_max_f32', 'v5', 1))]
        fill[e0 + 6] += [V('s_nop 0'), V(dpt('v_max_f32', 'v5', 2))]
        fm = lambda r: V(f'v_fma_f32 v{X+r}, v{X+r}, s78, -v5')
        est = V(f'v_cvt_pk_bf16_f32 v{X+4}, v{X}, v{X+1}\nv_cvt_pk_bf16_f32 v{X+5}, v{X+2}, v{X+3}\nbuffer_store_dwordx2 v[{X+4}:{X+5}], v{vES}, {WS}, s64 offen LOCAL')
        mul5 = V('v_mul_f32 v5, s78, v5')
        if G.early:
            fill[e0 + 6] += [mul5] + [fm(r) for r in range(4)]
            mul5 = V('s_nop 0'); fm = lambda r: ex(r)
        fill[58] += cvt2(AK, 0, X + 8)
        for n in range(9, 60):
            smf(q, n)
            for f in fill[n]: f()
        G.tick(3)
        S0 = AQ + 8; d = vr(S0, 4)
        run = lambda fs: [f() for f in fs]
        run(cvt2(AK, 1, X + 10) + [tmf(AK, 0, X + 8, SK), mul5, tmf(AK, 1, X + 10, SK), fm(0), fm(1), fm(2)])
        if G.early:
            run(cvt2(AK, 2, Y) + [fm(3), V('s_nop 0'), tmf(AK, 2, Y, SK), est])
            G.tick(7)
            run(cvt2(AK, 0, KH) + cvt2(AK, 1, KH + 2))
            a(f's_nop 1\n{MF32} {d}, v[{KH}:{KH+3}], v[{QH}:{QH+3}], 0')
            run(cvt2(AK, 2, KH + 4))
            a(f's_cmp_eq_u32 {sW}, 0\ns_nop 2\n{MF16} {d}, v[{KH+4}:{KH+5}], v[{QH+4}:{QH+5}], {d}\ns_nop 0')
        else:
            run(cvt2(AK, 2, Y) + [fm(3), ex(0), tmf(AK, 2, Y, SK)] + cvt2(AK, 0, KH) + cvt2(AK, 1, KH + 2) + [ex(1), ex(2)])
            a(f'{MF32} {d}, v[{KH}:{KH+3}], v[{QH}:{QH+3}], 0')
            run([ex(3)] + cvt2(AK, 2, KH + 4))
            a(f"""v_cvt_pk_bf16_f32 v{X+4}, v{X}, v{X+1}
v_cvt_pk_bf16_f32 v{X+5}, v{X+2}, v{X+3}
s_cmp_eq_u32 {sW}, 0
{MF16} {d}, v[{KH+4}:{KH+5}], v[{QH+4}:{QH+5}], {d}
buffer_store_dwordx2 v[{X+4}:{X+5}], v{vES}, {WS}, s64 offen LOCAL""")
            G.tick(7)
        a(f"""v_add_f32 v6, v{X}, v{X+1}
v_add_f32 v4, v{X+2}, v{X+3}
v_add_f32 v6, v6, v4
s_nop 1
{dpt('v_add_f32', 'v6', 0)}
s_nop 0
ds_write_b64 v{vMW}, v[{S0}:{S0+1}]
{dpt('v_add_f32', 'v6', 1)}
s_nop 1
{dpt('v_add_f32', 'v6', 2)}
s_waitcnt lgkmcnt(0)
s_barrier
""")
        G.tick(4)
        Z = X + 8
        a(f"""s_cbranch_scc0 L_s_nolate
ds_read2_b64 v[{Z}:{Z+3}], v{vMR} offset0:0 offset1:72
ds_read2_b64 v[{Z+4}:{Z+7}], v{vMR} offset0:144 offset1:216
s_waitcnt lgkmcnt(1)
v_add_f32 v{Z}, v{Z}, v{Z+2}
v_add_f32 v{Z+1}, v{Z+1}, v{Z+3}
s_waitcnt lgkmcnt(0)
v_add_f32 v{Z+4}, v{Z+4}, v{Z+6}
v_add_f32 v{Z+5}, v{Z+5}, v{Z+7}
v_add_f32 v{Z}, v{Z}, v{Z+4}
v_add_f32 v{Z+1}, v{Z+1}, v{Z+5}
v_fma_f32 v{Z+2}, v{Z}, s78, -v5
v_fma_f32 v{Z+3}, v{Z+1}, s78, -v5
v_exp_f32 v{Z+4}, v{Z+2}
v_exp_f32 v{Z+5}, v{Z+3}
v_max_f32 v{Z+2}, v{Z+2}, v{Z+3}
v_add_f32 v{Z+6}, v{Z+4}, v{Z+5}
v_cmp_nge_f32 vcc, {'-4.0' if G.diag & 32 else 's62'}, v{Z+2}
v_cndmask_b32 v{Z+4}, v{Z+4}, v{vD0}, s[76:77]
{dpt('v_add_f32', f'v{Z+6}', 0)}
v_cndmask_b32 v{Z+5}, v{Z+5}, v{vD1}, s[76:77]
s_cbranch_vccnz L_s_exact
{dpt('v_add_f32', f'v{Z+6}', 1)}
v_add_f32 v{Z+6}, v{Z+6}, v6
L_s_norm:
v_rcp_f32 v{Z+6}, v{Z+6}
s_nop 0
v_mul_f32 v{Z+4}, v{Z+4}, v{Z+6}
v_mul_f32 v{Z+5}, v{Z+5}, v{Z+6}
v_cvt_pk_bf16_f32 v{Z}, v{Z+4}, v{Z+5}
v_min_u32 v{Z}, -2, v{Z}
buffer_store_dword v{Z}, v{vLS}, {WS}, s65 offen LOCAL
""")
        def exact():
            a(f"""L_s_exact:
v_max_f32 v{Z+2}, v{Z}, v{Z+1}
s_nop 1
{dpt('v_max_f32', f'v{Z+2}', 0)}
s_nop 1
{dpt('v_max_f32', f'v{Z+2}', 1)}
v_mul_f32 v{Z+2}, s78, v{Z+2}
v_max_f32 v{Z+2}, v{Z+2}, v5
v_fma_f32 v{Z+4}, v{Z}, s78, -v{Z+2}
v_fma_f32 v{Z+5}, v{Z+1}, s78, -v{Z+2}
v_sub_f32 v{Z+3}, v5, v{Z+2}
v_exp_f32 v{Z+4}, v{Z+4}
v_exp_f32 v{Z+5}, v{Z+5}
v_exp_f32 v{Z+3}, v{Z+3}
v_add_f32 v{Z+6}, v{Z+4}, v{Z+5}
v_mul_f32 v{Z}, v{vD0}, v{Z+3}
v_mul_f32 v{Z+1}, v{vD1}, v{Z+3}
{dpt('v_add_f32', f'v{Z+6}', 0)}
v_cndmask_b32 v{Z+4}, v{Z+4}, v{Z}, s[76:77]
v_cndmask_b32 v{Z+5}, v{Z+5}, v{Z+1}, s[76:77]
{dpt('v_add_f32', f'v{Z+6}', 1)}
v_fmac_f32 v{Z+6}, v6, v{Z+3}
s_branch L_s_norm""")
        G.tick(5)
        a(f"""L_s_nolate:
s_barrier
v_mov_b32 v{X}, -1
v_mov_b32 v{X+1}, -1
ADV s56 s64 {L_LOC} 2
ADV s57 s65 {L_LOC} 2
buffer_store_dwordx2 v[{X}:{X+1}], v{vES}, {WS}, s56 offen LOCAL
buffer_store_dword v{X}, v{vLS}, {WS}, s57 offen LOCAL
buffer_store_dwordx4 v[{KH}:{KH+3}], v{vL16}, {WS}, s69 offen LOCAL
buffer_store_dwordx2 v[{KH+4}:{KH+5}], v{vKH}, {WS}, s70 offen LOCAL
s_add_u32 s73, {sSEG}, 2
s_min_u32 s73, s73, {NSEG}
s_waitcnt vmcnt(5)
v_cmp_gt_u32 vcc, {0 if G.diag & 2 else 's73'}, v2
s_cbranch_vccnz L_s_kwait
L_s_kok:
""")
        for t in ktl: a(t)
        a(f"""ADV s69 s69 {L_KM}
ADV s70 s70 {L_KM}
ADV s64 s64 {L_LOC}
ADV s65 s65 {L_LOC}
ADV s71 s71 {L_LOC}
""")
        G.flush(8, vt=(4, 7))
        G.stamp(sSEG, vt=(4, 7))
        if G.prof == 4:
            for k, sl in ((1, 11), (8, 12), (63, 13)):
                l = a.label('L_ds')
                a(f's_lshl_b32 s56, {sSEG}, 8\ns_add_u32 s56, s56, {sROLE}\ns_add_u32 s56, s56, {sW}\ns_cmp_eq_u32 s56, {k << 8}\ns_cbranch_scc0 {l}')
                G.dstamp(sl); a(f'{l}:')
        a(f's_add_u32 {sSEG}, {sSEG}, 1\ns_cmp_lt_u32 {sSEG}, {NSEG}\ns_cbranch_scc1 L_s_loop\ns_waitcnt vmcnt(0)')
        G.set_flag('s66', sSEG, 'v4', f'v{vZ}', 'LOCAL')
        G.stamp(3)
        a('s_branch L_end\nL_s_kwait:')
        G.wait_flags(f'v{vFL}', 'v2', 's73')
        a('s_branch L_s_kok')
        exact()
    G.two_flavours('s', main)

def roleV(G):
    a = G.a
    a('L_roleV:')
    if G.disabled('V'): return
    vT, vIDX, vG4, vG2, vL4, vL2, vA, vRES, vTW, vTW3, vL16, vZS, vA1, vA2, vA3 = range(8, 23)
    SEL = 0
    AB = 24
    AC = 56
    POL = 68
    X = 80
    SB = 88
    W0 = 104
    order = [(tau, t) for tau in range(2) for t in range(3)] + [(tau, t) for tau in range(2, 10) for t in range(2)] + [(tau, 2) for tau in range(2, 10)]
    lds_set = [order[n] for n in (5, 8, 11, 14, 17, 20, 23, 26, 29)]
    RESW = len(lds_set) * 2048
    RES, MST, TT = 0, 73728, 83968
    loc = {}; nr = 0
    wo = {}
    for t3 in range(3):
        for c in range(10): wo[t3, c] = W0 + 8 * nr; nr += 1
    for key in order:
        if key in lds_set: loc[key] = ('l', lds_set.index(key) * 2048)
        else: loc[key] = ('r', W0 + 8 * nr); nr += 1
    assert W0 + 8 * nr <= 512
    a(f'''
s_sub_u32 {sIDX}, {sROLE}, {R_V}
v_lshlrev_b32 v{vL16}, 4, v1
v_and_b32 v4, 31, v1
v_lshlrev_b32 v4, 4, v4
v_lshrrev_b32 v5, 5, v1
v_lshl_add_u32 v{vZS}, v5, 13, v4
s_mul_i32 s64, {sW}, 81920
s_lshr_b32 s56, {sIDX}, 2
s_lshl_b32 s56, s56, 10
s_add_u32 s64, s64, s56
s_and_b32 s56, {sIDX}, 1
s_lshl_b32 s56, s56, 9
s_add_u32 s64, s64, s56
s_and_b32 s56, {sIDX}, 2
s_lshl_b32 s56, s56, 2
s_add_u32 s64, s64, s56
s_add_u32 s64, s64, {LZ}
v_mov_b32 v4, -1
v_mov_b32 v5, -1
''')
    for extra in (0, 1 << L_LOC):
        for p in range(5):
            a(f's_add_u32 s56, s64, {extra + p * 16384}\nbuffer_store_dwordx2 v[4:5], v{vZS}, {WS}, s56 offen sc1')
    if not G.soon: G.arrive()
    G.srd(12, P_WO, 32 * 245760); G.srd(16, P_WV, 640 * 12288)
    a(f'''s_mul_i32 s57, {sW}, 320
v_lshlrev_b32 v13, 4, v1
v_and_b32 v4, 1, v2
v_lshlrev_b32 v4, 5, v4
v_lshrrev_b32 v5, 3, v3
v_lshl_add_u32 v4, v5, 4, v4
v_lshrrev_b32 v5, 1, v2
v_lshl_add_u32 v4, v5, 2, v4
v_bfe_u32 v5, v3, 2, 1
v_add_u32 v4, v4, v5
v_mul_u32_u24 v4, 1280, v4
v_and_b32 v5, 3, v3
v_lshl_add_u32 v4, v5, 3, v4
v_add_u32 v29, s57, v4''')
    def consume(b):
        for c in range(10):
            for q2 in range(4):
                a(f'ds_read_b64_tr_b16 {vr(wo[b, c] + 2 * q2, 2)}, v29 offset:{(8 * (q2 >> 1) + 2 * (q2 & 1)) * 1280 + c * 32}')
    G.wo_load(64, 2, 'v29', consume, arrive=G.soon)
    a(f's_mul_i32 s71, {sW}, {RESW}\nv_add_u32 v{vRES}, s71, v{vL16}\nv_mov_b32 v0, v{vZS}')
    head_slab_load(G, [('s[16:19]', lambda t, tl: loc[t, tl])], 19, vRES, 32)
    a(f'v_mov_b32 v{vZS}, v0')
    G.await_all()
    a('s_barrier')
    idx_setup(G, vIDX)
    mpoll_setup(G, vG4, vG2, vL4, vL2, sSELV, MST)
    a(f'''
v_add_u32 v{vA}, {MST}, v{vL16}
s_lshr_b32 s56, {sW}, 1
s_lshl_b32 s57, s56, 11
s_and_b32 s58, {sW}, 1
s_lshl_b32 s59, s58, 3
s_add_u32 s57, s57, s59
s_add_u32 s57, s57, {TT}
v_add_u32 v{vTW}, s57, v{vL16}
s_lshl_b32 s56, s56, 3
s_add_u32 s56, s56, {TT + 1024}
v_add_u32 v{vTW3}, s56, v{vL16}
v_lshrrev_b32 v4, 3, v3
v_cmp_eq_u32 s[76:77], s58, v4
s_lshr_b32 s56, {sIDX}, 3
s_lshl_b32 s79, s56, 7
s_add_u32 s79, s79, {HC}
s_lshl_b32 s71, s56, 14
s_add_u32 s71, s71, {LM}
v_mov_b32 v23, 0
s_mov_b32 {sSEG}, 0
v_and_b32 v4, 1, v2
v_lshlrev_b32 v4, 2, v4
v_sub_u32 v5, v3, v4
v_mov_b32 v6, 0x3f80
v_mov_b32 v7, 0x3f800000
''')
    for hh in range(4):
        k0 = 2 * (hh & 1) + 8 * (hh >> 1)
        a(f'''v_cmp_eq_u32 vcc, {k0}, v5
v_cmp_eq_u32 s[56:57], {k0 + 1}, v5
s_nop 1
v_cndmask_b32 v{SEL + hh}, 0, v6, vcc
v_cndmask_b32 v{SEL + hh}, v{SEL + hh}, v7, s[56:57]''')
    a(f'''s_lshl_b32 s56, {sIDX}, 2
s_add_u32 s56, s56, {sW}
s_mul_i32 s65, s56, 10240
s_add_u32 s65, s65, {VO + 2 * L_VO}
s_mul_i32 s66, s56, 3072
s_add_u32 s66, s66, {QT + QKV_SZ + L_Q}''')
    nl = len(lds_set)
    a(f'v_xor_b32 v{vA1}, 2048, v{vL4}\nv_xor_b32 v{vA2}, 4096, v{vL4}\nv_xor_b32 v{vA3}, 6144, v{vL4}')
    def main():
        a('L_v_loop:')
        G.tick(0)
        q = LQ(a)
        def wread(i):
            b = SB + (i % 2) * 8
            q.op(f'ds_read_b128 {vr(b, 4)}, v{vRES} offset:{i * 2048}')
            q.op(f'ds_read_b128 {vr(b + 4, 4)}, v{vRES} offset:{i * 2048 + 1024}', ('w', i))
        wread(0); wread(1)
        for i in range(12): a(f'v_mov_b32 v{AC + i}, 0')
        q.drain()
        def mload(b):
            a(f"""buffer_load_dwordx4 v[{b}:{b+3}], v{vG4}, {WS}, s71 offen sc1
buffer_load_dwordx4 v[{b+4}:{b+7}], v{vG4}, {WS}, s71 offen offset:1024 sc1
buffer_load_dwordx2 v[{b+8}:{b+9}], v{vG2}, {WS}, s71 offen sc1""")
        def mwrite(b):
            a(f"""ds_write_b128 v{vL4}, v[{b}:{b+3}]
ds_write_b128 v{vL4}, v[{b+4}:{b+7}] offset:1024
ds_write_b64 v{vL2}, v[{b+8}:{b+9}]""")
        G.wait_flags('v23', 'v4', sSEG, sleep=G.vsl, soff='s79')
        if G.vdl: a(f's_sleep {G.vdl}')
        a(f's_mov_b32 {sSPIN}, {SPIN}\ns_branch L_v_poll\nL_v_poll_z:\ns_nop 7')
        for i in range(12): a(f'v_mov_b32 v{AC + i}, 0')
        a('L_v_poll:')
        mload(POL)
        b = POL
        a(f's_sub_u32 {sSPIN}, {sSPIN}, 1\ns_cbranch_scc1 L_fail\ns_waitcnt vmcnt(0)\nv_max3_u32 v{vT}, v{b+3}, v{b+7}, v{b+9}\nv_cmp_eq_u32 vcc, -1, v{vT}\ns_cbranch_vccnz L_v_poll')
        G.tick(1)
        sched = {}
        def at(n, f): sched.setdefault(n, []).append((lambda: a(f)) if isinstance(f, str) else f)
        cv = lambda d, s_: f'v_cvt_pk_bf16_f32 v{d}, v{s_}, v{s_+1}'
        sel = f'v[{SEL}:{SEL+3}]'
        wr = [f'ds_write_b128 v{vL4}, v[{b}:{b+3}]', f'ds_write_b128 v{vL4}, v[{b+4}:{b+7}] offset:1024', f'ds_write_b64 v{vL2}, v[{b+8}:{b+9}]']
        ck = [f'v_max3_u32 v{vT}, v{b}, v{b+1}, v{b+2}', f'v_max3_u32 v{vT}, v{vT}, v{b+4}, v{b+5}', f'v_max3_u32 v{vT}, v{vT}, v{b+6}, v{b+8}', f'v_cmp_eq_u32 vcc, -1, v{vT}']
        def ard(t):
            ad, off = ((vA1, vA2, vA3)[(t >> 1) - 1], (t & 1) * 1024) if t < 8 else (vA, t * 1024)
            q.op(f'ds_read_b128 {vr(AB + (t - 2) * 4, 4)}, v{ad} offset:{off}', ('a', t))
        for n in range(3): at(n, lambda n=n: q.op(wr[n], 'mw'))
        for n in range(4): at(n, ck[n])
        at(4, 's_cbranch_vccnz L_v_poll_z')
        at(4, lambda: (q.need('mw'), a('s_barrier'), ard(2), ard(3), ard(4)))
        for t in range(5, 10): at(2 * t - 4, lambda t=t: ard(t))
        grp = [(68, 72), (56, 60), (40, 44), (48, 52), (64, 36)]
        zer = lambda r: f'v_mov_b32 v{r}, 0'
        for i in range(8): at(9 + i, zer(68 + i))
        at(24, cv(X, AC)); at(24, cv(X + 1, AC + 2)); at(24, cv(X + 2, AC + 4)); at(24, cv(X + 3, AC + 6))
        at(25, f's_nop 0\n{MF32} v[{X+4}:{X+7}], v[{X}:{X+3}], {sel}, 0')
        for i in range(3): at(25 + i, zer(56 + i))
        at(28, cv(X, X + 4)); at(28, cv(X + 1, X + 6)); at(28, lambda: q.op(f'ds_write_b64 v{vTW}, v[{X}:{X+1}]', 't1'))
        def mid():
            for i in range(3, 8): a(zer(56 + i))
            a(zer(40) + '\n' + zer(41) + '\n' + zer(42))
            a(cv(4, AC + 8) + '\n' + cv(5, AC + 10) + '\n' + cv(6, AC + 8) + '\n' + cv(7, AC + 10))
            q.need('t1'); a('s_barrier')
            G.tick(2)
            a(f'{MF32} v[{X+4}:{X+7}], v[4:7], {sel}, 0')
            q.op(f'ds_read_b128 v[{AB}:{AB+3}], v{vA} offset:{TT - MST}', ('m', 0))
            q.op(f'ds_read_b128 v[{AB+4}:{AB+7}], v{vA} offset:{TT - MST + 2048}', ('m', 2))
            for i in range(3, 8): a(zer(40 + i))
            a('s_nop 0\n' + cv(X + 2, X + 4) + '\n' + cv(X + 3, X + 6) + '\ns_mov_b64 exec, s[76:77]')
            q.op(f'ds_write_b64 v{vTW3}, v[{X+2}:{X+3}]', 't2')
            a('s_mov_b64 exec, -1')
        at(29, mid)
        vm = {0: AB, 2: AB + 4, 1: AB + 8}
        o2 = [(p, t3) for p in range(3) for t3 in (0, 2)] + [(p, 1) for p in range(3)] + [(p, t3) for p in (3, 4) for t3 in range(3)]
        at(35, lambda: (q.need('t2'), a('s_barrier'), q.op(f'ds_read_b128 v[{AB+8}:{AB+11}], v{vA} offset:{TT - MST + 1024}', ('m', 1))))
        for i, r in enumerate(list(range(48, 56)) + list(range(64, 68)) + list(range(36, 40))): at(30 + i, zer(r))
        last = {p: 30 + 2 * k + 1 for k, (p, t3) in enumerate(o2)}
        n0 = 0
        for p in range(5):
            A0, A1 = grp[p]; T_ = (X, SB)[p & 1]; F = SB + 4 + (p & 1) * 4; d = SB + 12 + (p & 1) * 2
            n0 = max(last[p] + 3, n0 + 3)
            at(n0, cv(T_, A0)); at(n0, cv(T_ + 1, A0 + 2)); at(n0 + 1, cv(T_ + 2, A1)); at(n0 + 1, cv(T_ + 3, A1 + 2))
            at(n0 + 2, f's_nop 0\n{MF32} v[{F}:{F+3}], {sel}, v[{T_}:{T_+3}], 0')
            at(n0 + 5, cv(d, F)); at(n0 + 5, cv(d + 1, F + 2))
            at(n0 + 5, f's_add_u32 s56, s64, {p * 16384}\nbuffer_store_dwordx2 v[{d}:{d+1}], v{vZS}, {WS}, s56 offen LOCAL')
        for n in range(60):
            if n < 30:
                tau, tl = order[n]
                kind, d = loc[tau, tl]
                if kind == 'l':
                    i = d // 2048; d = SB + (i % 2) * 8; q.need(('w', i))
                if tau < 2: A = POL + 4 * tau
                else:
                    q.need(('a', tau)); A = AB + (tau - 2) * 4
                a(f'{SMF} {vr(AC + 4 * tl, 4)}, {vr(A, 4)}, {vr(d, 8)}, v{vIDX}')
                if kind == 'l' and i + 2 < nl: wread(i + 2)
            else:
                p, t3 = o2[(n - 30) >> 1]; qq = n & 1
                q.need(('m', t3))
                a(f'{SMF} {vr(grp[p][qq], 4)}, {vr(vm[t3], 4)}, {vr(wo[t3, 2 * p + qq], 8)}, v{vIDX}')
            for f in sched.pop(n, []): f()
        for n in range(60, 72):
            a('s_nop 2')
            for f in sched.pop(n, []): f()
            if not sched: break
        G.tick(3)
        a('v_mov_b32 v4, -1\nv_mov_b32 v5, -1')
        a(f'ADV s57 s64 {L_LOC} 2')
        for p in range(5):
            a(f's_add_u32 s56, s57, {p * 16384}\nbuffer_store_dwordx2 v[4:5], v{vZS}, {WS}, s56 offen LOCAL')
        G.flush(4, vt=(4, 5))
        G.stamp(sSEG, vt=(4, 5))
        a(f'''ADV s64 s64 {L_LOC}
ADV s71 s71 {L_LOC}
s_add_u32 {sSEG}, {sSEG}, 1
s_cmp_lt_u32 {sSEG}, {NSEG}
s_cbranch_scc1 L_v_loop''')
        G.stamp(3)
        a('s_branch L_end')
    G.two_flavours('v', main)


def roleT(G):
    a = G.a
    a('L_roleT:')
    if G.disabled('T'): return
    vZ, vL16, vFQ, vFS, vPM, vNI, vPT = 8, 9, 10, 11, 12, 13, 14
    DA, DB, DM = 16, 20, 24
    X = 28
    MB_ = 64
    FRG = 256
    a(f"""
s_sub_u32 {sIDX}, {sROLE}, {R_T}
s_lshl_b32 s66, {sIDX}, 2
s_add_u32 s66, s66, {sW}
s_lshr_b32 s64, s66, 1
s_and_b32 s65, {sW}, 1
s_lshl_b32 s66, s66, 7
s_add_u32 s66, s66, {FL + 128 * F_T}
v_mov_b32 v{vZ}, 0
""")
    G.set_flag('s66', 0, 'v4', f'v{vZ}')
    if G.probe:
        a(f'''
s_and_b32 s57, {sW}, 1
s_lshl_b32 s56, s57, 13
s_lshl_b32 s58, s64, 8
s_add_u32 s56, s56, s58
s_add_u32 s56, s56, {PG_PROBE}
s_getreg_b32 s58, hwreg(HW_REG_XCC_ID)
s_bfe_u32 s58, s58, 0x10002
s_xor_b32 s57, s57, s58
s_lshl_b32 s57, s57, 2
s_mov_b32 s58, 65535
s_mov_b32 s59, 0
s_waitcnt vmcnt(0)
L_t_probe:
s_memtime s[68:69]
s_waitcnt lgkmcnt(0)
buffer_store_dword v{vZ}, v{vZ}, {WS}, s56 offen sc1
s_waitcnt vmcnt(0)
s_memtime s[70:71]
s_waitcnt lgkmcnt(0)
s_sub_u32 s67, s70, s68
s_min_u32 s58, s58, s67
s_add_u32 s59, s59, 1
s_cmp_lt_u32 s59, 5
s_cbranch_scc1 L_t_probe
s_sub_u32 s58, 65535, s58
v_mov_b32 v4, s58
s_mov_b64 exec, 1
buffer_atomic_umax v4, v{vZ}, {DBG}, s57 offen offset:16
s_mov_b64 exec, -1
''')
    G.arrive()
    if G.diag & 2:
        a('s_branch L_end'); return
    G.await_all()
    a(f"""
v_lshlrev_b32 v{vL16}, 4, v1
v_min_u32 v4, 5, v1
v_add_u32 v5, 93, v4
v_cmp_gt_u32 vcc, 3, v4
s_mul_i32 s56, s64, 3
s_add_u32 s56, s56, {F_XW + FL // 128}
v_cndmask_b32 v4, v5, v4, vcc
v_add_lshl_u32 v{vFQ}, v4, s56, 7
v_and_b32 v4, 3, v1
s_lshl_b32 s56, s64, 2
s_add_u32 s56, s56, {F_S + FL // 128}
v_add_lshl_u32 v{vFS}, v4, s56, 7
v_lshrrev_b32 v4, 1, v2
v_lshl_add_u32 v4, v4, 4, v3
v_lshlrev_b32 v4, 4, v4
v_and_b32 v5, 1, v2
v_lshl_add_u32 v{vPM}, v5, 2, v4
v_mov_b32 v{vNI}, 0xff800000
s_mul_i32 s67, s64, 12288
s_add_u32 s67, s67, {QT}
s_lshl_b32 s74, s65, 10
s_mul_i32 s68, s64, 6144
s_add_u32 s68, s68, {KM}
s_and_b32 s59, s64, 7
s_lshl_b32 s69, s59, 10
s_lshr_b32 s56, s59, 1
s_lshl_b32 s56, s56, 10
s_and_b32 s57, s59, 1
s_lshl_b32 s58, s57, 3
s_add_u32 s56, s56, s58
s_add_u32 s56, s56, 8192
s_cmp_eq_u32 s65, 0
s_cselect_b32 s69, s56, s69
s_lshl_b32 s70, s65, 11
s_lshr_b32 s56, s59, 2
s_lshl_b32 s56, s56, 10
s_add_u32 s70, s70, s56
s_lshl_b32 s57, s57, 9
s_add_u32 s70, s70, s57
s_bfe_u32 s56, s59, 0x10001
s_lshl_b32 s56, s56, 3
s_add_u32 s70, s70, s56
s_add_u32 s70, s70, 12288
s_lshr_b32 s56, s64, 3
s_lshl_b32 s56, s56, 14
s_add_u32 s56, s56, {PT}
s_add_u32 s69, s69, s56
s_add_u32 s70, s70, s56
s_mov_b32 s78, {f2u(C_SCALE):#x}
v_lshlrev_b32 v4, 2, v2
s_lshl_b32 s56, s65, 4
v_add_u32 v6, s56, v3
""")
    for r in range(4):
        a(f'v_add_u32 v5, {r}, v4\nv_cmp_le_u32 s[{24 + 2*r}:{25 + 2*r}], v5, v6\nv_add_u32 v5, {16 + r}, v4\nv_cmp_le_u32 s[{32 + 2*r}:{33 + 2*r}], v5, v6')
    a(f's_mov_b32 {sSEG}, 0\ns_mov_b32 s73, 1')
    fr = lambda buf, kind, eb: FRG + 72 * buf + (kind * 6 + eb) * 4
    def qkload(buf):
        l = a.label('L_t_skip')
        for kind in range(3):
            if kind == 2: a(f's_cmp_eq_u32 s65, 0\ns_cbranch_scc1 {l}')
            for j in range(3):
                if kind == 0: a(f's_add_u32 s56, s67, s74\ns_add_u32 s56, s56, {j * 4096}')
                else: a(f's_add_u32 s56, s67, {QKV_SZ + j * 4096 + (kind - 1) * 1024}')
                for i in range(2):
                    a(f'buffer_load_dwordx4 {vr(fr(buf, kind, 2 * j + i), 4)}, v{vL16}, {WS}, s56 offen offset:{i * 2048} sc1')
        a(f'{l}:\nADV s67 s67 {L_Q}')
    if G.warm:
        for k in range(4):
            a('s_add_u32 s56, s68, 4096')
            for i in range(6): a(f'buffer_load_dwordx4 {vr(MB_, 4)}, v{vL16}, {WS}, {"s68" if i < 4 else "s56"} offen offset:{(i & 3) * 1024} sc1')
            a(f'ADV s68 s68 {L_KM}')
    G.wait_flags(f'v{vFQ}', 'v4', 's73')
    qkload(0)
    def main():
        a('L_t_loop:')
        for buf in range(2):
            G.tick(0)
            a(f's_add_u32 s73, {sSEG}, 2\ns_min_u32 s73, s73, {NSEG}\ns_waitcnt vmcnt(0)')
            G.set_flag('s66', sSEG, 'v4', f'v{vZ}', 'LOCAL')
            lab = a.label('L_t_la')
            a(f'buffer_load_dword v4, v{vFQ}, {WS}, 0 offen sc1\ns_mov_b32 s75, s73\ns_waitcnt vmcnt(0)\nv_cmp_gt_u32 vcc, s73, v4\ns_mov_b32 s76, 1\ns_cbranch_vccnz {lab}\ns_mov_b32 s76, 0')
            qkload(1 - buf)
            a(f'{lab}:\ns_add_u32 s73, {sSEG}, 1')
            G.tick(1)
            for eb in range(6):
                for D, kind in ((DA, 1), (DB, 2)):
                    a(f'{MF32} {vr(D, 4)}, {vr(fr(buf, kind, eb), 4)}, {vr(fr(buf, 0, eb), 4)}, {"0" if eb == 0 else vr(D, 4)}')
            G.wait_flags(f'v{vFS}', 'v4', 's73', sleep=1)
            G.tick(2)
            a('s_add_u32 s56, s68, 4096')
            for i in range(6):
                a(f'buffer_load_dwordx4 {vr(MB_ + 4 * i, 4)}, v{vL16}, {WS}, {"s68" if i < 4 else "s56"} offen offset:{(i & 3) * 1024} sc1')
            for r in range(4):
                a(f'v_cndmask_b32 v{DA + r}, v{vNI}, v{DA + r}, s[{24 + 2*r}:{25 + 2*r}]\nv_cndmask_b32 v{DB + r}, v{vNI}, v{DB + r}, s[{32 + 2*r}:{33 + 2*r}]')
            M = X
            a(f"""v_max3_f32 v{M}, v{DA}, v{DA+1}, v{DA+2}
v_max3_f32 v{M}, v{M}, v{DA+3}, v{DB}
v_max3_f32 v{M}, v{M}, v{DB+1}, v{DB+2}
v_max_f32 v{M}, v{M}, v{DB+3}
""")
            for eb in range(6):
                a(f's_waitcnt vmcnt({5 - eb})\n{MF32} {vr(DM, 4)}, {vr(MB_ + 4 * eb, 4)}, {vr(fr(buf, 0, eb), 4)}, {"0" if eb == 0 else vr(DM, 4)}')
            a(f's_nop 7\nv_max3_f32 v{M}, v{M}, v{DM}, v{DM+1}')
            def allred(op, A):
                for sw in ('v_permlane16_swap_b32', 'v_permlane32_swap_b32'):
                    a(f'v_mov_b32 v{X+2}, v{A}\ns_nop 1\n{sw} v{A}, v{X+2}\n{op} v{A}, v{A}, v{X+2}')
            allred('v_max_f32', M)
            a(f'v_mul_f32 v{M}, s78, v{M}')
            vals = [DA + r for r in range(4)] + [DB + r for r in range(4)] + [DM, DM + 1]
            for v in vals: a(f'v_fma_f32 v{v}, v{v}, s78, -v{M}')
            for v in vals: a(f'v_exp_f32 v{v}, v{v}')
            L = X + 1
            a(f'v_add_f32 v{L}, v{vals[0]}, v{vals[1]}')
            for v in vals[2:]: a(f'v_add_f32 v{L}, v{L}, v{v}')
            allred('v_add_f32', L)
            a(f'v_rcp_f32 v{L}, v{L}\ns_cmp_eq_u32 s65, 0')
            for v in vals: a(f'v_mul_f32 v{v}, v{v}, v{L}')
            O1 = 32
            l = a.label('L_t_st')
            for i in range(5): a(f'v_cvt_pk_bf16_f32 v{O1 + i}, v{vals[2*i]}, v{vals[2*i+1]}')
            a(f"""buffer_store_dword v{O1+4}, v{vPM}, {WS}, s70 offen LOCAL
s_cbranch_scc1 {l}
buffer_store_dwordx4 v[{O1}:{O1+3}], v{vL16}, {WS}, s69 offen LOCAL
s_branch {l}_e
{l}:
buffer_store_dwordx2 v[{O1}:{O1+1}], v{vL16}, {WS}, s69 offen LOCAL
{l}_e:
ADV s68 s68 {L_KM}
ADV s69 s69 {L_PT}
ADV s70 s70 {L_PT}
""")
            G.tick(3)
            G.flush(4); G.stamp(sSEG)
            a(f's_add_u32 {sSEG}, {sSEG}, 1\ns_cmp_eq_u32 s76, 0\ns_cbranch_scc1 {lab}_e')
            G.wait_flags(f'v{vFQ}', 'v4', 's75', first=lambda: G.set_flag('s66', sSEG, 'v5', f'v{vZ}', 'LOCAL'))
            qkload(1 - buf)
            a(f'{lab}_e:')
        a(f's_cmp_lt_u32 {sSEG}, {NSEG}\ns_cbranch_scc1 L_t_loop\ns_waitcnt vmcnt(0)')
        G.set_flag('s66', sSEG, 'v4', f'v{vZ}', 'LOCAL')
        G.stamp(3)
        a('s_branch L_end')
    G.two_flavours('t', main)

def roleO(G):
    a = G.a
    a(f'L_roleO:\ns_lshl_b32 s56, {sROLE}, 2\ns_add_u32 s56, s56, {sW}\ns_cmp_eq_u32 s56, {4 * R_O}\ns_cselect_b32 s56, 0, 0x40000000\nv_mov_b32 v12, s56\ns_mov_b32 s72, {FL + 128 * F_O}')
    G.set_flag('s72', 0, 'v4', 'v12')
    G.arrive()
    a(f's_sub_u32 {sIDX}, {sROLE}, {R_O}\ns_cmp_lt_u32 {sIDX}, {0 if G.diag & 2 else 10}\ns_cbranch_scc0 L_end')
    G.srd(12, P_X, 2048 * 1280); G.srd(20, P_OUT, 2048 * 1280)
    G.await_all()
    vXR, vOUT, vFB, vFL = 8, 9, 10, 11
    B = 16
    a(f"""
v_and_b32 v4, 31, v1
v_lshlrev_b32 v4, 4, v4
v_lshrrev_b32 v5, 5, v1
v_lshl_add_u32 v{vXR}, v5, 13, v4
v_and_b32 v6, 7, v1
v_bfe_u32 v7, v1, 3, 2
v_mul_u32_u24 v{vOUT}, 1280, v6
v_lshl_add_u32 v{vOUT}, v7, 3, v{vOUT}
v_lshl_add_u32 v{vOUT}, v5, 5, v{vOUT}
v_lshlrev_b32 v{vFB}, 10, v5
v_lshl_add_u32 v{vFB}, v7, 7, v{vFB}
v_lshl_add_u32 v{vFB}, v6, 3, v{vFB}
s_lshl_b32 s64, {sIDX}, 15
s_lshl_b32 s56, {sW}, 9
s_add_u32 s64, s64, s56
s_add_u32 s64, s64, {XO}
s_lshl_b32 s65, {sIDX}, 12
s_lshr_b32 s57, {sW}, 1
s_lshl_b32 s56, s57, 9
s_add_u32 s65, s65, s56
s_and_b32 s56, {sW}, 1
s_lshl_b32 s56, s56, 6
s_add_u32 s65, s65, s56
s_add_u32 s65, s65, {FB}
s_mul_i32 s66, {sW}, 10240
s_lshl_b32 s56, {sIDX}, 7
s_add_u32 s66, s66, s56
v_and_b32 v4, 3, v1
v_mul_u32_u24 v5, 10, v4
s_add_u32 s56, {sIDX}, {PG_CP // 128}
v_add_lshl_u32 v5, v5, s56, 7
v_add_u32 v5, {sSELM}, v5
s_lshl_b32 s56, {sIDX}, 3
s_add_u32 s56, s56, s57
v_lshl_add_u32 v4, v4, 1, s56
v_mul_u32_u24 v6, 205, v4
v_lshrrev_b32 v6, 11, v6
v_mul_u32_u24 v7, 10, v6
v_sub_u32 v7, v4, v7
v_and_b32 v7, 3, v7
v_lshl_add_u32 v6, v6, 2, v7
v_add_u32 v6, {F_FD + FL // 128}, v6
v_lshlrev_b32 v6, 7, v6
v_cmp_gt_u32 vcc, 4, v1
s_mov_b32 {sSEG}, 1
s_nop 0
v_cndmask_b32 v{vFL}, v6, v5, vcc
L_o_loop:
buffer_load_dwordx2 v[{B+32}:{B+33}], v{vOUT}, {SA}, s66 offen
buffer_load_dwordx2 v[{B+34}:{B+35}], v{vOUT}, {SA}, s66 offen offset:64
""")
    G.wait_flags(f'v{vFL}', 'v4', sSEG, sleep=G.fsl)
    G.set_flag('s72', sSEG, 'v4', 'v12')
    for h in range(2):
        for xx in range(2):
            a(f's_add_u32 s56, s64, {h * 16384 + xx * 4096}')
            for k in range(2):
                r = B + h * 16 + (xx * 2 + k) * 4
                a(f'buffer_load_dwordx4 v[{r}:{r+3}], v{vXR}, {WS}, s56 offen offset:{k * 2048} sc1')
        a(f'buffer_load_dwordx2 v[{B+36+2*h}:{B+37+2*h}], v{vFB}, {WS}, s65 offen offset:{h * 2048} sc1')
    for h in range(2):
        r = B + h * 16; T_ = B + 40
        a(f's_waitcnt vmcnt({5 if h == 0 else 1})')
        for i, src in enumerate((B + 32 + 2*h, B + 33 + 2*h, B + 36 + 2*h, B + 37 + 2*h)):
            a(f'v_lshlrev_b32 v{T_ + 2*i}, 16, v{src}\nv_and_b32 v{T_ + 2*i + 1}, 0xffff0000, v{src}')
        for i in range(4):
            a(f'v_add_f32 v{r+i}, v{r+i}, v{r+4+i}\nv_add_f32 v{r+8+i}, v{r+8+i}, v{r+12+i}\nv_add_f32 v{T_+i}, v{T_+i}, v{T_+4+i}\nv_add_f32 v{r+i}, v{r+i}, v{r+8+i}\nv_add_f32 v{r+i}, v{r+i}, v{T_+i}')
        a(f'v_cvt_pk_bf16_f32 v{r+4}, v{r}, v{r+1}\nv_cvt_pk_bf16_f32 v{r+5}, v{r+2}, v{r+3}\nbuffer_store_dwordx2 v[{r+4}:{r+5}], v{vOUT}, {SC}, s66 offen offset:{64 * h}')
    a(f'ADV s64 s64 {L_XO}\nADV s65 s65 {L_FB}\ns_add_u32 s66, s66, 40960\ns_add_u32 {sSEG}, {sSEG}, 1\ns_cmp_le_u32 {sSEG}, {NSEG}\ns_cbranch_scc1 L_o_loop')
    G.dstamp(9)
    G.stamp(3)
    a('s_branch L_end')

def emit(G):
    from roleC import roleC
    roleS(G); roleC(G); roleV(G); roleT(G); roleO(G)
```

```python
import sys, math
from asmlib import Asm, vr

NAME = 'parallel_sum__memory_aug_recurrent_mem_tr__glu_gated_geglu__prompt'
KN = NAME + '_kernel'
MB = 1 << 20
import os
XM, L_XM = 0, 18
PG_PROBE = 196608
PG_CP = 212992
LOC, L_LOC = 20 * MB, 19
O1 = int(os.environ.get('O1', 0)); O2 = int(os.environ.get('O2', 0))
LM, LE, LL, LZ = LOC + O1, LOC + 65536 + O1, LOC + 81920 + O1, LOC + 131072
HC = LOC + 98304 + O1
FL    = 18 * MB + O2
XN    = 22 * MB
FB, L_FB = 25 * MB, 40960
PT, L_PT = LOC + 458752, L_LOC
HT, L_HT = 33 * MB, 98304
KM, L_KM = 40 * MB, 18
XO, L_XO = 54 * MB, 327680
QT, L_Q = 84 * MB, 393216
QKV_SZ = 24 * MB
VO, L_VO = 157 * MB, 1310720
VNEAR = int(os.environ.get('VNEAR', 0))
if VNEAR:
    VO, L_VO, QT, XO = 128 * MB, 22, 54 * MB, 196 * MB
PROF  = 240 * MB
GATE = int(os.environ.get('GATE', 13))
WS_SIZE = 256 * MB
F_XW, F_OT, F_FD, F_T, F_S, F_O = 0, 384, 512, 576, 640, 768
R_S, R_C, R_V, R_T, R_O, R_FD, R_OT, R_XW = 0, 32, 72, 104, 120, 132, 140, 172
def role_table():
    t = [[] for _ in range(8)]
    for x in range(4):
        t[x] += [R_S + 8 * x + j for j in range(8)] + [R_V + 8 * x + j for j in range(8)] + [R_T + 4 * x + j for j in range(4)]
        t[x] += [R_C + 10 * x + j for j in range(10)] + [R_O + 2 * x + j for j in range(2)]
    for x in range(4):
        t[4 + x] += [R_OT + 8 * x + j for j in range(8)]
    t[4] += [R_FD + j for j in range(8)]
    xw = list(range(R_XW, 256)) + [R_O + 8 + j for j in range(4)]
    x = 0
    while xw:
        while len(t[4 + x]) >= 32: x = (x + 1) % 4
        t[4 + x] += xw[:4]; xw = xw[4:]; x = (x + 1) % 4
    flat = sum(t, [])
    assert sorted(flat) == list(range(256)) and all(len(r) == 32 for r in t)
    return flat
NSEG = 64
SPIN = 400000
WS, DBG, SA, SB, SC = 's[4:7]', 's[8:11]', 's[12:15]', 's[16:19]', 's[20:23]'
P_X, P_MEM, P_WQ, P_WK, P_WV, P_WO, P_G, P_U, P_D, P_OUT = 24, 26, 28, 30, 32, 34, 40, 42, 44, 46
sROLE, sW, sIDX, sSEG = 's52', 's53', 's54', 's55'
sSELM = sSELV = sSELE = sSELL = 's60'
sSPIN = 's96'
sSLOW = 's3'
C_SCALE = 192 ** -0.5 * math.log2(math.e)
import struct
def f2u(f): return struct.unpack('<I', struct.pack('<f', f))[0]

class VQ:
    def __init__(self, G): self.G = G; self.n = 0; self.tag = {}
    def op(self, ins, tag=None, n=1):
        self.G.a(ins); self.n += n
        if tag is not None: self.tag[tag] = self.n
    def need(self, tag):
        if tag in self.tag: self.G.a(f's_waitcnt vmcnt({min(63, self.n - self.tag[tag])})')

class Gen:
    def __init__(self, enable=('S','C','V','T','O','FD','OT','XW'), sel=0, place=1, prof=0, probe=1, diag=0, slp=1, rt=0, zpos=0, hs=14, hc=1, pf=0, hp=1, sb1=5, slow=0, xd=0, lser=1, psplit=20, vof=1, tch=0, nt=0, late=0, mpipe=1, b2=48, early=0, kfirst=1, cpf=1, pbar=0, fsl=4, vsl=0, vdl=0, ssl=0, nanck=0, k2=None, ctch=1, warm=1, soon=1):
        self.a = Asm(); self.cold = []; self.arrw = '3'; self.enable = set(enable); self.sel = sel; self.place = place; self.prof = prof; self.probe = probe; self.diag = diag; self.slp = slp; self.rt = rt; self.zpos = zpos; self.hs = hs; self.hc = hc; self.pf = pf; self.hp = hp; self.sb1 = sb1; self.slow = slow; self.xd = xd; self.lser = lser; self.psplit = psplit; self.vof = vof; self.tch = tch; self.nt = nt; self.late = late; self.mpipe = mpipe; self.b2 = b2; self.early = early; self.kfirst = kfirst; self.cpf = cpf; self.pbar = pbar; self.fsl = fsl; self.vsl = vsl; self.vdl = vdl; self.ssl = ssl; self.nanck = nanck; self.k2 = k2; self.ctch = ctch; self.warm = warm; self.soon = soon

    def two_flavours(self, name, body):
        import re
        a = self.a
        a(f's_cmp_eq_u32 {sSLOW}, 0\ns_cbranch_scc0 L_{name}_slow')
        keep = a.lines; a.lines = []
        body()
        txt = a.lines; a.lines = keep
        labels = [l[:-1] for l in txt if l.endswith(':')]
        a.lines += [l.replace(' LOCAL', '') for l in txt]
        pat = re.compile(r'\b(' + '|'.join(map(re.escape, labels)) + r')\b')
        self.cold += [f'L_{name}_slow:'] + [pat.sub(lambda m: m.group(1) + '_w', l).replace(' LOCAL', ' sc1') for l in txt]

    def loop2(self, body):
        keep = self.a.lines; self.a.lines = []
        body(); self.a.lines = keep
        body()

    def win(self, dst, src, add=0):
        return (f's_add_u32 {dst}, {src}, {add}\ns_lshr_b32 s97, {dst}, 8\ns_xor_b32 s97, s97, {sSELM}\ns_and_b32 s97, s97, 8192\ns_add_u32 {dst}, {dst}, s97')

    def srd(self, dst, ptr, size):
        a = self.a
        a(f's_mov_b32 s{dst}, s{ptr}\ns_mov_b32 s{dst+1}, s{ptr+1}\ns_mov_b32 s{dst+2}, {size}\ns_mov_b32 s{dst+3}, 0x20000')

    def prologue(self):
        a = self.a
        a(f'''
s_cmp_ge_u32 s2, 256
s_cbranch_scc1 L_end
s_load_dwordx16 s[24:39], s[0:1], 0
s_load_dwordx8 s[40:47], s[0:1], 64
s_load_dwordx4 s[48:51], s[0:1], 96
v_and_b32 v1, 63, v0
v_lshrrev_b32 v4, 6, v0
v_lshrrev_b32 v2, 4, v1
v_readfirstlane_b32 {sW}, v4
v_and_b32 v3, 15, v1
s_getreg_b32 s56, hwreg(HW_REG_XCC_ID)
''')
        if self.cpf:
            a(f'''s_getpc_b64 s[58:59]
L_pc0:
s_lshr_b32 s57, s2, 3
s_lshl_b32 s57, s57, 5
v_and_b32 v5, 31, v0
v_add_lshl_u32 v5, v5, s57, 7
v_min_u32 v5, L_hot_end - L_pc0, v5
global_load_dword v253, v5, s[58:59]''')
        a('s_waitcnt lgkmcnt(0)')
        self.srd(4, 50, WS_SIZE); self.srd(8, 48, 256)
        a(f's_mov_b32 {sSELM}, {self.sel}')
        if self.prof == 4:
            a(f's_and_b32 s57, s2, 31\ns_add_u32 s57, s57, {sW}\ns_cmp_eq_u32 s57, 0\ns_cbranch_scc0 L_nost')
            self.dstamp(8, True)
            a('L_nost:')
        if self.place:
            a(f'''
s_and_b32 s56, s56, 7
s_getpc_b64 s[58:59]
L_pc1:
s_lshl_b32 s57, s56, 5
s_add_u32 s57, s57, role_tab - L_pc1
s_load_dword s64, s[58:59], s57
s_cmp_eq_u32 {sW}, 0
s_cselect_b32 s57, 0, 0x1000
s_mul_i32 s58, s56, 24
s_add_u32 s57, s57, s58
v_mov_b32 v5, 1
v_mov_b32 v6, s57
s_mov_b64 exec, 1
buffer_atomic_add v5, v6, {DBG}, 0 offen offset:64 sc0
''')
            nt = 0
            a('s_mov_b64 exec, -1')
            a(f'''
s_waitcnt vmcnt({nt}) lgkmcnt(0)
s_cmp_eq_u32 {sW}, 0
s_cbranch_scc0 L_noticket
s_mov_b64 exec, 1
s_branch L_ticket2
L_ticket:
v_mov_b32 v5, 1
s_mul_i32 s57, s56, 24
v_mov_b32 v6, s57
buffer_atomic_add v5, v6, {DBG}, 0 offen offset:64 sc0
s_waitcnt vmcnt(0)
L_ticket2:
v_readfirstlane_b32 s57, v5
s_nop 3
s_cmp_lt_u32 s57, 32
s_cbranch_scc1 L_gotticket
v_mov_b32 v5, 1
v_mov_b32 v6, 0
buffer_store_dword v5, v6, {DBG}, 0 offen offset:24 sc1
s_add_u32 s56, s56, 1
s_and_b32 s56, s56, 7
s_branch L_ticket
L_gotticket:
s_lshl_b32 s58, s56, 5
s_add_u32 s57, s57, s58
s_getpc_b64 s[58:59]
L_pc:
s_and_b32 s56, s57, 0xfc
s_add_u32 s56, s56, role_tab - L_pc
s_load_dword s56, s[58:59], s56
s_and_b32 s57, s57, 3
s_lshl_b32 s57, s57, 3
s_waitcnt lgkmcnt(0)
s_lshr_b32 s57, s56, s57
v_mov_b32 v5, s57
v_mov_b32 v6, 0
ds_write_b32 v6, v5
s_waitcnt lgkmcnt(0)
s_mov_b64 exec, -1
L_noticket:
s_barrier
v_mov_b32 v6, 0
ds_read_b32 v5, v6
s_waitcnt lgkmcnt(0)
v_readfirstlane_b32 {sROLE}, v5
s_nop 3
s_and_b32 {sROLE}, {sROLE}, 255
s_barrier
''')
        else:
            a(f's_mov_b32 {sROLE}, s2')
        a(f'''
''')
        self.stamp(0)
        a(f'''
s_sub_u32 s56, {sROLE}, {R_O}
s_cmp_lt_u32 s56, 20
s_cbranch_scc1 L_ln
s_sub_u32 s56, {sROLE}, {R_XW - 20}
s_sub_u32 s57, {sROLE}, {R_XW}
s_cmp_lt_u32 s57, 24
s_cbranch_scc1 L_ln
s_sub_u32 s56, {sROLE}, {R_XW + 72 - 44}
s_cmp_ge_u32 {sROLE}, {R_XW + 72}
s_cbranch_scc1 L_ln
s_sub_u32 s57, {sROLE}, {R_C}
s_mul_i32 s56, s57, 205
s_lshr_b32 s56, s56, 10
s_mul_i32 s58, s56, 5
s_add_u32 s56, s56, 56
s_cmp_lt_u32 s57, 40
s_cselect_b32 s57, s57, 1
s_cmp_eq_u32 s57, s58
s_cbranch_scc1 L_ln
L_dispatch:
s_cmp_lt_u32 {sROLE}, {R_C}
s_cbranch_scc1 L_roleS
s_cmp_lt_u32 {sROLE}, {R_V}
s_cbranch_scc1 L_roleC
s_cmp_lt_u32 {sROLE}, {R_T}
s_cbranch_scc1 L_roleV
s_cmp_lt_u32 {sROLE}, {R_O}
s_cbranch_scc1 L_roleT
s_cmp_lt_u32 {sROLE}, {R_FD}
s_cbranch_scc1 L_roleO
s_cmp_lt_u32 {sROLE}, {R_OT}
s_cbranch_scc1 L_roleFD
s_cmp_lt_u32 {sROLE}, {R_XW}
s_cbranch_scc1 L_roleOT
s_branch L_roleXW
''')
        for c in range(40): assert (c * 205) >> 10 == c // 5

    def touch(self):
        a = self.a; n = 0
        if not self.tch: return 0
        st = self.tch
        a(f's_mov_b32 s63, 1\ns_lshl_b32 s61, s2, 2\ns_add_u32 s61, s61, {sW}\nv_mul_u32_u24 v254, {st}, v1')
        for ptr, size in ((P_WV, 7864320), (P_WK, 7864320), (P_WO, 7864320), (P_WQ, 7864320), (P_G, 1966080), (P_U, 1966080), (P_D, 1966080)):
            per = size // 1024
            self.srd(12, ptr, size)
            a(f's_mul_i32 s62, s61, {per}')
            o = 0
            while o < per:
                k = min(64, (per - o) // st)
                a(f's_mov_b32 exec_lo, {(1 << min(k, 32)) - 1:#x}\ns_mov_b32 exec_hi, {(1 << max(k - 32, 0)) - 1:#x}')
                if o: a(f's_add_u32 s62, s62, {64 * st}')
                a(f'buffer_load_dword v255, v254, {SA}, s62 offen')
                o += 64 * st; n += 1
        a('s_mov_b64 exec, -1')
        return n

    def arrive_issue(self, v):
        a = self.a; l = a.label('L_arr')
        a(f's_cmp_eq_u32 {sW}, {self.arrw}\ns_cbranch_scc0 {l}\ns_mov_b64 exec, 1\nv_mov_b32 {v}, 1\nv_mov_b32 v5, 8\nbuffer_atomic_add {v}, v5, {DBG}, 0 offen sc0\ns_mov_b64 exec, -1\n{l}:')
    def arrive_check(self, v):
        a = self.a; l = a.label('L_arr')
        a(f'''
s_cmp_eq_u32 {sW}, {self.arrw}
s_cbranch_scc0 {l}
s_mov_b64 exec, 1
v_cmp_eq_u32 vcc, 255, {v}
s_cbranch_vccz {l}_x
v_mov_b32 v5, 8
buffer_load_dwordx3 v[4:6], v5, {DBG}, 0 offen offset:8 sc1
s_waitcnt vmcnt(0)
v_cmp_lt_u32 vcc, v4, v5
v_mov_b32 v4, 0x2001
v_lshlrev_b32 v6, 1, v6
v_cndmask_b32 v4, 1, v4, vcc
v_or_b32 v4, v4, v6
v_mov_b32 v5, 252
buffer_store_dword v4, v5, {DBG}, 0 offen sc1
{l}_x:
s_mov_b64 exec, -1
{l}:
''')
    def arrive(self):
        self.a('s_waitcnt vmcnt(0)\ns_barrier')
        self.arrive_issue('v4')
        self.a('s_waitcnt vmcnt(0)')
        self.arrive_check('v4')
    def arrive_soon(self, nyounger):
        self.a(f's_waitcnt vmcnt({nyounger})\ns_barrier')
        self.arrive_issue('v7')
    def await_all(self, stamps=True):
        a = self.a; l = a.label('L_aw')
        if stamps: self.stamp(1)
        a(f'''
s_mov_b32 {sSPIN}, {SPIN}
v_mov_b32 v5, 252
{l}:
buffer_load_dword v4, v5, {DBG}, 0 offen sc1
s_sub_u32 {sSPIN}, {sSPIN}, 1
s_cbranch_scc1 L_fail
s_waitcnt vmcnt(0)
v_cmp_eq_u32 vcc, 0, v4
s_cbranch_vccz {l}_d
s_sleep 16
s_branch {l}
{l}_d:
v_readfirstlane_b32 s61, v4
s_nop 3
s_and_b32 {sSELM}, s61, 8192
s_and_b32 {sSLOW}, s61, 2''')
        if self.slow or not self.place: a(f's_mov_b32 {sSLOW}, 1')
        if stamps: self.stamp(2)
    def wait_flags(self, voff, vtmp, sneed, sleep=2, soff='0', first=None):
        a = self.a; l = a.label('L_wf')
        if first:
            a(f'buffer_load_dword {vtmp}, {voff}, {WS}, {soff} offen sc1\ns_waitcnt vmcnt(0)')
            first()
            a(f'v_cmp_gt_u32 vcc, {sneed}, {vtmp}\ns_cbranch_vccz {l}_d')
        a(f'''
s_mov_b32 {sSPIN}, {SPIN}
{l}:
buffer_load_dword {vtmp}, {voff}, {WS}, {soff} offen sc1
s_sub_u32 {sSPIN}, {sSPIN}, 1
s_cbranch_scc1 L_fail
s_waitcnt vmcnt(0)
v_cmp_gt_u32 vcc, {sneed}, {vtmp}
''' + (f's_cbranch_vccz {l}_d\ns_sleep {min(127, sleep * self.slp)}\ns_branch {l}\n{l}_d:' if sleep else f's_cbranch_vccnz {l}\n{l}_d:'))
    def set_flag(self, sflag, val, vtmp, vzero, fl='sc1'):
        self.a(f'v_mov_b32 {vtmp}, {val}\nbuffer_store_dword {vtmp}, {vzero}, {WS}, {sflag} offen {fl}')

    def stamp(self, slot, vt=(6, 7), sub=0, nsub=1):
        if not self.prof or self.prof == 4 or (self.prof == 2 and isinstance(slot, str)) or (self.prof == 3 and slot not in (0, 3)): return
        a = self.a
        a(f's_memrealtime s[98:99]\ns_lshl_b32 s100, {sROLE}, 2\ns_add_u32 s100, s100, {sW}\ns_lshl_b32 s100, s100, 12')
        if isinstance(slot, str): a(f's_mul_i32 s101, {slot}, {4 * nsub}\ns_add_u32 s100, s100, s101\ns_add_u32 s100, s100, {PROF + 64 + 4 * sub}')
        else: a(f's_add_u32 s100, s100, {PROF + 4 * slot}')
        a(f's_waitcnt lgkmcnt(0)\nv_mov_b32 v{vt[0]}, s98\nv_mov_b32 v{vt[1]}, 0\nbuffer_store_dword v{vt[0]}, v{vt[1]}, {WS}, s100 offen')

    def dstamp(self, slot, neg=False):
        if self.prof != 4: return
        self.a(f's_memrealtime s[98:99]\ns_waitcnt lgkmcnt(0)\ns_and_b32 s98, s98, 0xffffff\n' + ('s_xor_b32 s98, s98, 0xffffff\n' if neg else '') +
               f's_mov_b64 exec, 1\nv_mov_b32 v6, s98\nv_mov_b32 v7, {4 * slot}\nbuffer_atomic_umax v6, v7, {DBG}, 0 offen\ns_mov_b64 exec, -1')

    def tick(self, i):
        if self.prof == 2: self.a(f'{"s_memrealtime" if self.rt else "s_memtime"} s[{80 + 2 * i}:{81 + 2 * i}]')
    def flush(self, n, vt=(6, 7)):
        if self.prof != 2: return
        a = self.a
        a(f's_lshl_b32 s100, {sROLE}, 2\ns_add_u32 s100, s100, {sW}\ns_lshl_b32 s100, s100, 12\ns_lshl_b32 s101, {sSEG}, 5\ns_add_u32 s100, s100, s101\ns_add_u32 s100, s100, {PROF + 1024}')
        a(f's_waitcnt lgkmcnt(0)\nv_mov_b32 v{vt[1]}, 0')
        for i in range(n):
            a(f'v_mov_b32 v{vt[0]}, s{80 + 2 * i}\nbuffer_store_dword v{vt[0]}, v{vt[1]}, {WS}, s100 offen offset:{4 * i}')

    def check(self, regs, vt):
        a = self.a; r = list(regs)
        a(f'v_max3_u32 {vt}, {vr(r[0])}, {vr(r[1])}, {vr(r[2])}')
        i = 3
        while i + 1 < len(r):
            a(f'v_max3_u32 {vt}, {vt}, {vr(r[i])}, {vr(r[i+1])}'); i += 2
        if i < len(r):
            a(f'v_max_u32 {vt}, {vt}, {vr(r[i])}')
        a(f'v_cmp_eq_u32 vcc, -1, {vt}')

    def stream_load(self, nblocks, ninstr, ring, issue, consume, arrive=False):
        a = self.a
        n = 0; pos = {}
        def iss(b):
            nonlocal n
            issue(b); n += ninstr; pos[b] = n
        for b in range(min(ring, nblocks)):
            iss(b)
            if arrive and b == 2: self.arrive_soon(n)
        for b in range(nblocks):
            assert n - pos[b] <= 63
            a(f's_waitcnt vmcnt({n - pos[b]})')
            if arrive and b == 3: self.arrive_check('v7')
            n += consume(b) or 0
            a('s_waitcnt lgkmcnt(0)')
            if b + ring < nblocks: iss(b + ring)

    def wo_load(self, rows, ring, vaddr, consume, arrive=False):
        a = self.a
        nb = 192 // rows; bs = rows * 1280; ni = bs // 4096
        a(f's_mul_i32 s72, {sIDX}, 245760\ns_mul_i32 s70, {sW}, {bs // 4}\ns_add_u32 s72, s72, s70')
        def issue(b):
            for i in range(ni):
                if i % 4 == 0: a(f's_add_u32 m0, s70, {(b % ring) * bs + i * 1024}\ns_add_u32 s73, s72, {b * bs + i * 1024}')
                a(f'buffer_load_dwordx4 v13, {SA}, s73 offen offset:{(i % 4) * 1024} {"nt " if self.nt == 2 else ""}lds')
        for b in range(ring - 1): issue(b)
        if arrive: self.arrive_soon(ni * (ring - 1))
        base = 0
        for b in range(nb):
            a(f's_waitcnt vmcnt({ni * (min(nb - 1, b + ring - 2) - b)})')
            if arrive and b == ring - 1: self.arrive_check('v7')
            a('s_barrier')
            if b + ring - 1 < nb: issue(b + ring - 1)
            if (b % ring) * bs != base:
                a(f'v_add_u32 {vaddr}, {(b % ring) * bs - base}, {vaddr}'); base = (b % ring) * bs
            consume(b)
            a('s_waitcnt lgkmcnt(0)')
        a('s_barrier')

    def dma(self, voff, srd, soff, sbase, ldsoff, sc1=False):
        self.a(f's_add_u32 m0, {sbase}, {ldsoff}\ns_nop 0\nbuffer_load_dwordx4 {voff}, {srd}, {soff} offen {"sc1 " if sc1 else ("nt " if self.nt else "")}lds')

    def ln(self):
        a = self.a
        a('L_ln:')
        self.srd(12, P_X, 2048 * 1280)
        a(f"""
s_lshl_b32 s56, s56, 2
s_add_u32 s56, s56, {sW}
v_and_b32 v4, 7, v1
v_lshrrev_b32 v5, 3, v1
v_mul_u32_u24 v6, 1280, v4
v_lshl_add_u32 v6, v5, 4, v6
v_lshrrev_b32 v7, 2, v5
v_lshlrev_b32 v7, 11, v7
v_and_b32 v5, 3, v5
v_lshl_add_u32 v7, v5, 8, v7
v_lshl_add_u32 v7, v4, 4, v7
s_mov_b32 s58, 0x3acccccd
s_mul_i32 s57, s56, 10240
""")
        R0, R1, F = 16, 56, 96
        for j in range(10): a(f'buffer_load_dwordx4 v[{R0+4*j}:{R0+4*j+3}], v6, {SA}, s57 offen offset:{128*j}')
        nt = self.touch()
        a(f"""
s_lshr_b32 s59, s56, 2
s_mul_i32 s59, s59, 40960
s_bfe_u32 s64, s56, 0x10001
s_lshl_b32 s64, s64, 10
s_add_u32 s59, s59, s64
s_and_b32 s64, s56, 1
s_lshl_b32 s64, s64, 7
s_add_u32 s59, s59, s64
s_add_u32 s59, s59, {XN}
""")
        for j in range(40):
            if j % 4 == 0: a(f's_waitcnt vmcnt({nt + 9 - j // 4})')
            a(f'v_lshlrev_b32 v{F+2*j}, 16, v{R0+j}\nv_and_b32 v{F+2*j+1}, 0xffff0000, v{R0+j}')
        def red(v, t):
            a(f's_nop 1\nv_add_f32_dpp {v}, {v}, {v} row_ror:8 row_mask:0xf bank_mask:0xf')
            for sw in ('v_permlane16_swap_b32', 'v_permlane32_swap_b32'):
                a(f'v_mov_b32 {t}, {v}\ns_nop 1\n{sw} {v}, {t}\nv_add_f32 {v}, {v}, {t}')
        a(f'v_add_f32 v10, v{F}, v{F+1}')
        for j in range(2, 80): a(f'v_add_f32 v10, v10, v{F+j}')
        red('v10', 'v11')
        a(f'v_mul_f32 v10, s58, v10\nv_sub_f32 v12, v{F}, v10\nv_mul_f32 v13, v12, v12')
        for j in range(1, 80): a(f'v_sub_f32 v12, v{F+j}, v10\nv_fmac_f32 v13, v12, v12')
        red('v13', 'v11')
        a("""
v_mul_f32 v13, s58, v13
v_cvt_pk_bf16_f32 v10, v10, v13
v_and_b32 v13, 0xffff0000, v10
v_lshlrev_b32 v10, 16, v10
v_add_f32 v13, 0x3727c5ac, v13
v_cvt_pk_bf16_f32 v13, v13, v13
v_lshlrev_b32 v13, 16, v13
v_sqrt_f32 v13, v13
s_nop 0
v_cvt_pk_bf16_f32 v13, v13, v13
v_lshlrev_b32 v13, 16, v13
v_rcp_f32 v13, v13
""")
        for j in range(40):
            x, y = F + 2 * j, F + 2 * j + 1
            a(f"""v_sub_f32 v{x}, v{x}, v10
v_sub_f32 v{y}, v{y}, v10
v_cvt_pk_bf16_f32 v{R0+j}, v{x}, v{y}
v_lshlrev_b32 v{x}, 16, v{R0+j}
v_and_b32 v{y}, 0xffff0000, v{R0+j}
v_mul_f32 v{x}, v{x}, v13
v_mul_f32 v{y}, v{y}, v13
v_cvt_pk_bf16_f32 v{R0+j}, v{x}, v{y}""")
            if j % 4 == 3: a(f'buffer_store_dwordx4 v[{R0+j-3}:{R0+j}], v7, {WS}, s59 offen sc1\ns_add_u32 s59, s59, 4096')
        a('s_nop 1\ns_branch L_dispatch')

    def disabled(self, name):
        if name in self.enable: return False
        self.arrive()
        self.a('s_branch L_end')
        return True

    def roleXW(self):
        a = self.a
        a('L_roleXW:')
        if self.disabled('XW'): return
        W0 = 192
        wf = lambda kk, t: W0 + (kk * 4 + t) * 4
        ACC = 64
        acc = lambda mt, t: ACC + (mt * 4 + t) * 4
        XB = 32
        a(f'''
s_sub_u32 {sIDX}, {sROLE}, {R_XW}
s_lshl_b32 s64, {sIDX}, 2
s_add_u32 s64, s64, {sW}
s_lshl_b32 s66, s64, 7
s_add_u32 s66, s66, {FL + 128 * F_XW}
v_mov_b32 v8, 0
''')
        self.set_flag('s66', 0, 'v4', 'v8')
        if self.late or not self.soon: self.arrive()
        else:
            a(f's_mov_b32 s63, 3\ns_sub_u32 s56, {sIDX}, 24\ns_cmp_lt_u32 s56, 48\ns_cbranch_scc1 L_xw_soon')
            self.arrive()
            a('s_mov_b32 s63, 7\nL_xw_soon:')
            self.arrw = 's63'
        a(f'''
s_cmp_lt_u32 s64, 288
s_cbranch_scc0 L_xw_ffn
s_mov_b32 s69, 0
s_mov_b32 s65, 12288
s_mov_b32 s68, {L_Q}
s_cmp_lt_u32 s64, 96
s_cselect_b32 s12, s{P_WQ}, s{P_WK}
s_cselect_b32 s13, s{P_WQ+1}, s{P_WK+1}
s_cselect_b32 s56, 0, 96
s_mov_b32 s67, {QT}
s_cselect_b32 s67, s67, {QT + QKV_SZ}
s_cmp_lt_u32 s64, 192
s_cselect_b32 s12, s12, s{P_WV}
s_cselect_b32 s13, s13, s{P_WV+1}
s_cselect_b32 s56, s56, 192
s_cselect_b32 s67, s67, {QT + 2 * QKV_SZ}
s_mov_b32 s14, {640 * 12288}
s_mov_b32 s15, 0x20000
s_mov_b32 s16, s12
s_mov_b32 s17, s13
s_mov_b32 s18, s14
s_mov_b32 s19, 0x20000
s_sub_u32 s56, s64, s56
s_lshl_b32 s57, s56, 12
s_add_u32 s67, s67, s57
s_lshl_b32 s57, s56, 7
v_lshrrev_b32 v4, 3, v1
v_mul_u32_u24 v4, 12288, v4
v_and_b32 v5, 7, v1
v_lshl_add_u32 v4, v5, 4, v4
v_add_u32 v10, s57, v4
v_add_u32 v11, {8 * 12288}, v10
v_and_b32 v4, 1, v2
v_lshlrev_b32 v4, 11, v4
v_lshrrev_b32 v5, 1, v2
v_lshl_add_u32 v4, v5, 10, v4
v_lshrrev_b32 v5, 2, v3
v_lshl_add_u32 v4, v5, 7, v4
s_mov_b32 s57, 512
s_mov_b32 s58, 64
s_branch L_xw_go
L_xw_ffn:
s_mov_b32 s69, 1
s_mov_b32 s65, 3072
s_mov_b32 s68, {L_HT}
''')
        self.srd(12, P_G, 640 * 3072); self.srd(16, P_U, 640 * 3072)
        a(f'''
s_sub_u32 s56, s64, 288
s_lshl_b32 s67, s56, 11
s_add_u32 s67, s67, {HT}
s_lshl_b32 s57, s56, 6
v_lshrrev_b32 v4, 2, v1
v_mul_u32_u24 v4, 3072, v4
v_and_b32 v5, 3, v1
v_lshl_add_u32 v4, v5, 4, v4
v_add_u32 v10, s57, v4
v_mov_b32 v11, v10
v_lshrrev_b32 v4, 2, v3
v_lshl_add_u32 v4, v2, 3, v4
v_lshlrev_b32 v4, 6, v4
s_mov_b32 s57, 256
s_mov_b32 s58, 2048
L_xw_go:
s_mul_i32 s70, {sW}, 40960
s_lshl_b32 s71, s65, 4
s_mov_b32 s72, 0
v_and_b32 v5, 3, v3
v_lshl_add_u32 v4, v5, 3, v4
v_add_u32 v20, s70, v4
v_add_u32 v21, s57, v20
v_add_u32 v22, s58, v20
v_add_u32 v23, s58, v21
''')
        if self.late:
            a(f's_sub_u32 s56, s64, {(0, 0, 96, 192)[self.late]}\ns_cmp_lt_u32 s56, {(0, 288, 192, 96)[self.late]}\ns_cbranch_scc1 L_xw_now')
            self.await_all(stamps=False)
            a('L_xw_now:')
        RING = 10
        def issue(b):
            o = (b % RING) * 4096
            self.dma('v10', SA, 's72', 's70', o); self.dma('v11', SB, 's72', 's70', o + 2048)
            a('s_add_u32 s72, s72, s71')
            self.dma('v10', SA, 's72', 's70', o + 1024); self.dma('v11', SB, 's72', 's70', o + 3072)
            a('s_add_u32 s72, s72, s71')
        def consume(b):
            o = (b % RING) * 4096
            for t in range(4):
                for hf in range(2):
                    a(f'ds_read_b64_tr_b16 {vr(wf(b, t) + 2 * hf, 2)}, v{20 + 2 * (t >> 1) + hf} offset:{o + (t & 1) * 32}')
        def xdma1(i, src='s72', dst='s73'):
            return (f's_add_u32 s75, {src}, {i * 1024}\ns_add_u32 m0, {dst}, {i * 1024}\ns_nop 0\n'
                    f'buffer_load_dwordx4 v13, {WS}, s75 offen sc1 lds')
        xadv = 's_add_u32 s72, s72, 40960\ns_add_u32 s73, s73, 40960\ns_cmp_lt_u32 s73, 122880\ns_cselect_b32 s73, s73, s70'
        self.stream_load(20, 4, RING, issue, consume, arrive=self.soon and not self.late)
        self.await_all()
        a(f'''s_barrier
v_lshlrev_b32 v13, 4, v1
s_mul_i32 s70, {sW}, 10240
s_add_u32 s72, s70, {XN}
s_mov_b32 s73, s70
s_mov_b32 s74, 0
s_mov_b32 {sSEG}, 0
''')
        for _ in range(2):
            for i in range(10): a(xdma1(i))
            a(xadv)
        k1 = 2 * math.sqrt(2 / math.pi) * math.log2(math.e)
        a(f's_mov_b32 s76, {f2u(-k1 * 0.044715):#x}\ns_mov_b32 s77, {f2u(-k1):#x}\nv_mov_b32 v15, s77')
        a(f'v_add_u32 v16, 0x40000000, v13\ns_sub_u32 s67, s67, s68\nv_mov_b32 v17, {FL + 128 * F_O}\nv_mov_b32 v18, 0\ns_waitcnt vmcnt(10)\ns_barrier')
        a('s_cmp_eq_u32 s69, 0\ns_cbranch_scc0 L_xf_loop')
        acc2 = lambda par, mt, t: 64 + par * 32 + (mt * 4 + t) * 4
        OUT, TMP = 128, 144
        def epilogue(ffn, par):
            o = []
            if not ffn:
                for mt in range(2):
                    for p in range(2):
                        d = OUT + (mt * 2 + p) * 4
                        for q in range(2):
                            s_ = acc2(par, mt, 2 * p + q)
                            o += [('v', f'v_cvt_pk_bf16_f32 v{d + 2*q}, v{s_}, v{s_+1}'), ('v', f'v_cvt_pk_bf16_f32 v{d + 2*q + 1}, v{s_+2}, v{s_+3}')]
                        o.append(('m', f'buffer_store_dwordx4 v[{d}:{d+3}], v16, {WS}, s67 offen offset:{p * 2048 + mt * 1024} sc1'))
            else:
                for mt in range(2):
                    G_ = [acc2(par, mt, q) + r for q in range(2) for r in range(4)]
                    U_ = [acc2(par, mt, 2 + q) + r for q in range(2) for r in range(4)]
                    T_ = [TMP + i for i in range(8)]
                    o += [('v', f'v_mul_f32 v{t}, v{g}, v{g}') for g, t in zip(G_, T_)]
                    o += [('v', f'v_fma_f32 v{t}, v{t}, s76, v15') for t in T_]
                    o += [('v', f'v_mul_f32 v{t}, v{t}, v{g}') for g, t in zip(G_, T_)]
                    o += [('t', f'v_exp_f32 v{t}, v{t}') for t in T_]
                    o += [('v', f'v_mul_f32 v{g}, v{g}, v{u}') for g, u in zip(G_, U_)]
                    o += [('v', f'v_add_f32 v{t}, 1.0, v{t}') for t in T_]
                    o += [('t', f'v_rcp_f32 v{t}, v{t}') for t in T_]
                    o += [('v', f'v_mul_f32 v{g}, v{g}, v{t}') for g, t in zip(G_, T_)]
                    d = OUT + mt * 4
                    o += [('v', f'v_cvt_pk_bf16_f32 v{d + i}, v{G_[2*i]}, v{G_[2*i+1]}') for i in range(4)]
                    o.append(('m', f'buffer_store_dwordx4 v[{d}:{d+3}], v16, {WS}, s67 offen offset:{mt * 1024} sc1'))
            return o
        for ffn in (0, 1):
            nm = 'L_xf' if ffn else 'L_xw'
            vq = VQ(self)
            def body():
                for par in range(2):
                    self.tick(0)
                    l = a.label('L_xw_go')
                    a(f's_sub_u32 s79, {sSEG}, {GATE}\ns_max_i32 s79, s79, 0')
                    vq.need('fl')
                    a(f'v_cmp_gt_u32 vcc, s79, v18\ns_cbranch_vccz {l}')
                    self.wait_flags('v17', 'v18', 's79', sleep=8)
                    a(f'{l}:\nv_add_u32 v14, s74, v13')
                    def rd(kk):
                        b = XB + (kk % 3) * 8
                        a(f'ds_read_b128 {vr(b, 4)}, v14 offset:{kk * 2048}\nds_read_b128 {vr(b + 4, 4)}, v14 offset:{kk * 2048 + 1024}')
                    rd(0); rd(1)
                    ep = epilogue(ffn, 1 - par)
                    n = 0
                    for kk in range(20):
                        if kk + 2 < 20: rd(kk + 2)
                        a(f's_waitcnt lgkmcnt({min(4, 2 * (19 - kk))})')
                        b = XB + (kk % 3) * 8
                        for mt in range(2):
                            for t in range(4):
                                c = vr(acc2(par, mt, t), 4)
                                a(f'v_mfma_f32_16x16x32_bf16 {c}, {vr(wf(kk, t), 4)}, {vr(b + 4 * mt, 4)}, {"0" if kk == 0 else c}')
                                n += 1
                                if n >= 3:
                                    budget = 2
                                    while ep and budget > 0:
                                        kind, txt = ep[0]
                                        if kind == 't' and budget < 2: break
                                        ep.pop(0)
                                        if kind == 'm': vq.op(txt, 'st'); budget = 0
                                        else: a(txt); budget -= 2 if kind == 't' else 1
                                if kk >= 10 and mt == 0 and t == 3: vq.op(xdma1(kk - 10), 'dma')
                        if kk == (17 if ffn else 7):
                            assert not ep
                            vq.need('st')
                            vq.op(f'v_mov_b32 v4, {sSEG}\nbuffer_store_dword v4, v8, {WS}, s66 offen sc1')
                        if kk == 8: vq.op(f'buffer_load_dword v18, v17, {WS}, 0 offen sc1', 'fl')
                        if kk == 9:
                            self.tick(1)
                            vq.need('dma'); a('s_barrier')
                            self.tick(2)
                    assert not ep
                    a(xadv)
                    self.tick(3)
                    self.tick(4)
                    if self.prof == 2: self.flush(5); vq.n += 5
                    if self.prof == 1: self.stamp(sSEG); vq.n += 1
                    a(f'''v_mov_b32 v16, v13
s_add_u32 s67, s67, s68
s_add_u32 s74, s74, 40960
s_cmp_lt_u32 s74, 122880
s_cselect_b32 s74, s74, 0
s_add_u32 {sSEG}, {sSEG}, 1''')
            a(f'{nm}_loop:')
            self.loop2(body)
            a(f's_cmp_lt_u32 {sSEG}, {NSEG}\ns_cbranch_scc1 {nm}_loop\ns_nop 7')
            for kind, txt in epilogue(ffn, 1): a(txt + ('\ns_nop 0' if kind == 't' else ''))
            a('s_waitcnt vmcnt(0)')
            self.set_flag('s66', NSEG, 'v4', 'v8')
            self.stamp(3)
            a('s_branch L_end')

    def slab_voff(self, vb, n, ppr, pitch, magic, shift, scol):
        a = self.a
        for u in range(64 * n): assert (u * magic) >> shift == u // ppr, (u, ppr)
        for i in range(n):
            a(f'''v_add_u32 v4, {64 * i}, v1
v_mul_u32_u24 v5, {magic}, v4
v_lshrrev_b32 v5, {shift}, v5
v_mul_u32_u24 v6, {ppr}, v5
v_sub_u32 v4, v4, v6
v_mul_u32_u24 v5, {pitch}, v5
v_lshl_add_u32 v4, v4, 4, v5
v_add_u32 v{vb + i}, {scol}, v4''')

    def roleOT(self):
        a = self.a
        a('L_roleOT:')
        if self.disabled('OT'): return
        W0 = 256
        wf = lambda eb, c: W0 + (c * 6 + eb) * 4
        VB = 64
        vf = lambda buf, eb, mt: VB + buf * 48 + (eb * 2 + mt) * 4
        a(f'''
s_sub_u32 {sIDX}, {sROLE}, {R_OT}
s_lshl_b32 s66, {sW}, 5
s_add_u32 s66, s66, {sIDX}
s_lshl_b32 s66, s66, 7
s_add_u32 s66, s66, {FL + 128 * F_OT}
v_mov_b32 v8, 0
''')
        self.set_flag('s66', 0, 'v4', 'v8')
        if not self.soon: self.arrive()
        self.srd(12, P_WO, 32 * 245760)
        a(f'''v_lshlrev_b32 v13, 4, v1
s_mul_i32 s57, {sW}, 320
v_lshrrev_b32 v4, 2, v3
v_lshl_add_u32 v4, v2, 2, v4
v_mul_u32_u24 v4, 1280, v4
v_and_b32 v5, 3, v3
v_lshl_add_u32 v4, v5, 3, v4
v_add_u32 v12, s57, v4''')
        def consume(b):
            for c in range(10):
                for hf in range(2):
                    a(f'ds_read_b64_tr_b16 {vr(wf(b, c) + 2 * hf, 2)}, v12 offset:{hf * 20480 + c * 32}')
        self.wo_load(32, 4, 'v12', consume, arrive=self.soon)
        self.await_all()
        a(f'''
v_lshlrev_b32 v13, 4, v1
v_min_u32 v4, 2, v1
s_mul_i32 s56, {sIDX}, 3
s_add_u32 s56, s56, {F_XW + 192 + FL // 128}
v_add_lshl_u32 v15, v4, s56, 7
s_mul_i32 s72, {sIDX}, 12288
s_add_u32 s72, s72, {QT + 2 * QKV_SZ}
s_mul_i32 s67, {sW}, {10 * (16384 if VNEAR else 8192)}
s_and_b32 s56, {sIDX}, 7
s_lshl_b32 s56, s56, 10
s_add_u32 s67, s67, s56
s_lshr_b32 s56, {sIDX}, 3
s_mul_i32 s56, s56, {MB if VNEAR else 327680}
s_add_u32 s67, s67, s56
s_add_u32 s67, s67, {VO}
{'FIXW s67' if VNEAR else ''}
{'s_xor_b32 s67, s67, 8192' if VNEAR == 2 else ''}
s_mov_b32 {sSEG}, 0
s_mov_b32 s73, 1
''')
        def vload1(buf, f):
            return f's_add_u32 s75, s72, {(f >> 2) * 4096}\nbuffer_load_dwordx4 {vr(VB + buf * 48 + f * 4, 4)}, v13, {WS}, s75 offen offset:{(f & 3) * 1024} sc1'
        self.wait_flags('v15', 'v4', 's73')
        for f in range(12): a(vload1(0, f))
        a(f'ADV s72 s72 {L_Q}\ns_waitcnt vmcnt(0)')
        vq = VQ(self)
        def body():
            for buf in range(2):
                self.tick(0)
                l = a.label('L_ot')
                a(f's_add_u32 s73, {sSEG}, 2\ns_min_u32 s73, s73, {NSEG}\ns_mov_b32 s74, s67')
                vq.need('v')
                vq.op(f'buffer_load_dword v17, v15, {WS}, 0 offen sc1', 'fl')
                self.tick(1)
                for c in range(11):
                    n = 0
                    fin = []
                    if c > 0:
                        A = 32 + ((c - 1) & 1) * 8; d = 48 + ((c - 1) & 1) * 4
                        fin = [f'v_cvt_pk_bf16_f32 v{d+i}, v{A+2*i}, v{A+2*i+1}' for i in range(4)]
                        st = f'buffer_store_dwordx4 v[{d}:{d+3}], v13, {WS}, s74 offen sc1\ns_add_u32 s74, s74, {16384 if VNEAR else 8192}'
                    if c < 10:
                        A = 32 + (c & 1) * 8
                        for eb in range(6):
                            for mt in range(2):
                                dd = vr(A + 4 * mt, 4)
                                a(f'v_mfma_f32_16x16x32_bf16 {dd}, {vr(vf(buf, eb, mt), 4)}, {vr(wf(eb, c), 4)}, {"0" if eb == 0 else dd}')
                                n += 1
                                if 3 <= n < 7 and fin: a(fin[n - 3])
                                if n == 7 and fin: vq.op(st, 'st')
                                if n == 12 and c == 2:
                                    vq.need('fl')
                                    a(f'v_cmp_gt_u32 vcc, s73, v17\nv_mov_b32 v4, {sSEG}\ns_cmp_eq_u64 vcc, 0\ns_cselect_b32 s76, 0, 0x40000000\nv_add_u32 v16, s76, v13')
                                    vq.op(f'buffer_store_dword v4, v8, {WS}, s66 offen sc1')
                                if n in (1, 5, 10) and 3 <= c < 7: vq.op(vload1(1 - buf, 3 * (c - 3) + (1, 5, 10).index(n)).replace('v13', 'v16'), 'v')
                    else:
                        a('s_nop 7')
                        for f in fin: a(f)
                        vq.op(st)
                self.tick(2)
                if self.prof == 2: self.flush(3); vq.n += 3
                if self.prof == 1: self.stamp(sSEG); vq.n += 1
                a(f's_add_u32 {sSEG}, {sSEG}, 1\ns_cmp_eq_u32 s76, 0\ns_cbranch_scc1 {l}')
                self.wait_flags('v15', 'v4', 's73', sleep=1, first=lambda: self.set_flag('s66', sSEG, 'v5', 'v8'))
                for f in range(12): a(vload1(1 - buf, f))
                a(f's_waitcnt vmcnt(0)\n{l}:\nADV s72 s72 {L_Q}\nADV s67 s67 {L_VO}')
        a('L_ot_loop:')
        self.loop2(body)
        a(f's_cmp_lt_u32 {sSEG}, {NSEG}\ns_cbranch_scc1 L_ot_loop\ns_waitcnt vmcnt(0)')
        self.set_flag('s66', NSEG, 'v4', 'v8')
        self.stamp(3)
        a('s_branch L_end')

    def roleFD(self):
        a = self.a
        a('L_roleFD:')
        if self.disabled('FD'): return
        W0 = 256
        wf = lambda kb, c: W0 + (kb * 5 + c) * 4
        HB = 64
        ACC = 24
        a(f'''
s_sub_u32 {sIDX}, {sROLE}, {R_FD}
s_lshl_b32 s66, {sIDX}, 2
s_add_u32 s66, s66, {sW}
s_lshl_b32 s66, s66, 7
s_add_u32 s66, s66, {FL + 128 * F_FD}
v_mov_b32 v8, 0
''')
        self.set_flag('s66', 0, 'v4', 'v8')
        self.arrive()
        self.srd(12, P_D, 1536 * 1280)
        a(f's_mul_i32 s57, {sIDX}, 160\ns_mul_i32 s72, {sW}, {384 * 1280}\ns_mul_i32 s70, {sW}, 40960')
        self.slab_voff(16, 5, 10, 1280, 205, 11, 's57')
        a('''v_lshrrev_b32 v4, 2, v3
v_lshl_add_u32 v4, v2, 2, v4
v_mul_u32_u24 v4, 160, v4
v_and_b32 v5, 3, v3
v_lshl_add_u32 v4, v5, 3, v4
v_add_u32 v12, s70, v4''')
        if self.late: self.await_all(stamps=False)
        RING = 8
        def issue(b):
            for i in range(5): self.dma(f'v{16+i}', SA, 's72', 's70', (b % RING) * 5120 + i * 1024)
            a('s_add_u32 s72, s72, 40960')
        def consume(b):
            for c in range(5):
                for hf in range(2):
                    a(f'ds_read_b64_tr_b16 {vr(wf(b, c) + 2 * hf, 2)}, v12 offset:{(b % RING) * 5120 + hf * 2560 + c * 32}')
        self.stream_load(12, 5, RING, issue, consume)
        self.await_all()
        a('s_barrier')
        a(f'''
v_lshlrev_b32 v13, 4, v1
v_lshlrev_b32 v10, 3, v1
s_mul_i32 s70, {sW}, 10240
v_add_u32 v14, s70, v13
s_lshl_b32 s70, {sW}, 10
v_add_u32 v9, s70, v13
v_min_u32 v4, 11, v1
s_mul_i32 s56, {sW}, 12
s_add_u32 s56, s56, {F_XW + 288 + FL // 128}
v_add_lshl_u32 v15, v4, s56, 7
s_mul_i32 s72, {sW}, 24576
s_add_u32 s72, s72, {HT}
s_mul_i32 s67, {sIDX}, 5120
s_lshl_b32 s56, {sW}, 9
s_add_u32 s67, s67, s56
s_add_u32 s67, s67, {FB}
s_mov_b32 {sSEG}, 0
s_mov_b32 s73, 1
''')
        def hload1(buf, f):
            return f's_add_u32 s75, s72, {(f >> 2) * 4096}\nbuffer_load_dwordx4 {vr(HB + buf * 96 + f * 4, 4)}, v13, {WS}, s75 offen offset:{(f & 3) * 1024} sc1'
        self.wait_flags('v15', 'v4', 's73')
        for f in range(24): a(hload1(0, f))
        a(f'ADV s72 s72 {L_HT}\nv_mov_b32 v22, 0\ns_waitcnt vmcnt(0)')
        a('L_fd_loop:')
        for buf in range(2):
            self.tick(0)
            l = a.label('L_fd_ok')
            a(f's_add_u32 s73, {sSEG}, 2\ns_min_u32 s73, s73, {NSEG}\ns_waitcnt vmcnt(2)\nv_cmp_gt_u32 vcc, s73, v22\ns_cbranch_vccz {l}')
            self.wait_flags('v15', 'v4', 's73')
            a(f'{l}:')
            self.tick(1)
            n = 0
            for kb in range(12):
                for c in range(5):
                    for tt in range(2):
                        d = vr(ACC + (c * 2 + tt) * 4, 4)
                        a(f'v_mfma_f32_16x16x32_bf16 {d}, {vr(wf(kb, c), 4)}, {vr(HB + buf * 96 + (kb * 2 + tt) * 4, 4)}, {"0" if kb == 0 else d}')
                        if n % 4 == 1 and n // 4 < 24: a(hload1(1 - buf, n // 4))
                        if n == 62:
                            a('s_waitcnt vmcnt(16)')
                            self.set_flag('s66', sSEG, 'v4', 'v8')
                        if n == 110: a(f'buffer_load_dword v22, v15, {WS}, 0 offen sc1')
                        n += 1
            a(f'ADV s72 s72 {L_HT}')
            self.tick(2)
            a('s_nop 7')
            lb = buf * 40960
            for t in range(10): a(f'ds_write_b128 v14, {vr(ACC + t * 4, 4)} offset:{lb + t * 1024}')
            a('s_waitcnt lgkmcnt(0)\ns_barrier')
            lab = a.label('L_fd_skip')
            for j in range(3):
                if j == 2: a(f's_cmp_lt_u32 {sW}, 2\ns_cbranch_scc0 {lab}')
                for w in range(4):
                    off = lb + w * 10240 + j * 4096
                    if off > 65535 - 16:
                        a(f'v_add_u32 v11, {off}, v9\nds_read_b128 {vr(ACC + w * 4, 4)}, v11')
                    else:
                        a(f'ds_read_b128 {vr(ACC + w * 4, 4)}, v9 offset:{off}')
                a('s_waitcnt lgkmcnt(0)')
                for r in range(4):
                    a(f'v_add_f32 v{ACC+r}, v{ACC+r}, v{ACC+4+r}\nv_add_f32 v{ACC+8+r}, v{ACC+8+r}, v{ACC+12+r}\nv_add_f32 v{ACC+r}, v{ACC+r}, v{ACC+8+r}')
                a(f'v_cvt_pk_bf16_f32 v{16+2*j}, v{ACC}, v{ACC+1}\nv_cvt_pk_bf16_f32 v{17+2*j}, v{ACC+2}, v{ACC+3}')
                a(f'buffer_store_dwordx2 v[{16+2*j}:{17+2*j}], v10, {WS}, s67 offen offset:{j * 2048 if j < 2 else 0} sc1' if j < 2 else
                  f's_add_u32 s75, s67, 4096\nbuffer_store_dwordx2 v[{16+2*j}:{17+2*j}], v10, {WS}, s75 offen sc1')
            a(f'{lab}:')
            self.tick(3)
            if self.prof == 2: self.flush(4); a('s_waitcnt vmcnt(0)')
            a(f'ADV s67 s67 {L_FB}\ns_add_u32 {sSEG}, {sSEG}, 1')
        a(f's_cmp_lt_u32 {sSEG}, {NSEG}\ns_cbranch_scc1 L_fd_loop\ns_waitcnt vmcnt(0)')
        self.set_flag('s66', NSEG, 'v4', 'v8')
        self.stamp(3)
        a('s_branch L_end')

    def build(self):
        a = self.a
        self.prologue(); self.ln()
        import roles2
        roles2.emit(self)
        self.roleFD(); self.roleOT(); self.roleXW()
        a(f'''L_fail:
s_waitcnt vmcnt(0) lgkmcnt(0)
s_mov_b64 exec, 1
v_mov_b32 v4, {sROLE}
v_add_u32 v4, 1, v4
v_mov_b32 v5, 12
buffer_store_dword v4, v5, {DBG}, 0 offen
L_end:
s_endpgm
L_hot_end:''')
        a.lines += self.cold
        a('.p2align 2\n.type role_tab,@object\n.size role_tab, 256\nrole_tab:')
        rt = role_table()
        for i in range(0, 256, 16): a('.byte ' + ', '.join(str(r) for r in rt[i:i+16]))
        hdr = open(f'cdna_kernels/{NAME}.s.ref').read().split('; Override')[0]
        return (hdr + '; @launch grid=(256,1,1) block=(256,1,1) lds=163840\n'
                f'.amdgcn_target "amdgcn-amd-amdhsa--gfx950"\n.text\n.globl {KN}\n.p2align 8\n.type {KN},@function\n{KN}:\n'
                + a.text() + f'''.section .rodata,"a"
.p2align 6
.amdhsa_kernel {KN}
  .amdhsa_next_free_vgpr 512
  .amdhsa_next_free_sgpr 102
  .amdhsa_accum_offset 256
  .amdhsa_group_segment_fixed_size 0
  .amdhsa_kernarg_size 112
  .amdhsa_user_sgpr_count 2
  .amdhsa_user_sgpr_kernarg_segment_ptr 1
  .amdhsa_system_sgpr_workgroup_id_x 1
  .amdhsa_float_denorm_mode_32 3
  .amdhsa_float_denorm_mode_16_64 3
.end_amdhsa_kernel
''')

if __name__ == '__main__':
    kw = eval('dict(%s)' % (sys.argv[2] if len(sys.argv) > 2 else ''))
    open(sys.argv[1], 'w').write(Gen(**kw).build())
```
